```python
import torch

def _softmax(x, axis=-1):
    return torch.softmax(x, dim=axis)

def _gelu(x):
    return torch.nn.functional.gelu(x, approximate='tanh')

def _silu(x):
    return torch.nn.functional.silu(x)

def _sigmoid(x):
    return torch.sigmoid(x)

def _layernorm(x, axis=-1, eps=1e-05):
    m = x.mean(dim=axis, keepdim=True)
    v = x.var(dim=axis, keepdim=True, unbiased=False)
    return (x - m) / torch.sqrt(v + eps)

def _scatter_add(tgt, idx, src, axis=0):
    return tgt.clone().index_add_(axis, idx, src)

def _segment_sum(src, seg, n):
    out = torch.zeros((n,) + src.shape[1:], dtype=src.dtype)
    return out.index_add_(0, seg, src)

def _pad(x, pw):
    flat = tuple((v for pair in reversed(pw) for v in pair))
    return torch.nn.functional.pad(x, flat)
kernel_name = 'standalone__kv_cache_quant_pre_rope_vs_post_rope__prompt'

def setup_inputs():

    _w = lambda a: (lambda t: t.to(torch.bfloat16) if t.is_floating_point() else t)(torch.as_tensor(a))
    B, Sq, Skv = (1, 2048, 2048)
    H, Dh0 = (4, 128)
    G = 32 if 32 > 0 else Dh0
    G = max(2, G // 2 * 2)
    Dh = max(G, Dh0 // G * G)
    Skv = max(Skv, Sq)
    ng = Dh // G
    bits = 8 if 8 > 1 else 4
    bits = max(2, min(8, bits))
    qmax = (1 << bits) - 1
    half = Dh // 2
    inv = 1.0 / 10000.0 ** (torch.arange(half) / max(1, half))
    ang_k = torch.arange(Skv)[:, None] * inv[None, :]
    ang_q = torch.arange(Skv - Sq, Skv)[:, None] * inv[None, :]
    kc = torch.cat([torch.cos(ang_k), torch.cos(ang_k)], dim=-1)
    ks = torch.cat([torch.sin(ang_k), torch.sin(ang_k)], dim=-1)
    qc = torch.cat([torch.cos(ang_q), torch.cos(ang_q)], dim=-1)
    qs = torch.cat([torch.sin(ang_q), torch.sin(ang_q)], dim=-1)
    qk_i = torch.randint(0, qmax + 1, (B, H, Skv, Dh)).to(torch.int32)
    qv_i = torch.randint(0, qmax + 1, (B, H, Skv, Dh)).to(torch.int32)
    ksc = torch.abs((lambda *s: torch.randn(*s, dtype=torch.bfloat16) * 0.05)(B, H, Skv, ng)) * 0.1 + 0.01
    kzp = torch.full((B, H, Skv, ng), qmax / 2.0)
    vsc = torch.abs((lambda *s: torch.randn(*s, dtype=torch.bfloat16) * 0.05)(B, H, Skv, ng)) * 0.1 + 0.01
    vzp = torch.full((B, H, Skv, ng), qmax / 2.0)
    return {'q': _w((lambda *s: torch.randn(*s, dtype=torch.bfloat16) * 0.8)(B, H, Sq, Dh) * 0.5), 'qk': _w(qk_i), 'k_scales': _w(ksc), 'k_zeros': _w(kzp), 'qv': _w(qv_i), 'v_scales': _w(vsc), 'v_zeros': _w(vzp), 'q_cos': _w(qc), 'q_sin': _w(qs), 'k_cos': _w(kc), 'k_sin': _w(ks)}

def reference(q, qk, k_scales, k_zeros, qv, v_scales, v_zeros, q_cos, q_sin, k_cos, k_sin):
    B, H, Sq, Dh = q.shape
    ng = k_scales.shape[-1]
    G = Dh // ng
    half = Dh // 2
    ks = (lambda x, n, axis: torch.repeat_interleave(x, n, dim=axis))(k_scales, G, axis=-1)
    kz = (lambda x, n, axis: torch.repeat_interleave(x, n, dim=axis))(k_zeros, G, axis=-1)
    k = ((lambda x, dt: x.to(dt))(qk, q.dtype) - kz) * ks
    vs = (lambda x, n, axis: torch.repeat_interleave(x, n, dim=axis))(v_scales, G, axis=-1)
    vz = (lambda x, n, axis: torch.repeat_interleave(x, n, dim=axis))(v_zeros, G, axis=-1)
    v = ((lambda x, dt: x.to(dt))(qv, q.dtype) - vz) * vs
    k1 = k[..., :half].clone()
    k2 = k[..., half:].clone()
    krh = torch.concatenate([-k2, k1], axis=-1)
    kr = k * k_cos[None, None, :, :] + krh * k_sin[None, None, :, :]
    q1 = q[..., :half].clone()
    q2 = q[..., half:].clone()
    qrh = torch.concatenate([-q2, q1], axis=-1)
    qr = q * q_cos[None, None, :, :] + qrh * q_sin[None, None, :, :]
    logits = torch.einsum('bhqd,bhkd->bhqk', qr, kr) * float(Dh) ** (-0.5)
    attn = _softmax(logits, axis=-1)
    out = torch.einsum('bhqk,bhkd->bhqd', attn, v)
    return out
```

```python
import re

class Asm:
    def __init__(self):
        self.lines = []
    def __call__(self, s, *more):
        for x in (s,) + more:
            for l in x.split("\n"):
                self.lines.append(l)
    def label(self, n): self.lines.append(n + ":")
    def c(self, s): self.lines.append("    ; " + s)
    def text(self): return "\n".join(self.lines) + "\n"

def vr(i, n=1): return f"v{i}" if n == 1 else f"v[{i}:{i+n-1}]"
def ar(i, n=1): return f"a{i}" if n == 1 else f"a[{i}:{i+n-1}]"
def sr(i, n=1): return f"s{i}" if n == 1 else f"s[{i}:{i+n-1}]"

_reg = re.compile(r"^-?(?:abs\()?\|?([vas])(?:(\d+)|\[(\d+):(\d+)\])\|?\)?$")
def regs_of(op):
    op = op.strip()
    if op in ("vcc", "exec", "m0", "scc"):
        return {op}
    if op in ("vcc_lo","vcc_hi"): return {"vcc"}
    m = _reg.match(op)
    if not m: return set()
    k = m.group(1)
    if m.group(2) is not None: return {k + m.group(2)}
    return {k + str(i) for i in range(int(m.group(3)), int(m.group(4)) + 1)}

TRANS = ("v_exp_f32", "v_log_f32", "v_rcp_f32", "v_rsq_f32", "v_sqrt_f32", "v_sin_f32", "v_cos_f32")
def parse(line):
    l = line.split(";")[0].strip()
    if not l or l.endswith(":") or l.startswith("."): return None
    parts = l.split(None, 1)
    op = parts[0]
    rest = parts[1] if len(parts) > 1 else ""
    ops = [x.strip() for x in re.split(r",(?![^\[]*\])", rest)] if rest else []
    mods = ""
    if ops:
        last = ops[-1].split(None, 1)
        if len(last) > 1:
            ops[-1] = last[0]; mods = last[1]
    d = dict(op=op, ops=ops, mods=mods, w=set(), r=set(), kind="other", text=l)
    R = lambda i: regs_of(ops[i]) if i < len(ops) else set()
    base = op.replace("_e32", "").replace("_e64", "").replace("_dpp","").replace("_sdwa","")
    d["base"] = base
    if op.startswith("v_mfma"):
        d["kind"] = "mfma"; d["w"] = R(0); d["r"] = R(1) | R(2) | R(3)
        d["A"], d["B"], d["C"], d["D"] = R(1), R(2), R(3), R(0)
        d["passes"] = 8 if "32x32" in op else 4
    elif op.startswith("v_"):
        d["kind"] = "valu"
        if base.startswith("v_cmp"):
            d["w"] = R(0); d["r"] = R(1) | R(2)
        elif base.startswith("v_permlane") and "swap" in base:
            d["w"] = R(0) | R(1); d["r"] = R(0) | R(1); d["perm"] = True
        elif base in ("v_readfirstlane_b32", "v_readlane_b32"):
            d["w"] = R(0); d["r"] = R(1) | R(2); d["rdlane"] = True
        elif base in ("v_add_co_u32", "v_addc_co_u32", "v_sub_co_u32"):
            d["w"] = R(0) | R(1); d["r"] = set().union(*[R(i) for i in range(2, len(ops))])
        else:
            d["w"] = R(0); d["r"] = set().union(*[R(i) for i in range(1, len(ops))]) if len(ops) > 1 else set()
            if base in ("v_fmac_f32", "v_pk_fmac_f16", "v_dot2c_f32_bf16"): d["r"] |= R(0)
            if base == "v_cndmask_b32" and len(ops) == 3: d["r"] |= {"vcc"}
            if "dpp" in op or "quad_perm" in mods or "row_" in mods: d["dpp"] = True
        d["trans"] = base in TRANS
        d["r"] |= {"exec"}
    elif op.startswith("buffer_") or op.startswith("global_"):
        d["kind"] = "vmem"
        islds = re.search(r"\blds\b", mods) is not None
        if op.startswith("buffer_load"):
            if islds: d["r"] = R(0) | R(1) | R(2); d["ldsdma"] = True; d["r"] |= {"m0"}
            else: d["w"] = R(0); d["r"] = R(1) | R(2) | R(3)
        elif op.startswith("buffer_store"):
            d["r"] = R(0) | R(1) | R(2) | R(3); d["sdata"] = R(0)
        elif op.startswith("global_load"):
            d["w"] = R(0); d["r"] = R(1) | R(2)
        elif op.startswith("global_store"):
            d["r"] = R(0) | R(1) | R(2); d["sdata"] = R(1)
        elif op.startswith("buffer_atomic") or op.startswith("global_atomic"):
            d["r"] = set().union(*[R(i) for i in range(len(ops))])
            if "sc0" in mods: d["w"] = R(0)
        elif op in ("buffer_inv", "buffer_wbl2"):
            pass
        else: raise ValueError("unparsed vmem " + l)
        d["r"] |= {"exec"}
    elif op.startswith("ds_"):
        d["kind"] = "ds"
        if op.startswith("ds_read") or op.startswith("ds_bpermute") or op.startswith("ds_swizzle") or op.startswith("ds_permute"):
            d["w"] = R(0); d["r"] = set().union(*[R(i) for i in range(1, len(ops))])
        else:
            d["r"] = set().union(*[R(i) for i in range(len(ops))])
        d["r"] |= {"exec"}
    elif op.startswith("s_"):
        d["kind"] = "salu"
        if op == "s_waitcnt": d["kind"] = "wait"
        elif op == "s_nop": d["kind"] = "nop"; d["n"] = int(ops[0], 0) + 1
        elif op.startswith("s_load") or op.startswith("s_memtime") or op.startswith("s_memrealtime") or op.startswith("s_buffer_load"):
            d["kind"] = "smem"; d["w"] = R(0); d["r"] = R(1)
        elif op.startswith("s_cmp") or op.startswith("s_bitcmp"):
            d["w"] = {"scc"}; d["r"] = R(0) | R(1)
        elif op.startswith("s_cbranch") or op in ("s_branch", "s_barrier", "s_endpgm", "s_setprio", "s_sleep"):
            d["kind"] = "ctl"
            if "scc" in op: d["r"] = {"scc"}
            if "vcc" in op: d["r"] = {"vcc"}
            if "exec" in op: d["r"] = {"exec"}
        elif "saveexec" in op:
            d["w"] = R(0) | {"exec", "scc"}; d["r"] = R(1) | {"exec"}
        elif op.startswith("s_cselect"):
            d["w"] = R(0); d["r"] = R(1) | R(2) | {"scc"}
        else:
            d["w"] = R(0) | ({"scc"} if not op.startswith("s_mov") else set()); d["r"] = set().union(*[R(i) for i in range(1, len(ops))]) if len(ops) > 1 else set()
            if op in ("s_addc_u32","s_subb_u32"): d["r"] |= {"scc"}
            if op.startswith("s_addk") or op.startswith("s_mulk"): d["r"] |= R(0)
    else:
        raise ValueError("unparsed " + l)
    return d

def check(lines, name="", verbose=True):
    errs = []
    ins = [(i, parse(l)) for i, l in enumerate(lines)]
    ins = [(i, d) for i, d in ins if d]
    t = 0
    hist = []
    vmq = []
    lgq = []
    def err(i, msg): errs.append(f"{name} line {i}: {lines[i].strip()}  :: {msg}")
    for i, d in ins:
        k = d["kind"]
        touched = d["r"] | d["w"]
        if k == "wait":
            txt = d["text"]
            m = re.search(r"vmcnt\((\d+)\)", txt)
            if m:
                n = int(m.group(1))
                while len(vmq) > n: vmq.pop(0)
            m = re.search(r"lgkmcnt\((\d+)\)", txt)
            if m:
                n = int(m.group(1))
                if n > 0 and any(q[1] == "smem" for q in lgq):
                    err(i, "counted lgkmcnt with smem outstanding")
                while len(lgq) > n: lgq.pop(0)
        else:
            for q in vmq:
                if q[0] & touched: err(i, f"touches pending vmem dest {sorted(q[0] & touched)} of [{q[1]}]")
            for q in lgq:
                if q[0] & touched: err(i, f"touches pending lgkm dest {sorted(q[0] & touched)} of [{q[2]}]")
        for (tp, p) in reversed(hist):
            dist = t - tp - 1
            if dist > 24: break
            pk = p["kind"]
            if pk == "mfma":
                need = {8: 12, 4: 8}[p["passes"]]
                ovl = {8: 10, 4: 6}[p["passes"]]
                war = {8: 7, 4: 3}[p["passes"]]
                if k == "mfma":
                    if p["D"] & (d["A"] | d["B"]) and dist < need: err(i, f"mfma D->A/B dist {dist}<{need}")
                    if p["D"] & d["C"] and not (p["D"] == d["C"] and p["passes"] == d["passes"]) and dist < ovl: err(i, f"mfma D->C partial dist {dist}")
                    if p["D"] & d["D"] and not (p["D"] == d["D"] and (d["C"] == p["D"])) and dist < need and not (p["D"]==d["D"]):
                        err(i, f"mfma WAW partial {dist}")
                    if p["D"] == d["D"] and d["C"] != p["D"] and dist < need:
                        err(i, f"mfma WAW same D (C not D) dist {dist}<{need} (be conservative)")
                elif k in ("valu", "vmem", "ds"):
                    if p["D"] & touched and dist < need: err(i, f"mfma D->{k} dist {dist}<{need}")
                    if k == "valu" and p["C"] & d["w"] and dist < war: err(i, f"mfma C WAR dist {dist}<{war}")
            if pk == "valu":
                pw = p["w"]
                vw = {x for x in pw if x[0] in "va" and x not in ("vcc",)}
                sw = {x for x in pw if x[0] == "s" or x == "vcc"}
                if k == "mfma" and vw & d["r"] and dist < 2: err(i, f"valu->mfma dist {dist}<2")
                if k == "valu":
                    if p.get("trans") and not d.get("trans") and vw & touched and dist < 1: err(i, "trans->valu dist<1")
                    if p.get("trans") and d.get("trans") and vw & d["r"] and dist < 1: err(i, "trans->trans RAW dist<1 (conservative)")
                    if d.get("perm") and vw & d["r"] and dist < 2: err(i, "valu->permlane dist<2")
                    if d.get("dpp") and vw & d["r"] and dist < 2: err(i, "valu->dpp dist<2")
                    if d.get("rdlane") and vw & d["r"] and dist < 1: err(i, "valu->readlane dist<1")
                    if sw & d["r"] and dist < 2: err(i, f"valu sgpr/vcc write -> valu read dist {dist}<2")
                if k == "vmem" and sw & d["r"] and dist < 5: err(i, f"valu sgpr -> vmem dist {dist}<5")
                if k in ("salu","ctl") and sw & d["r"] and dist < 1:
                    pass
                if "exec" in pw and k in ("valu","mfma") and dist < 5: err(i, "valu exec write")
            if pk == "salu":
                if "m0" in p["w"] and d.get("ldsdma") and dist < 1: err(i, "m0 -> ldsdma dist<1")
            if pk == "vmem" and p.get("sdata") and len(p["sdata"]) >= 3:
                if k == "valu" and p["sdata"] & d["w"] and dist < 2: err(i, "wide store data WAR valu dist<2")
                elif k in ("vmem","ds") and p["sdata"] & d["w"] and dist < 1: err(i, "wide store data WAR dist<1")
        if k == "vmem":
            if d["op"] not in ("buffer_inv", "buffer_wbl2") or True:
                vmq.append((set(d["w"]), d["text"]))
                if len(vmq) > 63: err(i, "more than 63 vmem outstanding")
        elif k == "ds":
            lgq.append((set(d["w"]), "ds", d["text"]))
        elif k == "smem":
            lgq.append((set(d["w"]), "smem", d["text"]))
            if "x2" in d["op"] or "x4" in d["op"] or "x8" in d["op"] or "x16" in d["op"] or "mem" in d["op"]: pass
        hist.append((t, d))
        if len(hist) > 64: hist.pop(0)
        t += d.get("n", 1) if k == "nop" else 1
    if verbose:
        print(f"[check {name}] {len(ins)} instrs, {len(errs)} problems")
        for e in errs[:40]: print("   ", e)
    return errs
```

```python
import sys, math, struct
from asmlib import Asm, vr, ar, sr, check

NAME = "standalone__kv_cache_quant_pre_rope_vs_post_rope__prompt"

WS_KV = 0
WS_Q  = 4 << 20
WS_X  = 6 << 20
WS_L  = 8 << 20
WS_SIZE = (8 << 20) + (256 << 10)

def f32bits(x): return struct.unpack("<I", struct.pack("<f", x))[0]
QSCALE = math.log2(math.e) / math.sqrt(128.0)

def srd(A, d, b, nbytes):
    A(f"s_mov_b32 s{d}, s{b}")
    A(f"s_and_b32 s{d+1}, s{b+1}, 0xffff")
    A(f"s_mov_b32 s{d+2}, {nbytes}")
    A(f"s_mov_b32 s{d+3}, 0x20000")

def gen_prep(A, opt):
    st = opt.get("prep_store_mod", "")
    A.label("prep_kernel")
    A("s_cmp_ge_u32 s2, 256")
    A("s_cbranch_scc1 P_END")
    A("s_load_dwordx2 s[40:41], s[0:1], 104")
    A("v_lshrrev_b32 v1, 6, v0")
    A("v_and_b32 v2, 63, v0")
    A("v_readfirstlane_b32 s3, v1")
    A("s_lshr_b32 s4, s2, 5")
    A("s_lshl_b32 s4, s4, 3")
    A("s_and_b32 s5, s2, 7")
    A("s_add_u32 s4, s4, s5")
    A("s_lshr_b32 s5, s2, 3")
    A("s_and_b32 s5, s5, 3")
    A("s_lshl_b32 s6, s5, 6")
    A("s_add_u32 s6, s6, s4")
    A("s_cmp_ge_u32 s3, 8")
    A("s_cbranch_scc1 P_V")
    A("s_cmp_ge_u32 s3, 4")
    A("s_cbranch_scc1 P_Q")

    def rope_role(isK):
        lab = "K" if isK else "Q"
        if isK:
            A("s_load_dwordx4 s[8:11], s[0:1], 8")
            A("s_load_dwordx2 s[12:13], s[0:1], 24")
            A("s_load_dwordx4 s[16:19], s[0:1], 72")
            A("s_mov_b32 s7, s3")
        else:
            A("s_load_dwordx2 s[8:9], s[0:1], 0")
            A("s_load_dwordx4 s[16:19], s[0:1], 56")
            A("s_sub_u32 s7, s3, 4")
        A("v_and_b32 v3, 15, v2")
        A("v_lshrrev_b32 v4, 4, v2")
        A("s_lshl_b32 s14, s7, 2")
        A("v_add_u32 v4, s14, v4")
        A("v_lshlrev_b32 v5, 8, v4")
        A("v_lshl_add_u32 v5, v3, 3, v5")
        A("s_lshl_b32 s15, s4, 13")
        A("s_add_u32 s20, s15, 4096")
        if isK:
            A("v_lshlrev_b32 v6, 9, v4")
            A("v_lshl_add_u32 v6, v3, 4, v6")
            A("s_lshl_b32 s21, s6, 14")
            A("s_add_u32 s22, s21, 8192")
            A("v_lshlrev_b32 v7, 3, v4")
            A("s_lshl_b32 s23, s6, 8")
            A("v_lshrrev_b32 v8, 3, v3")
            A("v_lshlrev_b32 v8, 4, v8")
            A("v_sub_u32 v8, 16, v8")
        else:
            A("s_lshl_b32 s21, s6, 13")
            A("s_add_u32 s22, s21, 4096")
        A("v_lshrrev_b32 v9, 1, v3")
        A("v_lshlrev_b32 v9, 10, v9")
        A("v_and_b32 v10, 1, v3")
        A("v_lshl_add_u32 v9, v10, 9, v9")
        A("v_lshl_add_u32 v9, v4, 4, v9")
        if isK:
            A("s_lshl_b32 s24, s6, 14")
        else:
            A("s_lshl_b32 s24, s6, 13")
            A(f"s_add_u32 s24, s24, {WS_Q}")
        A("v_lshlrev_b32 v11, 4, v2")
        A("s_lshl_b32 s25, s2, 13")
        A("s_lshl_b32 s26, s3, 10")
        A("s_add_u32 s25, s25, s26")
        A(f"s_add_u32 s25, s25, {WS_X}")
        for j in range(4): A(f"v_mov_b32 v{12+j}, -1")
        A("s_waitcnt lgkmcnt(0)")
        if isK:
            srd(A, 28, 8, 4 << 20); srd(A, 48, 10, 65536); srd(A, 52, 12, 65536)
        else:
            srd(A, 28, 8, 2 << 20)
        srd(A, 32, 16, 512 << 10); srd(A, 36, 18, 512 << 10); srd(A, 44, 40, WS_SIZE)
        for it in range(2):
            B = 20 + it * 40
            so_x = "s21" if it == 0 else "s22"
            so_t = "s15" if it == 0 else "s20"
            if isK:
                A(f"buffer_load_dwordx4 v[{B}:{B+3}], v6, s[28:31], {so_x} offen")
                A(f"buffer_load_dwordx4 v[{B+4}:{B+7}], v6, s[28:31], {so_x} offen offset:256")
            else:
                A(f"buffer_load_dwordx2 v[{B}:{B+1}], v5, s[28:31], {so_x} offen")
                A(f"buffer_load_dwordx2 v[{B+4}:{B+5}], v5, s[28:31], {so_x} offen offset:128")
            A(f"buffer_load_dwordx2 v[{B+8}:{B+9}], v5, s[32:35], {so_t} offen")
            A(f"buffer_load_dwordx2 v[{B+10}:{B+11}], v5, s[32:35], {so_t} offen offset:128")
            A(f"buffer_load_dwordx2 v[{B+12}:{B+13}], v5, s[36:39], {so_t} offen")
            A(f"buffer_load_dwordx2 v[{B+14}:{B+15}], v5, s[36:39], {so_t} offen offset:128")
            if isK:
                A(f"buffer_load_dwordx2 v[{B+16}:{B+17}], v7, s[48:51], s23 offen offset:{it*128}")
                A(f"buffer_load_dwordx2 v[{B+18}:{B+19}], v7, s[52:55], s23 offen offset:{it*128}")
        nper = 8 if isK else 6
        A(f"buffer_store_dwordx4 v[12:15], v11, s[44:47], s25 offen {st}")
        if not isK: A(f"s_mov_b32 s27, 0x{f32bits(QSCALE):08x}")
        for it in range(2):
            B = 20 + it * 40
            T = B + 20
            A(f"s_waitcnt vmcnt({(1-it)*nper + 1})")
            if it == 1:
                A.lines.pop()
                A("s_waitcnt vmcnt(2)")
            if isK:
                for k, src in enumerate((B+16, B+17, B+18, B+19)):
                    A(f"v_lshlrev_b32 v{T+8+k}, v8, v{src}")
                for k in range(4):
                    A(f"v_and_b32 v{T+8+k}, 0xffff0000, v{T+8+k}")
                for j in range(8):
                    A(f"v_cvt_f32_i32 v{T+j}, v{B+j}")
                for j in range(8):
                    A(f"v_sub_f32 v{T+j}, v{T+j}, v{T+10+(j>>2)}")
                for j in range(8):
                    A(f"v_mul_f32 v{T+j}, v{T+j}, v{T+8+(j>>2)}")
            else:
                for hh in range(2):
                    A(f"v_lshlrev_b32 v{T+4*hh+0}, 16, v{B+4*hh+0}")
                    A(f"v_and_b32 v{T+4*hh+1}, 0xffff0000, v{B+4*hh+0}")
                    A(f"v_lshlrev_b32 v{T+4*hh+2}, 16, v{B+4*hh+1}")
                    A(f"v_and_b32 v{T+4*hh+3}, 0xffff0000, v{B+4*hh+1}")
                for j in range(8):
                    A(f"v_mul_f32 v{T+j}, s27, v{T+j}")
            def unpack(dst, src):
                A(f"v_lshlrev_b32 v{dst}, 16, v{src}")
                A(f"v_and_b32 v{dst+1}, 0xffff0000, v{src}")
                A(f"v_lshlrev_b32 v{dst+2}, 16, v{src+1}")
                A(f"v_and_b32 v{dst+3}, 0xffff0000, v{src+1}")
            unpack(B+0, B+8); unpack(B+4, B+10); unpack(T+8, B+12); unpack(T+12, B+14)
            for j in range(4):
                A(f"v_mul_f32 v{T+8+j}, v{T+4+j}, v{T+8+j}")
                A(f"v_mul_f32 v{T+12+j}, v{T+j}, v{T+12+j}")
            for j in range(4):
                A(f"v_fma_f32 v{T+8+j}, v{T+j}, v{B+j}, -v{T+8+j}")
                A(f"v_fma_f32 v{T+12+j}, v{T+4+j}, v{B+4+j}, v{T+12+j}")
            O = T + 16
            A(f"v_cvt_pk_bf16_f32 v{O}, v{T+8}, v{T+9}")
            A(f"v_cvt_pk_bf16_f32 v{O+1}, v{T+10}, v{T+11}")
            A(f"v_cvt_pk_bf16_f32 v{O+2}, v{T+12}, v{T+13}")
            A(f"v_cvt_pk_bf16_f32 v{O+3}, v{T+14}, v{T+15}")
            A(f"buffer_store_dwordx4 v[{O}:{O+3}], v9, s[44:47], s24 offen offset:{it*256} {st}")
        A("s_endpgm")

    rope_role(True)
    A.label("P_Q")
    rope_role(False)

    A.label("P_V")
    A("s_load_dwordx4 s[8:11], s[0:1], 32")
    A("s_load_dwordx2 s[12:13], s[0:1], 48")
    A("s_sub_u32 s7, s3, 8")
    A("s_and_b32 s14, s7, 1")
    A("s_lshr_b32 s15, s7, 1")
    A("v_and_b32 v3, 31, v2")
    A("v_lshrrev_b32 v4, 5, v2")
    A("v_bfe_u32 v5, v3, 2, 1")
    A("v_lshlrev_b32 v5, 4, v5")
    A("v_lshrrev_b32 v6, 3, v3")
    A("v_lshl_add_u32 v5, v6, 2, v5")
    A("v_and_b32 v6, 3, v3")
    A("v_add_u32 v5, v5, v6")
    A("s_lshl_b32 s16, s14, 4")
    A("v_lshlrev_b32 v6, 2, v4")
    A("v_add_u32 v6, s16, v6")
    A("s_lshl_b32 s17, s15, 8")
    A("v_lshlrev_b32 v7, 9, v6")
    A("v_lshl_add_u32 v7, v5, 2, v7")
    A("v_add_u32 v7, s17, v7")
    A("s_lshl_b32 s21, s6, 14")
    A("s_add_u32 s22, s21, 4096")
    A("s_lshl_b32 s17, s15, 2")
    A("v_lshlrev_b32 v8, 3, v6")
    A("v_add_u32 v8, s17, v8")
    A("s_lshl_b32 s23, s6, 8")
    A("v_lshlrev_b32 v9, 4, v2")
    A("s_lshl_b32 s24, s6, 14")
    A("s_lshl_b32 s17, s15, 12")
    A("s_add_u32 s24, s24, s17")
    A("s_lshl_b32 s17, s14, 10")
    A("s_add_u32 s24, s24, s17")
    A("s_add_u32 s24, s24, 8192")
    A("v_lshlrev_b32 v11, 2, v2")
    A("s_lshl_b32 s25, s2, 10")
    A("s_lshl_b32 s26, s7, 8")
    A("s_add_u32 s25, s25, s26")
    A(f"s_add_u32 s25, s25, {WS_L}")
    A("v_mov_b32 v12, -1")
    A("s_waitcnt lgkmcnt(0)")
    srd(A, 28, 8, 4 << 20); srd(A, 48, 10, 65536); srd(A, 52, 12, 65536); srd(A, 44, 40, WS_SIZE)
    for i in range(8):
        so = "s21" if i < 4 else "s22"
        for dbl in range(2):
            A(f"buffer_load_dword v{20+i*2+dbl}, v7, s[28:31], {so} offen offset:{(i&3)*512 + dbl*128}")
    for i in range(8):
        ro = (8*(i>>2) + (i&3)) * 8
        A(f"buffer_load_dword v{40+i}, v8, s[48:51], s23 offen offset:{ro}")
        A(f"buffer_load_dword v{48+i}, v8, s[52:55], s23 offen offset:{ro}")
    A(f"buffer_store_dword v12, v11, s[44:47], s25 offen {st}")
    A("s_waitcnt vmcnt(1)")
    for i in range(8):
        A(f"v_lshlrev_b32 v{56+i}, 16, v{40+i}")
        A(f"v_and_b32 v{64+i}, 0xffff0000, v{40+i}")
        A(f"v_lshlrev_b32 v{72+i}, 16, v{48+i}")
        A(f"v_and_b32 v{80+i}, 0xffff0000, v{48+i}")
    for i in range(8):
        for dbl in range(2):
            A(f"v_cvt_f32_i32 v{20+i*2+dbl}, v{20+i*2+dbl}")
    for i in range(8):
        for dbl in range(2):
            A(f"v_sub_f32 v{20+i*2+dbl}, v{20+i*2+dbl}, v{72+8*dbl+i}")
    for i in range(8):
        for dbl in range(2):
            A(f"v_mul_f32 v{20+i*2+dbl}, v{20+i*2+dbl}, v{56+8*dbl+i}")
    for dbl in range(2):
        O = 88 + 4*dbl
        for k in range(4):
            A(f"v_cvt_pk_bf16_f32 v{O+k}, v{20+(2*k)*2+dbl}, v{20+(2*k+1)*2+dbl}")
        A(f"buffer_store_dwordx4 v[{O}:{O+3}], v9, s[44:47], s24 offen offset:{dbl*2048} {st}")
    A.label("P_END")
    A("s_endpgm")

def kd(A, name, vgpr, sgpr, accum):
    A(f".amdhsa_kernel {name}")
    A(f"  .amdhsa_next_free_vgpr {vgpr}")
    A(f"  .amdhsa_next_free_sgpr {sgpr}")
    A(f"  .amdhsa_accum_offset {accum}")
    A("  .amdhsa_group_segment_fixed_size 0")
    A("  .amdhsa_kernarg_size 112")
    A("  .amdhsa_user_sgpr_count 2")
    A("  .amdhsa_user_sgpr_kernarg_segment_ptr 1")
    A("  .amdhsa_system_sgpr_workgroup_id_x 1")
    A(".end_amdhsa_kernel")

LDS_Q = 0
RED_A = 16384
RED_BOFF = 49152
LRED = 114688
LDS_BYTES = 116736

V_LANE16 = 1
V_OFFV = 2
V_LA, V_LB = 6, 7
V_S = 16
V_P = 80
V_O0 = 112
V_RING = 144
A_O = 0
A_Q = 96
A_RING = 160
NVGPR_ARCH = 176

def Sreg(par, X): return V_S + (par * 2 + X) * 16
def Preg(par, X): return V_P + (par * 2 + X) * 8
def Oreg(X, j):
    if j == 0: return vr(V_O0 + 16 * X, 16)
    return ar(A_O + X * 48 + (j - 1) * 16, 16)
def Qreg(X, ks): return ar(A_Q + (X * 8 + ks) * 4, 4)
def ring(p):
    s = p % 32
    return ar(A_RING + s * 4, 4) if s < 24 else vr(V_RING + (s - 24) * 4, 4)

def stream():
    seq = [("K", 0, i) for i in range(8)]
    for t in range(7):
        seq += [("K", t + 1, i) for i in range(8)]
        seq += [("V", t, i) for i in range(8)]
    seq += [("V", 7, i) for i in range(8)]
    return seq

def emit_ring_load(A, seq, p):
    kind, t, i = seq[p]
    dst = ring(p)
    if kind == "K":
        so = f"s{32 + 2 * t + (i >> 2)}"
        A(f"buffer_load_dwordx4 {dst}, v{V_LANE16}, s[4:7], {so} offen offset:{(i & 3) * 1024}")
    else:
        j, ks = i & 3, i >> 2
        so = f"s{32 + 2 * t}"
        A(f"buffer_load_dwordx4 {dst}, v{V_OFFV + j}, s[4:7], {so} offen offset:{ks * 1024}")

def gen_attn(A, opt):
    A.label("attn_kernel")
    A("s_cmp_ge_u32 s2, 256")
    A("s_cbranch_scc1 A_END")
    A("s_load_dwordx2 s[20:21], s[0:1], 104")
    A("s_load_dwordx2 s[22:23], s[0:1], 88")
    A("v_lshrrev_b32 v8, 6, v0")
    A("v_and_b32 v0, 63, v0")
    A("v_readfirstlane_b32 s12, v8")
    A(f"v_lshlrev_b32 v{V_LANE16}, 4, v0")
    A("s_and_b32 s13, s2, 7")
    A("s_lshr_b32 s14, s13, 1")
    A("s_and_b32 s15, s13, 1")
    A("s_lshr_b32 s16, s2, 3")
    A("s_lshl_b32 s17, s14, 6")
    A("s_lshl_b32 s18, s15, 5")
    A("s_add_u32 s17, s17, s18")
    A("s_lshl_b32 s18, s12, 3")
    A("s_add_u32 s17, s17, s18")
    A("s_lshl_b32 s32, s17, 14")
    A("s_add_u32 s33, s32, 4096")
    A("s_lshr_b32 s18, s12, 1")
    A("s_xor_b32 s18, s18, 1")
    A("s_xor_b32 s18, s18, s15")
    A("s_lshl_b32 s19, s16, 1")
    A("s_add_u32 s18, s18, s19")
    A("s_lshl_b32 s19, s14, 6")
    A("s_add_u32 s18, s18, s19")
    A("s_lshl_b32 s18, s18, 13")
    A("s_and_b32 s19, s12, 1")
    A("s_lshl_b32 s19, s19, 12")
    A("s_add_u32 s18, s18, s19")
    A(f"s_add_u32 s18, s18, {WS_Q}")
    A("s_lshl_b32 s19, s12, 12")
    A("s_mov_b32 m0, s19")
    for j in range(4):
        A(f"s_add_u32 s19, s12, {j}")
        A("s_and_b32 s19, s19, 3")
        A("s_lshl_b32 s19, s19, 11")
        A("s_add_u32 s19, s19, 8192")
        A(f"v_add_u32 v{V_OFFV + j}, s19, v{V_LANE16}")
    for t in range(1, 8):
        A(f"s_add_u32 s{32 + 2 * t}, s32, {t * 16384}")
        A(f"s_add_u32 s{33 + 2 * t}, s32, {t * 16384 + 4096}")
    A("s_waitcnt lgkmcnt(0)")
    srd(A, 4, 20, WS_SIZE)
    srd(A, 8, 22, 2 << 20)
    for i in range(4):
        A(f"buffer_load_dwordx4 v{V_LANE16}, s[4:7], s18 offen offset:{i * 1024} lds")
    seq = stream()
    for p in range(32):
        emit_ring_load(A, seq, p)
    A(f"v_mov_b32 v{V_LA}, 0")
    A(f"v_mov_b32 v{V_LB}, 0")
    A("s_waitcnt vmcnt(32)")
    A("s_barrier")
    def qread(ks):
        for X in range(2):
            A(f"ds_read_b128 {Qreg(X, ks)}, v{V_LANE16} offset:{(X * 8 + ks) * 1024}")
    for ks in range(4): qread(ks)

    NG = 256
    tasks = []
    for t in range(8):
        for half in range(2):
            for X in range(2):
                for j in range(8 * half, 8 * half + 8):
                    tasks.append((t, X, j))
    def avail(t, X):
        endph = 0 if t == 0 else 2 * t - 1
        return 16 * (endph + 1) + (opt.get("lag0", 4) if t == 0 else opt.get("lag", 2))
    def deadline(t, X, j):
        ph = 2 * t + 2 if t <= 6 else 15
        return 16 * ph + (8 if j >= 8 else 0) + X
    plan = [[] for _ in range(NG)]
    MARG = 3
    CAP = opt.get("cap", 2)
    LS = [0] * len(tasks)
    cnt = {}
    nxt = 10 ** 9
    for k in range(len(tasks) - 1, -1, -1):
        t, X, j = tasks[k]
        g = min(deadline(t, X, j) - MARG, nxt)
        while cnt.get(g, 0) >= CAP: g -= 1
        cnt[g] = cnt.get(g, 0) + 1
        LS[k] = g; nxt = g
    done = 0
    for g in range(NG):
        n = 0
        while done < len(tasks) and avail(tasks[done][0], tasks[done][1]) <= g and (n < 1 or LS[done] <= g):
            plan[g].append(tasks[done]); done += 1; n += 1
        if done < len(tasks): assert LS[done] > g, ("deadline miss", g, tasks[done], LS[done])
    assert done == len(tasks), done
    if opt.get("show_plan"):
        print("elements per gap:", "".join(str(len(x)) for x in plan), file=sys.stderr)

    pend_add = []
    pend_cvt = []
    mf = 0
    def fillers(g):
        nonlocal pend_add, pend_cvt
        out = []
        adds = pend_add; cvts = pend_cvt
        pend_add = []; pend_cvt = []
        exps = []
        for (t, X, j) in plan[g]:
            s = Sreg(t & 1, X) + j
            exps.append(f"v_exp_f32 v{s}, v{s}")
            pend_add.append((t, X, j))
            if j & 1: pend_cvt.append((t, X, j))
        rest = []
        for (t, X, j) in adds:
            s = Sreg(t & 1, X) + j
            l = V_LA + X
            rest.append(f"v_add_f32 v{l}, v{l}, v{s}")
        for (t, X, j) in cvts:
            s = Sreg(t & 1, X) + j
            rest.append(f"v_cvt_pk_bf16_f32 v{Preg(t & 1, X) + (j >> 1)}, v{s - 1}, v{s}")
        while exps or rest:
            if exps: out.append(exps.pop(0))
            if rest: out.append(rest.pop(0))
            if rest and not exps: out += rest; rest = []
        return out

    phases = [("QK", 0)]
    for t in range(7): phases += [("QK", t + 1), ("PV", t)]
    phases += [("PV", 7)]
    p = 0
    g = 0
    for (kind, t) in phases:
        A.c(f"---- phase {kind}({t})")
        for i in range(8):
            issued_after = min(127, p + 31) - p
            frag = ring(p)
            for X in range(2):
                pre = []
                if X == 0:
                    w = f"s_waitcnt vmcnt({issued_after})"
                    if kind == "QK" and t == 0:
                        nq = min(7, i + 3) - i
                        w += f" lgkmcnt({2 * nq})"
                    pre.append(w)
                for l in pre: A(l)
                if kind == "QK":
                    S = vr(Sreg(t & 1, X), 16)
                    C = "0" if i == 0 else S
                    A(f"v_mfma_f32_32x32x16_bf16 {S}, {frag}, {Qreg(X, i)}, {C}")
                else:
                    j, ks = i & 3, i >> 2
                    O = Oreg(X, j)
                    C = "0" if (t == 0 and ks == 0) else O
                    P = vr(Preg(t & 1, X) + 4 * ks, 4)
                    A(f"v_mfma_f32_32x32x16_bf16 {O}, {frag}, {P}, {C}")
                fl = fillers(g)
                if X == 1:
                    if p + 32 < 128:
                        tmp = Asm(); emit_ring_load(tmp, seq, p + 32)
                        fl.insert(min(1, len(fl)), tmp.lines[0])
                    if kind == "QK" and t == 0 and i + 4 <= 7:
                        tmp = []
                        for XX in range(2):
                            tmp.append(f"ds_read_b128 {Qreg(XX, i + 4)}, v{V_LANE16} offset:{(XX * 8 + i + 4) * 1024}")
                        fl += tmp
                for l in fl: A(l)
                g += 1
            p += 1
    assert not pend_cvt
    for (t, X, j) in pend_add:
        A(f"v_add_f32 v{V_LA + X}, v{V_LA + X}, v{Sreg(t & 1, X) + j}")
    gen_attn_epilogue(A, opt)

def gen_attn_epilogue(A, opt):
    A.c("==== epilogue")
    vWr = [None, 8, 9, 10]; vRd = 11; vLw = 12; vLr = 13; vX = 14
    for j in range(1, 4):
        A(f"s_add_u32 s19, s12, {j}")
        A("s_and_b32 s19, s19, 3")
        A("s_mul_i32 s19, s19, 12288")
        A(f"s_add_u32 s19, s19, {RED_A + (j - 1) * 4096}")
        A(f"v_add_u32 v{vWr[j]}, s19, v{V_LANE16}")
    A("s_mul_i32 s19, s12, 12288")
    A(f"s_add_u32 s19, s19, {RED_A}")
    A(f"v_add_u32 v{vRd}, s19, v{V_LANE16}")
    A("v_and_b32 v15, 31, v0")
    A(f"v_lshlrev_b32 v{vLr}, 5, v15")
    A(f"v_add_u32 v{vLr}, {LRED}, v{vLr}")
    A("v_lshrrev_b32 v15, 5, v0")
    A(f"v_lshl_add_u32 v{vLw}, v15, 2, v{vLr}")
    A("s_lshl_b32 s19, s12, 3")
    A(f"v_add_u32 v{vLw}, s19, v{vLw}")
    A(f"ds_write_b32 v{vLw}, v{V_LA}")
    A(f"ds_write_b32 v{vLw}, v{V_LB} offset:1024")
    A("s_lshl_b32 s24, s2, 13")
    A("s_lshl_b32 s19, s12, 11")
    A("s_add_u32 s24, s24, s19")
    A(f"s_add_u32 s24, s24, {WS_X}")
    A("s_xor_b32 s25, s24, 8192")
    A("s_lshl_b32 s26, s2, 10")
    A("s_lshl_b32 s19, s12, 8")
    A("s_add_u32 s26, s26, s19")
    A(f"s_add_u32 s26, s26, {WS_L}")
    A("s_xor_b32 s27, s26, 1024")
    A(f"v_lshlrev_b32 v{vX}, 2, v0")
    A("s_nop 3")
    def owrite(X):
        for j in range(1, 4):
            for qd in range(4):
                a = A_O + X * 48 + (j - 1) * 16 + qd * 4
                A(f"ds_write_b128 v{vWr[j]}, {ar(a, 4)} offset:{X * RED_BOFF + qd * 1024}")
    TA = V_S
    TL = 64
    def oread(X):
        for j in range(1, 4):
            for qd in range(4):
                A(f"ds_read_b128 {vr(TA + (j - 1) * 16 + qd * 4, 4)}, v{vRd} offset:{X * RED_BOFF + (j - 1) * 4096 + qd * 1024}")
    def lread(X):
        A(f"ds_read_b128 {vr(TL, 4)}, v{vLr} offset:{X * 1024}")
        A(f"ds_read_b128 {vr(TL + 4, 4)}, v{vLr} offset:{X * 1024 + 16}")
    def osum(X):
        O = V_O0 + 16 * X
        for j in range(3):
            for r in range(16):
                A(f"v_add_f32 v{O + r}, v{O + r}, v{TA + j * 16 + r}")
    def lsum(dst):
        A(f"v_add_f32 v{TL}, v{TL}, v{TL + 1}")
        A(f"v_add_f32 v{TL + 2}, v{TL + 2}, v{TL + 3}")
        A(f"v_add_f32 v{TL + 4}, v{TL + 4}, v{TL + 5}")
        A(f"v_add_f32 v{TL + 6}, v{TL + 6}, v{TL + 7}")
        A(f"v_add_f32 v{TL}, v{TL}, v{TL + 2}")
        A(f"v_add_f32 v{TL + 4}, v{TL + 4}, v{TL + 6}")
        A(f"v_add_f32 v{dst}, v{TL}, v{TL + 4}")
    owrite(0)
    A("s_waitcnt lgkmcnt(0)")
    A("s_barrier")
    lread(0); oread(0)
    A("s_waitcnt lgkmcnt(0)")
    owrite(1)
    lsum(V_LA)
    osum(0)
    PK = 72
    for k in range(8):
        A(f"v_cvt_pk_bf16_f32 v{PK + k}, v{V_O0 + 2 * k}, v{V_O0 + 2 * k + 1}")
    A(f"buffer_store_dwordx4 {vr(PK, 4)}, v{V_LANE16}, s[4:7], s24 offen sc1")
    A(f"buffer_store_dwordx4 {vr(PK + 4, 4)}, v{V_LANE16}, s[4:7], s24 offen offset:1024 sc1")
    A(f"buffer_store_dword v{V_LA}, v{vX}, s[4:7], s26 offen sc1")
    A("s_waitcnt lgkmcnt(0)")
    A("s_barrier")
    lread(1); oread(1)
    RX = 80
    A("s_mov_b32 s28, 0")
    A.label("A_POLL")
    A(f"buffer_load_dwordx4 {vr(RX, 4)}, v{V_LANE16}, s[4:7], s25 offen sc1")
    A(f"buffer_load_dwordx4 {vr(RX + 4, 4)}, v{V_LANE16}, s[4:7], s25 offen offset:1024 sc1")
    A(f"buffer_load_dword v{RX + 8}, v{vX}, s[4:7], s27 offen sc1")
    A("s_cmp_lg_u32 s28, 0")
    A("s_cbranch_scc1 A_POLLW")
    A("s_waitcnt lgkmcnt(0)")
    lsum(V_LB)
    osum(1)
    A.label("A_POLLW")
    A("s_waitcnt vmcnt(0)")
    A(f"v_max3_u32 v90, v{RX}, v{RX + 1}, v{RX + 2}")
    A(f"v_max3_u32 v91, v{RX + 3}, v{RX + 4}, v{RX + 5}")
    A(f"v_max3_u32 v92, v{RX + 6}, v{RX + 7}, v{RX + 8}")
    A("v_max3_u32 v90, v90, v91, v92")
    A("s_add_u32 s28, s28, 1")
    A("v_cmp_eq_u32 vcc, -1, v90")
    A(f"s_cmp_ge_u32 s28, {opt.get('maxpoll', 20000)}")
    A("s_cbranch_scc1 A_FALLBACK")
    A("s_cbranch_vccnz A_POLL")
    O = V_O0 + 16
    for k in range(8):
        A(f"v_lshlrev_b32 v{16 + 2 * k}, 16, v{RX + k}")
        A(f"v_and_b32 v{17 + 2 * k}, 0xffff0000, v{RX + k}")
    A(f"v_add_f32 v{V_LB}, v{V_LB}, v{RX + 8}")
    for r in range(16):
        A(f"v_add_f32 v{O + r}, v{O + r}, v{16 + r}")
    A(f"v_rcp_f32 v32, v{V_LB}")
    A("v_mov_b32 v33, 0")
    for r in range(16):
        A(f"v_fma_f32 v33, v{O + r}, 0, v33")
    A(f"s_mov_b32 s29, 0x{f32bits(2.0 ** -30):08x}")
    A(f"s_mov_b32 s30, 0x{f32bits(2.0 ** 30):08x}")
    A(f"v_cmp_le_f32 s[80:81], s29, v{V_LB}")
    A(f"v_cmp_ge_f32 s[82:83], s30, v{V_LB}")
    A("v_cmp_o_f32 vcc, v33, v33")
    A("s_and_b64 s[80:81], s[80:81], s[82:83]")
    A("s_nop 1")
    A("s_and_b64 s[80:81], s[80:81], vcc")
    A("s_cmp_eq_u64 s[80:81], exec")
    A("s_cbranch_scc0 A_FALLBACK")
    for r in range(16):
        A(f"v_mul_f32 v{O + r}, v{O + r}, v32")
    A.label("A_STORE")
    for k in range(8):
        A(f"v_cvt_pk_bf16_f32 v{PK + k}, v{O + 2 * k}, v{O + 2 * k + 1}")
    A("s_lshl_b32 s19, s14, 6")
    A("s_lshl_b32 s31, s16, 1")
    A("s_add_u32 s19, s19, s31")
    A("s_add_u32 s19, s19, s15")
    A("s_lshl_b32 s19, s19, 13")
    A("s_lshl_b32 s31, s12, 6")
    A("s_add_u32 s19, s19, s31")
    A("v_and_b32 v15, 31, v0")
    A("v_lshlrev_b32 v15, 8, v15")
    A("v_lshrrev_b32 v34, 5, v0")
    A("v_lshl_add_u32 v15, v34, 5, v15")
    A(f"buffer_store_dwordx4 {vr(PK, 4)}, v15, s[8:11], s19 offen")
    A(f"buffer_store_dwordx4 {vr(PK + 4, 4)}, v15, s[8:11], s19 offen offset:16")
    A.label("A_END")
    A("s_endpgm")
    gen_fallback(A, opt)

def gen_fallback(A, opt):
    A.label("A_FALLBACK")
    S = 16; P = 32; KF = 40; VF = 72
    O = V_O0 + 16
    M, L, T0, T1 = 96, 97, 98, 99
    A("s_lshl_b32 s40, s14, 20")
    A("s_mov_b32 s41, 0")
    A(f"v_mov_b32 v{M}, 0xff800000")
    A(f"v_mov_b32 v{L}, 0")
    for r in range(16): A(f"v_mov_b32 v{O + r}, 0")
    A.label("A_FB_LOOP")
    A("s_add_u32 s42, s40, 4096")
    for i in range(8):
        so = "s40" if i < 4 else "s42"
        A(f"buffer_load_dwordx4 {vr(KF + 4 * i, 4)}, v{V_LANE16}, s[4:7], {so} offen offset:{(i & 3) * 1024}")
    for ks in range(2):
        A(f"buffer_load_dwordx4 {vr(VF + 4 * ks, 4)}, v{V_OFFV}, s[4:7], s40 offen offset:{ks * 1024}")
    A("s_waitcnt vmcnt(0)")
    for i in range(8):
        C = "0" if i == 0 else vr(S, 16)
        A(f"v_mfma_f32_32x32x16_bf16 {vr(S, 16)}, {vr(KF + 4 * i, 4)}, {Qreg(1, i)}, {C}")
    A("s_nop 15")
    A(f"v_max3_f32 v{T0}, v{S}, v{S + 1}, v{S + 2}")
    for r in range(3, 15, 2):
        A(f"v_max3_f32 v{T0}, v{T0}, v{S + r}, v{S + r + 1}")
    A(f"v_max_f32 v{T0}, v{T0}, v{S + 15}")
    A(f"v_mov_b32 v{T1}, v{T0}")
    A("s_nop 1")
    A(f"v_permlane32_swap_b32 v{T0}, v{T1}")
    A("s_nop 1")
    A(f"v_max3_f32 v{T0}, v{T0}, v{T1}, v{M}")
    A(f"v_sub_f32 v{T1}, v{M}, v{T0}")
    A(f"v_exp_f32 v{T1}, v{T1}")
    A(f"v_mov_b32 v{M}, v{T0}")
    for r in range(16): A(f"v_sub_f32 v{S + r}, v{S + r}, v{T0}")
    for r in range(16): A(f"v_exp_f32 v{S + r}, v{S + r}")
    A(f"v_mul_f32 v{L}, v{L}, v{T1}")
    for r in range(16): A(f"v_mul_f32 v{O + r}, v{O + r}, v{T1}")
    for r in range(16): A(f"v_add_f32 v{L}, v{L}, v{S + r}")
    for k in range(8): A(f"v_cvt_pk_bf16_f32 v{P + k}, v{S + 2 * k}, v{S + 2 * k + 1}")
    A("s_nop 1")
    for ks in range(2):
        A(f"v_mfma_f32_32x32x16_bf16 {vr(O, 16)}, {vr(VF + 4 * ks, 4)}, {vr(P + 4 * ks, 4)}, {vr(O, 16)}")
    A("s_nop 15")
    A("s_add_u32 s40, s40, 16384")
    A("s_add_u32 s41, s41, 1")
    A("s_cmp_lt_u32 s41, 64")
    A("s_cbranch_scc1 A_FB_LOOP")
    A(f"v_mov_b32 v{T1}, v{L}")
    A("s_nop 1")
    A(f"v_permlane32_swap_b32 v{L}, v{T1}")
    A("s_nop 1")
    A(f"v_add_f32 v{L}, v{L}, v{T1}")
    A(f"v_rcp_f32 v{L}, v{L}")
    A("s_nop 0")
    for r in range(16): A(f"v_mul_f32 v{O + r}, v{O + r}, v{L}")
    A("s_branch A_STORE")

HEADER = open("cdna_kernels/" + NAME + ".s.ref").read().split("; Override launch geometry")[0]

def generate(opt=None):
    opt = opt or {}
    A = Asm()
    A(HEADER.rstrip("\n"))
    A("; @launch kernel=prep_kernel grid=(256,1,1) block=(768,1,1) lds=0")
    A(f"; @launch kernel=attn_kernel grid=(256,1,1) block=(256,1,1) lds={LDS_BYTES}")
    A('.amdgcn_target "amdgcn-amd-amdhsa--gfx950"')
    A(".text")
    A(".globl prep_kernel\n.p2align 8\n.type prep_kernel,@function")
    n0 = len(A.lines)
    gen_prep(A, opt)
    n1 = len(A.lines)
    A(".globl attn_kernel\n.p2align 8\n.type attn_kernel,@function")
    n2 = len(A.lines)
    gen_attn(A, opt)
    n3 = len(A.lines)
    A('.section .rodata,"a"\n.p2align 6')
    kd(A, "prep_kernel", 104, 64, 104)
    A(".p2align 6")
    kd(A, "attn_kernel", NVGPR_ARCH + 256, 96, NVGPR_ARCH)
    errs = []
    L = A.lines
    def seg(a, b, name):
        return check(L[a:b], name)
    iq = L.index("P_Q:"); iv = L.index("P_V:")
    errs += seg(n0, iq, "prepK"); errs += check(L[n0:n0+17] + L[iq:iv], "prepQ"); errs += check(L[n0:n0+17] + L[iv:n1], "prepV")
    ifb = L.index("A_FALLBACK:")
    errs += seg(n2, ifb, "attn"); errs += seg(ifb, n3, "fallback")
    return A.text(), errs

if __name__ == "__main__":
    opt = {}
    for a in sys.argv[2:]:
        k, v = a.split("=")
        try: v = int(v)
        except ValueError: pass
        opt[k] = v
    txt, errs = generate(opt)
    out = sys.argv[1] if len(sys.argv) > 1 else "cdna_kernels/" + NAME + ".s"
    open(out, "w").write(txt)
    print("wrote", out, len(txt), "bytes;", len(errs), "check problems")
```

```python
import sys, math, struct
from asmlib import Asm, vr, ar, sr, check

NAME = "standalone__kv_cache_quant_pre_rope_vs_post_rope__prompt"

WS_KV = 0
WS_Q  = 4 << 20
WS_X  = 6 << 20
WS_L  = 8 << 20
WS_SIZE = (8 << 20) + (256 << 10)

def f32bits(x): return struct.unpack("<I", struct.pack("<f", x))[0]
QSCALE = math.log2(math.e) / math.sqrt(128.0)

WS_STAMP = 12 << 20
def stamp(A, opt, idx, sreg):
    if opt.get("stamp"):
        A(f"{'s_memtime' if opt.get('stamp') == 2 else 's_memrealtime'} s[{sreg}:{sreg+1}]")

def stamp_flush(A, opt, kern, nst, sbase, wsptr, wavereg, nwaves, vt=(200,201)):
    if not opt.get("stamp"): return
    a, b = vt
    A("s_waitcnt lgkmcnt(0)")
    A(f"s_mul_i32 s98, s2, {nwaves}")
    A(f"s_add_u32 s98, s98, {wavereg}")
    A("s_lshl_b32 s98, s98, 6")
    A(f"s_add_u32 s98, s98, {WS_STAMP + kern * (1 << 20)}")
    A(f"v_mov_b32 v{a}, s98")
    A("s_mov_b64 s[96:97], exec")
    A("s_mov_b64 exec, 1")
    for i in range(nst):
        A(f"v_mov_b32 v{b}, s{sbase + 2 * i}")
        A(f"global_store_dword v{a}, v{b}, s[{wsptr}:{wsptr+1}] offset:{4 * i}")
    A("s_mov_b64 exec, s[96:97]")

def srd(A, d, b, nbytes):
    A(f"s_mov_b32 s{d}, s{b}")
    A(f"s_and_b32 s{d+1}, s{b+1}, 0xffff")
    A(f"s_mov_b32 s{d+2}, {nbytes}")
    A(f"s_mov_b32 s{d+3}, 0x20000")

def gen_prep(A, opt):
    st = opt.get("prep_store_mod", "")
    A.label("prep_kernel")
    stamp(A, opt, 0, 60)
    A("s_cmp_ge_u32 s2, 256")
    A("s_cbranch_scc1 P_END")
    A("s_load_dwordx2 s[40:41], s[0:1], 104")
    A("v_lshrrev_b32 v1, 6, v0")
    A("v_and_b32 v2, 63, v0")
    A("v_readfirstlane_b32 s3, v1")
    A("s_lshr_b32 s4, s2, 5")
    A("s_lshl_b32 s4, s4, 3")
    A("s_and_b32 s5, s2, 7")
    A("s_add_u32 s4, s4, s5")
    A("s_lshr_b32 s5, s2, 3")
    A("s_and_b32 s5, s5, 3")
    A("s_lshl_b32 s6, s5, 6")
    A("s_add_u32 s6, s6, s4")
    A("s_cmp_ge_u32 s3, 8")
    A("s_cbranch_scc1 P_V")
    A("s_cmp_ge_u32 s3, 4")
    A("s_cbranch_scc1 P_Q")

    def rope_role(isK):
        lab = "K" if isK else "Q"
        if isK:
            A("s_load_dwordx4 s[8:11], s[0:1], 8")
            A("s_load_dwordx2 s[12:13], s[0:1], 24")
            A("s_load_dwordx4 s[16:19], s[0:1], 72")
            A("s_mov_b32 s7, s3")
        else:
            A("s_load_dwordx2 s[8:9], s[0:1], 0")
            A("s_load_dwordx4 s[16:19], s[0:1], 56")
            A("s_sub_u32 s7, s3, 4")
        A("v_and_b32 v3, 15, v2")
        A("v_lshrrev_b32 v4, 4, v2")
        A("s_lshl_b32 s14, s7, 2")
        A("v_add_u32 v4, s14, v4")
        A("v_lshlrev_b32 v5, 8, v4")
        A("v_lshl_add_u32 v5, v3, 3, v5")
        A("s_lshl_b32 s15, s4, 13")
        A("s_add_u32 s20, s15, 4096")
        if isK:
            A("v_lshlrev_b32 v6, 9, v4")
            A("v_lshl_add_u32 v6, v3, 4, v6")
            A("s_lshl_b32 s21, s6, 14")
            A("s_add_u32 s22, s21, 8192")
            A("v_lshlrev_b32 v7, 3, v4")
            A("s_lshl_b32 s23, s6, 8")
            A("v_lshrrev_b32 v8, 3, v3")
            A("v_lshlrev_b32 v8, 4, v8")
            A("v_sub_u32 v8, 16, v8")
        else:
            A("s_lshl_b32 s21, s6, 13")
            A("s_add_u32 s22, s21, 4096")
        A("v_lshrrev_b32 v9, 1, v3")
        A("v_lshlrev_b32 v9, 10, v9")
        A("v_and_b32 v10, 1, v3")
        A("v_lshl_add_u32 v9, v10, 9, v9")
        A("v_lshl_add_u32 v9, v4, 4, v9")
        if isK:
            A("s_lshl_b32 s24, s6, 14")
        else:
            A("s_lshl_b32 s24, s6, 13")
            A(f"s_add_u32 s24, s24, {WS_Q}")
        A("v_lshlrev_b32 v11, 4, v2")
        A("s_lshl_b32 s25, s2, 13")
        A("s_lshl_b32 s26, s3, 10")
        A("s_add_u32 s25, s25, s26")
        A(f"s_add_u32 s25, s25, {WS_X}")
        for j in range(4): A(f"v_mov_b32 v{12+j}, -1")
        A("s_waitcnt lgkmcnt(0)")
        stamp(A, opt, 1, 62)
        if isK:
            srd(A, 28, 8, 4 << 20); srd(A, 48, 10, 65536); srd(A, 52, 12, 65536)
        else:
            srd(A, 28, 8, 2 << 20)
        srd(A, 32, 16, 512 << 10); srd(A, 36, 18, 512 << 10); srd(A, 44, 40, WS_SIZE)
        for it in range(2):
            B = 20 + it * 40
            so_x = "s21" if it == 0 else "s22"
            so_t = "s15" if it == 0 else "s20"
            if isK:
                A(f"buffer_load_dwordx4 v[{B}:{B+3}], v6, s[28:31], {so_x} offen")
                A(f"buffer_load_dwordx4 v[{B+4}:{B+7}], v6, s[28:31], {so_x} offen offset:256")
            else:
                A(f"buffer_load_dwordx2 v[{B}:{B+1}], v5, s[28:31], {so_x} offen")
                A(f"buffer_load_dwordx2 v[{B+4}:{B+5}], v5, s[28:31], {so_x} offen offset:128")
            A(f"buffer_load_dwordx2 v[{B+8}:{B+9}], v5, s[32:35], {so_t} offen")
            A(f"buffer_load_dwordx2 v[{B+10}:{B+11}], v5, s[32:35], {so_t} offen offset:128")
            A(f"buffer_load_dwordx2 v[{B+12}:{B+13}], v5, s[36:39], {so_t} offen")
            A(f"buffer_load_dwordx2 v[{B+14}:{B+15}], v5, s[36:39], {so_t} offen offset:128")
            if isK:
                A(f"buffer_load_dwordx2 v[{B+16}:{B+17}], v7, s[48:51], s23 offen offset:{it*128}")
                A(f"buffer_load_dwordx2 v[{B+18}:{B+19}], v7, s[52:55], s23 offen offset:{it*128}")
        nper = 8 if isK else 6
        A(f"buffer_store_dwordx4 v[12:15], v11, s[44:47], s25 offen {st}")
        if not isK: A(f"s_mov_b32 s27, 0x{f32bits(QSCALE):08x}")
        for it in range(2):
            B = 20 + it * 40
            T = B + 20
            A(f"s_waitcnt vmcnt({(1-it)*nper + 1})")
            if it == 1:
                A.lines.pop()
                A("s_waitcnt vmcnt(2)")
            if it == 0: stamp(A, opt, 2, 64)
            else: stamp(A, opt, 3, 66)
            if isK:
                for k, src in enumerate((B+16, B+17, B+18, B+19)):
                    A(f"v_lshlrev_b32 v{T+8+k}, v8, v{src}")
                for k in range(4):
                    A(f"v_and_b32 v{T+8+k}, 0xffff0000, v{T+8+k}")
                for j in range(8):
                    A(f"v_cvt_f32_i32 v{T+j}, v{B+j}")
                for j in range(8):
                    A(f"v_sub_f32 v{T+j}, v{T+j}, v{T+10+(j>>2)}")
                for j in range(8):
                    A(f"v_mul_f32 v{T+j}, v{T+j}, v{T+8+(j>>2)}")
            else:
                for hh in range(2):
                    A(f"v_lshlrev_b32 v{T+4*hh+0}, 16, v{B+4*hh+0}")
                    A(f"v_and_b32 v{T+4*hh+1}, 0xffff0000, v{B+4*hh+0}")
                    A(f"v_lshlrev_b32 v{T+4*hh+2}, 16, v{B+4*hh+1}")
                    A(f"v_and_b32 v{T+4*hh+3}, 0xffff0000, v{B+4*hh+1}")
                for j in range(8):
                    A(f"v_mul_f32 v{T+j}, s27, v{T+j}")
            def unpack(dst, src):
                A(f"v_lshlrev_b32 v{dst}, 16, v{src}")
                A(f"v_and_b32 v{dst+1}, 0xffff0000, v{src}")
                A(f"v_lshlrev_b32 v{dst+2}, 16, v{src+1}")
                A(f"v_and_b32 v{dst+3}, 0xffff0000, v{src+1}")
            unpack(B+0, B+8); unpack(B+4, B+10); unpack(T+8, B+12); unpack(T+12, B+14)
            for j in range(4):
                A(f"v_mul_f32 v{T+8+j}, v{T+4+j}, v{T+8+j}")
                A(f"v_mul_f32 v{T+12+j}, v{T+j}, v{T+12+j}")
            for j in range(4):
                A(f"v_fma_f32 v{T+8+j}, v{T+j}, v{B+j}, -v{T+8+j}")
                A(f"v_fma_f32 v{T+12+j}, v{T+4+j}, v{B+4+j}, v{T+12+j}")
            O = T + 16
            A(f"v_cvt_pk_bf16_f32 v{O}, v{T+8}, v{T+9}")
            A(f"v_cvt_pk_bf16_f32 v{O+1}, v{T+10}, v{T+11}")
            A(f"v_cvt_pk_bf16_f32 v{O+2}, v{T+12}, v{T+13}")
            A(f"v_cvt_pk_bf16_f32 v{O+3}, v{T+14}, v{T+15}")
            A(f"buffer_store_dwordx4 v[{O}:{O+3}], v9, s[44:47], s24 offen offset:{it*256} {st}")
        if opt.get("stamp"):
            stamp(A, opt, 4, 68)
            A("s_waitcnt vmcnt(0)")
            stamp(A, opt, 5, 70)
            stamp_flush(A, opt, 0, 6, 60, 40, "s3", 12, (100, 101))
        A("s_endpgm")

    rope_role(True)
    A.label("P_Q")
    rope_role(False)

    A.label("P_V")
    A("s_load_dwordx4 s[8:11], s[0:1], 32")
    A("s_load_dwordx2 s[12:13], s[0:1], 48")
    A("s_sub_u32 s7, s3, 8")
    A("s_and_b32 s14, s7, 1")
    A("s_lshr_b32 s15, s7, 1")
    A("v_and_b32 v3, 31, v2")
    A("v_lshrrev_b32 v4, 5, v2")
    A("v_bfe_u32 v5, v3, 2, 1")
    A("v_lshlrev_b32 v5, 4, v5")
    A("v_lshrrev_b32 v6, 3, v3")
    A("v_lshl_add_u32 v5, v6, 2, v5")
    A("v_and_b32 v6, 3, v3")
    A("v_add_u32 v5, v5, v6")
    A("s_lshl_b32 s16, s14, 4")
    A("v_lshlrev_b32 v6, 2, v4")
    A("v_add_u32 v6, s16, v6")
    A("s_lshl_b32 s17, s15, 8")
    A("v_lshlrev_b32 v7, 9, v6")
    A("v_lshl_add_u32 v7, v5, 2, v7")
    A("v_add_u32 v7, s17, v7")
    A("s_lshl_b32 s21, s6, 14")
    A("s_add_u32 s22, s21, 4096")
    A("s_lshl_b32 s17, s15, 2")
    A("v_lshlrev_b32 v8, 3, v6")
    A("v_add_u32 v8, s17, v8")
    A("s_lshl_b32 s23, s6, 8")
    A("v_lshlrev_b32 v9, 4, v2")
    A("s_lshl_b32 s24, s6, 14")
    A("s_lshl_b32 s17, s15, 12")
    A("s_add_u32 s24, s24, s17")
    A("s_lshl_b32 s17, s14, 10")
    A("s_add_u32 s24, s24, s17")
    A("s_add_u32 s24, s24, 8192")
    A("v_lshlrev_b32 v11, 2, v2")
    A("s_lshl_b32 s25, s2, 10")
    A("s_lshl_b32 s26, s7, 8")
    A("s_add_u32 s25, s25, s26")
    A(f"s_add_u32 s25, s25, {WS_L}")
    A("v_mov_b32 v12, -1")
    A("s_waitcnt lgkmcnt(0)")
    stamp(A, opt, 1, 62)
    srd(A, 28, 8, 4 << 20); srd(A, 48, 10, 65536); srd(A, 52, 12, 65536); srd(A, 44, 40, WS_SIZE)
    for i in range(8):
        so = "s21" if i < 4 else "s22"
        for dbl in range(2):
            A(f"buffer_load_dword v{20+i*2+dbl}, v7, s[28:31], {so} offen offset:{(i&3)*512 + dbl*128}")
    for i in range(8):
        ro = (8*(i>>2) + (i&3)) * 8
        A(f"buffer_load_dword v{40+i}, v8, s[48:51], s23 offen offset:{ro}")
        A(f"buffer_load_dword v{48+i}, v8, s[52:55], s23 offen offset:{ro}")
    A(f"buffer_store_dword v12, v11, s[44:47], s25 offen {st}")
    A("s_waitcnt vmcnt(1)")
    stamp(A, opt, 2, 64)
    stamp(A, opt, 3, 66)
    for i in range(8):
        A(f"v_lshlrev_b32 v{56+i}, 16, v{40+i}")
        A(f"v_and_b32 v{64+i}, 0xffff0000, v{40+i}")
        A(f"v_lshlrev_b32 v{72+i}, 16, v{48+i}")
        A(f"v_and_b32 v{80+i}, 0xffff0000, v{48+i}")
    for i in range(8):
        for dbl in range(2):
            A(f"v_cvt_f32_i32 v{20+i*2+dbl}, v{20+i*2+dbl}")
    for i in range(8):
        for dbl in range(2):
            A(f"v_sub_f32 v{20+i*2+dbl}, v{20+i*2+dbl}, v{72+8*dbl+i}")
    for i in range(8):
        for dbl in range(2):
            A(f"v_mul_f32 v{20+i*2+dbl}, v{20+i*2+dbl}, v{56+8*dbl+i}")
    for dbl in range(2):
        O = 88 + 4*dbl
        for k in range(4):
            A(f"v_cvt_pk_bf16_f32 v{O+k}, v{20+(2*k)*2+dbl}, v{20+(2*k+1)*2+dbl}")
        A(f"buffer_store_dwordx4 v[{O}:{O+3}], v9, s[44:47], s24 offen offset:{dbl*2048} {st}")
    if opt.get("stamp"):
        stamp(A, opt, 4, 68)
        A("s_waitcnt vmcnt(0)")
        stamp(A, opt, 5, 70)
        stamp_flush(A, opt, 0, 6, 60, 40, "s3", 12, (100, 101))
    A.label("P_END")
    A("s_endpgm")

def kd(A, name, vgpr, sgpr, accum):
    A(f".amdhsa_kernel {name}")
    A(f"  .amdhsa_next_free_vgpr {vgpr}")
    A(f"  .amdhsa_next_free_sgpr {sgpr}")
    A(f"  .amdhsa_accum_offset {accum}")
    A("  .amdhsa_group_segment_fixed_size 0")
    A("  .amdhsa_kernarg_size 112")
    A("  .amdhsa_user_sgpr_count 2")
    A("  .amdhsa_user_sgpr_kernarg_segment_ptr 1")
    A("  .amdhsa_system_sgpr_workgroup_id_x 1")
    A(".end_amdhsa_kernel")

LDS_Q = 0
RED_A = 16384
RED_BOFF = 49152
LRED = 114688
LDS_BYTES = 116736

V_LANE16 = 1
V_OFFV = 2
V_LA, V_LB = 6, 7
V_S = 16
V_P = 80
V_O0 = 112
V_RING = 144
A_O = 0
A_Q = 96
A_RING = 160
NVGPR_ARCH = 176

def Sreg(par, X): return V_S + (par * 2 + X) * 16
def Preg(par, X): return V_P + (par * 2 + X) * 8
def Oreg(X, j):
    if j == 0: return vr(V_O0 + 16 * X, 16)
    return ar(A_O + X * 48 + (j - 1) * 16, 16)
def Qreg(X, ks): return ar(A_Q + (X * 8 + ks) * 4, 4)
def ring(p):
    s = p % 32
    return ar(A_RING + s * 4, 4) if s < 24 else vr(V_RING + (s - 24) * 4, 4)

def stream():
    seq = [("K", 0, i) for i in range(8)]
    for t in range(7):
        seq += [("K", t + 1, i) for i in range(8)]
        seq += [("V", t, i) for i in range(8)]
    seq += [("V", 7, i) for i in range(8)]
    return seq

def emit_ring_load(A, seq, p):
    kind, t, i = seq[p]
    dst = ring(p)
    if kind == "K":
        so = f"s{32 + 2 * t + (i >> 2)}"
        A(f"buffer_load_dwordx4 {dst}, v{V_LANE16}, s[4:7], {so} offen offset:{(i & 3) * 1024}")
    else:
        j, ks = i & 3, i >> 2
        so = f"s{32 + 2 * t}"
        A(f"buffer_load_dwordx4 {dst}, v{V_OFFV + j}, s[4:7], {so} offen offset:{ks * 1024}")

def gen_attn(A, opt):
    A.label("attn_kernel")
    stamp(A, opt, 0, 60)
    A("s_cmp_ge_u32 s2, 256")
    A("s_cbranch_scc1 A_END")
    A("s_load_dwordx2 s[20:21], s[0:1], 104")
    A("s_load_dwordx2 s[22:23], s[0:1], 88")
    A("v_lshrrev_b32 v8, 6, v0")
    A("v_and_b32 v0, 63, v0")
    A("v_readfirstlane_b32 s12, v8")
    A(f"v_lshlrev_b32 v{V_LANE16}, 4, v0")
    A("s_and_b32 s13, s2, 7")
    A("s_lshr_b32 s14, s13, 1")
    A("s_and_b32 s15, s13, 1")
    A("s_lshr_b32 s16, s2, 3")
    A("s_lshl_b32 s17, s14, 6")
    A("s_lshl_b32 s18, s15, 5")
    A("s_add_u32 s17, s17, s18")
    A("s_lshl_b32 s18, s12, 3")
    A("s_add_u32 s17, s17, s18")
    A("s_lshl_b32 s32, s17, 14")
    A("s_add_u32 s33, s32, 4096")
    A("s_lshr_b32 s18, s12, 1")
    A("s_xor_b32 s18, s18, 1")
    A("s_xor_b32 s18, s18, s15")
    A("s_lshl_b32 s19, s16, 1")
    A("s_add_u32 s18, s18, s19")
    A("s_lshl_b32 s19, s14, 6")
    A("s_add_u32 s18, s18, s19")
    A("s_lshl_b32 s18, s18, 13")
    A("s_and_b32 s19, s12, 1")
    A("s_lshl_b32 s19, s19, 12")
    A("s_add_u32 s18, s18, s19")
    A(f"s_add_u32 s18, s18, {WS_Q}")
    A("s_lshl_b32 s19, s12, 12")
    A("s_mov_b32 m0, s19")
    for j in range(4):
        A(f"s_add_u32 s19, s12, {j}")
        A("s_and_b32 s19, s19, 3")
        A("s_lshl_b32 s19, s19, 11")
        A("s_add_u32 s19, s19, 8192")
        A(f"v_add_u32 v{V_OFFV + j}, s19, v{V_LANE16}")
    for t in range(1, 8):
        A(f"s_add_u32 s{32 + 2 * t}, s32, {t * 16384}")
        A(f"s_add_u32 s{33 + 2 * t}, s32, {t * 16384 + 4096}")
    A("s_waitcnt lgkmcnt(0)")
    stamp(A, opt, 1, 62)
    srd(A, 4, 20, WS_SIZE)
    srd(A, 8, 22, 2 << 20)
    for i in range(4):
        A(f"buffer_load_dwordx4 v{V_LANE16}, s[4:7], s18 offen offset:{i * 1024} lds")
    seq = stream()
    for p in range(32):
        emit_ring_load(A, seq, p)
    A(f"v_mov_b32 v{V_LA}, 0")
    A(f"v_mov_b32 v{V_LB}, 0")
    A("s_waitcnt vmcnt(32)")
    A("s_barrier")
    if opt.get("stamp"):
        stamp(A, opt, 2, 64); A("s_waitcnt lgkmcnt(0)")
    def qread(ks):
        for X in range(2):
            A(f"ds_read_b128 {Qreg(X, ks)}, v{V_LANE16} offset:{(X * 8 + ks) * 1024}")
    for ks in range(4): qread(ks)

    NG = 256
    tasks = []
    for t in range(8):
        for half in range(2):
            for X in range(2):
                for j in range(8 * half, 8 * half + 8):
                    tasks.append((t, X, j))
    def avail(t, X):
        endph = 0 if t == 0 else 2 * t - 1
        return 16 * (endph + 1) + (opt.get("lag0", 4) if t == 0 else opt.get("lag", 2))
    def deadline(t, X, j):
        ph = 2 * t + 2 if t <= 6 else 15
        return 16 * ph + (8 if j >= 8 else 0) + X
    plan = [[] for _ in range(NG)]
    MARG = 3
    CAP = opt.get("cap", 2)
    LS = [0] * len(tasks)
    cnt = {}
    nxt = 10 ** 9
    for k in range(len(tasks) - 1, -1, -1):
        t, X, j = tasks[k]
        g = min(deadline(t, X, j) - MARG, nxt)
        while cnt.get(g, 0) >= CAP: g -= 1
        cnt[g] = cnt.get(g, 0) + 1
        LS[k] = g; nxt = g
    done = 0
    for g in range(NG):
        n = 0
        while done < len(tasks) and avail(tasks[done][0], tasks[done][1]) <= g and (n < 1 or LS[done] <= g):
            plan[g].append(tasks[done]); done += 1; n += 1
        if done < len(tasks): assert LS[done] > g, ("deadline miss", g, tasks[done], LS[done])
    assert done == len(tasks), done
    if opt.get("show_plan"):
        print("elements per gap:", "".join(str(len(x)) for x in plan), file=sys.stderr)

    pend_add = []
    pend_cvt = []
    mf = 0
    def fillers(g):
        nonlocal pend_add, pend_cvt
        out = []
        adds = pend_add; cvts = pend_cvt
        pend_add = []; pend_cvt = []
        exps = []
        for (t, X, j) in plan[g]:
            s = Sreg(t & 1, X) + j
            exps.append(f"v_exp_f32 v{s}, v{s}")
            pend_add.append((t, X, j))
            if j & 1: pend_cvt.append((t, X, j))
        rest = []
        for (t, X, j) in adds:
            s = Sreg(t & 1, X) + j
            l = V_LA + X
            rest.append(f"v_add_f32 v{l}, v{l}, v{s}")
        for (t, X, j) in cvts:
            s = Sreg(t & 1, X) + j
            rest.append(f"v_cvt_pk_bf16_f32 v{Preg(t & 1, X) + (j >> 1)}, v{s - 1}, v{s}")
        while exps or rest:
            if exps: out.append(exps.pop(0))
            if rest: out.append(rest.pop(0))
            if rest and not exps: out += rest; rest = []
        return out

    phases = [("QK", 0)]
    for t in range(7): phases += [("QK", t + 1), ("PV", t)]
    phases += [("PV", 7)]
    p = 0
    g = 0
    for (kind, t) in phases:
        A.c(f"---- phase {kind}({t})")
        for i in range(8):
            issued_after = min(127, p + 31) - p
            frag = ring(p)
            for X in range(2):
                pre = []
                if X == 0:
                    w = f"s_waitcnt vmcnt({issued_after})"
                    if kind == "QK" and t == 0:
                        nq = min(7, i + 3) - i
                        w += f" lgkmcnt({2 * nq})"
                    pre.append(w)
                for l in pre: A(l)
                if kind == "QK":
                    S = vr(Sreg(t & 1, X), 16)
                    C = "0" if i == 0 else S
                    A(f"v_mfma_f32_32x32x16_bf16 {S}, {frag}, {Qreg(X, i)}, {C}")
                else:
                    j, ks = i & 3, i >> 2
                    O = Oreg(X, j)
                    C = "0" if (t == 0 and ks == 0) else O
                    P = vr(Preg(t & 1, X) + 4 * ks, 4)
                    A(f"v_mfma_f32_32x32x16_bf16 {O}, {frag}, {P}, {C}")
                fl = fillers(g)
                if X == 1:
                    if p + 32 < 128:
                        tmp = Asm(); emit_ring_load(tmp, seq, p + 32)
                        fl.insert(min(1, len(fl)), tmp.lines[0])
                    if kind == "QK" and t == 0 and i + 4 <= 7:
                        tmp = []
                        for XX in range(2):
                            tmp.append(f"ds_read_b128 {Qreg(XX, i + 4)}, v{V_LANE16} offset:{(XX * 8 + i + 4) * 1024}")
                        fl += tmp
                for l in fl: A(l)
                g += 1
            p += 1
    assert not pend_cvt
    for (t, X, j) in pend_add:
        A(f"v_add_f32 v{V_LA + X}, v{V_LA + X}, v{Sreg(t & 1, X) + j}")
    gen_attn_epilogue(A, opt)

def gen_attn_epilogue(A, opt):
    A.c("==== epilogue")
    stamp(A, opt, 3, 66)
    vWr = [None, 8, 9, 10]; vRd = 11; vLw = 12; vLr = 13; vX = 14
    for j in range(1, 4):
        A(f"s_add_u32 s19, s12, {j}")
        A("s_and_b32 s19, s19, 3")
        A("s_mul_i32 s19, s19, 12288")
        A(f"s_add_u32 s19, s19, {RED_A + (j - 1) * 4096}")
        A(f"v_add_u32 v{vWr[j]}, s19, v{V_LANE16}")
    A("s_mul_i32 s19, s12, 12288")
    A(f"s_add_u32 s19, s19, {RED_A}")
    A(f"v_add_u32 v{vRd}, s19, v{V_LANE16}")
    A("v_and_b32 v15, 31, v0")
    A(f"v_lshlrev_b32 v{vLr}, 5, v15")
    A(f"v_add_u32 v{vLr}, {LRED}, v{vLr}")
    A("v_lshrrev_b32 v15, 5, v0")
    A(f"v_lshl_add_u32 v{vLw}, v15, 2, v{vLr}")
    A("s_lshl_b32 s19, s12, 3")
    A(f"v_add_u32 v{vLw}, s19, v{vLw}")
    A(f"ds_write_b32 v{vLw}, v{V_LA}")
    A(f"ds_write_b32 v{vLw}, v{V_LB} offset:1024")
    A("s_lshl_b32 s24, s2, 13")
    A("s_lshl_b32 s19, s12, 11")
    A("s_add_u32 s24, s24, s19")
    A(f"s_add_u32 s24, s24, {WS_X}")
    A("s_xor_b32 s25, s24, 8192")
    A("s_lshl_b32 s26, s2, 10")
    A("s_lshl_b32 s19, s12, 8")
    A("s_add_u32 s26, s26, s19")
    A(f"s_add_u32 s26, s26, {WS_L}")
    A("s_xor_b32 s27, s26, 1024")
    A(f"v_lshlrev_b32 v{vX}, 2, v0")
    A("s_nop 3")
    def owrite(X):
        for j in range(1, 4):
            for qd in range(4):
                a = A_O + X * 48 + (j - 1) * 16 + qd * 4
                A(f"ds_write_b128 v{vWr[j]}, {ar(a, 4)} offset:{X * RED_BOFF + qd * 1024}")
    TA = V_S
    TL = 64
    def oread(X):
        for j in range(1, 4):
            for qd in range(4):
                A(f"ds_read_b128 {vr(TA + (j - 1) * 16 + qd * 4, 4)}, v{vRd} offset:{X * RED_BOFF + (j - 1) * 4096 + qd * 1024}")
    def lread(X):
        A(f"ds_read_b128 {vr(TL, 4)}, v{vLr} offset:{X * 1024}")
        A(f"ds_read_b128 {vr(TL + 4, 4)}, v{vLr} offset:{X * 1024 + 16}")
    def osum(X):
        O = V_O0 + 16 * X
        for j in range(3):
            for r in range(16):
                A(f"v_add_f32 v{O + r}, v{O + r}, v{TA + j * 16 + r}")
    def lsum(dst):
        A(f"v_add_f32 v{TL}, v{TL}, v{TL + 1}")
        A(f"v_add_f32 v{TL + 2}, v{TL + 2}, v{TL + 3}")
        A(f"v_add_f32 v{TL + 4}, v{TL + 4}, v{TL + 5}")
        A(f"v_add_f32 v{TL + 6}, v{TL + 6}, v{TL + 7}")
        A(f"v_add_f32 v{TL}, v{TL}, v{TL + 2}")
        A(f"v_add_f32 v{TL + 4}, v{TL + 4}, v{TL + 6}")
        A(f"v_add_f32 v{dst}, v{TL}, v{TL + 4}")
    owrite(0)
    A("s_waitcnt lgkmcnt(0)")
    A("s_barrier")
    if opt.get("stamp"):
        stamp(A, opt, 4, 68); A("s_waitcnt lgkmcnt(0)")
    lread(0); oread(0)
    A("s_waitcnt lgkmcnt(0)")
    owrite(1)
    lsum(V_LA)
    osum(0)
    PK = 72
    for k in range(8):
        A(f"v_cvt_pk_bf16_f32 v{PK + k}, v{V_O0 + 2 * k}, v{V_O0 + 2 * k + 1}")
    A(f"buffer_store_dwordx4 {vr(PK, 4)}, v{V_LANE16}, s[4:7], s24 offen sc1")
    A(f"buffer_store_dwordx4 {vr(PK + 4, 4)}, v{V_LANE16}, s[4:7], s24 offen offset:1024 sc1")
    A(f"buffer_store_dword v{V_LA}, v{vX}, s[4:7], s26 offen sc1")
    A("s_waitcnt lgkmcnt(0)")
    if opt.get("stamp"):
        stamp(A, opt, 5, 70); A("s_waitcnt lgkmcnt(0)")
    A("s_barrier")
    lread(1); oread(1)
    RX = 80
    A("s_mov_b32 s28, 0")
    A.label("A_POLL")
    A(f"buffer_load_dwordx4 {vr(RX, 4)}, v{V_LANE16}, s[4:7], s25 offen sc1")
    A(f"buffer_load_dwordx4 {vr(RX + 4, 4)}, v{V_LANE16}, s[4:7], s25 offen offset:1024 sc1")
    A(f"buffer_load_dword v{RX + 8}, v{vX}, s[4:7], s27 offen sc1")
    A("s_cmp_lg_u32 s28, 0")
    A("s_cbranch_scc1 A_POLLW")
    A("s_waitcnt lgkmcnt(0)")
    lsum(V_LB)
    osum(1)
    A.label("A_POLLW")
    A("s_waitcnt vmcnt(0)")
    A(f"v_max3_u32 v90, v{RX}, v{RX + 1}, v{RX + 2}")
    A(f"v_max3_u32 v91, v{RX + 3}, v{RX + 4}, v{RX + 5}")
    A(f"v_max3_u32 v92, v{RX + 6}, v{RX + 7}, v{RX + 8}")
    A("v_max3_u32 v90, v90, v91, v92")
    A("s_add_u32 s28, s28, 1")
    A("v_cmp_eq_u32 vcc, -1, v90")
    A(f"s_cmp_ge_u32 s28, {opt.get('maxpoll', 20000)}")
    A("s_cbranch_scc1 A_FALLBACK")
    A("s_cbranch_vccnz A_POLL")
    stamp(A, opt, 6, 72)
    if opt.get("stamp"):
        A("s_mov_b32 s74, s28")
    O = V_O0 + 16
    for k in range(8):
        A(f"v_lshlrev_b32 v{16 + 2 * k}, 16, v{RX + k}")
        A(f"v_and_b32 v{17 + 2 * k}, 0xffff0000, v{RX + k}")
    A(f"v_add_f32 v{V_LB}, v{V_LB}, v{RX + 8}")
    for r in range(16):
        A(f"v_add_f32 v{O + r}, v{O + r}, v{16 + r}")
    A(f"v_rcp_f32 v32, v{V_LB}")
    A("v_mov_b32 v33, 0")
    for r in range(16):
        A(f"v_fma_f32 v33, v{O + r}, 0, v33")
    A(f"s_mov_b32 s29, 0x{f32bits(2.0 ** -30):08x}")
    A(f"s_mov_b32 s30, 0x{f32bits(2.0 ** 30):08x}")
    A(f"v_cmp_le_f32 s[80:81], s29, v{V_LB}")
    A(f"v_cmp_ge_f32 s[82:83], s30, v{V_LB}")
    A("v_cmp_o_f32 vcc, v33, v33")
    A("s_and_b64 s[80:81], s[80:81], s[82:83]")
    A("s_nop 1")
    A("s_and_b64 s[80:81], s[80:81], vcc")
    A("s_cmp_eq_u64 s[80:81], exec")
    A("s_cbranch_scc0 A_FALLBACK")
    for r in range(16):
        A(f"v_mul_f32 v{O + r}, v{O + r}, v32")
    A.label("A_STORE")
    for k in range(8):
        A(f"v_cvt_pk_bf16_f32 v{PK + k}, v{O + 2 * k}, v{O + 2 * k + 1}")
    A("s_lshl_b32 s19, s14, 6")
    A("s_lshl_b32 s31, s16, 1")
    A("s_add_u32 s19, s19, s31")
    A("s_add_u32 s19, s19, s15")
    A("s_lshl_b32 s19, s19, 13")
    A("s_lshl_b32 s31, s12, 6")
    A("s_add_u32 s19, s19, s31")
    A("v_and_b32 v15, 31, v0")
    A("v_lshlrev_b32 v15, 8, v15")
    A("v_lshrrev_b32 v34, 5, v0")
    A("v_lshl_add_u32 v15, v34, 5, v15")
    A(f"buffer_store_dwordx4 {vr(PK, 4)}, v15, s[8:11], s19 offen")
    A(f"buffer_store_dwordx4 {vr(PK + 4, 4)}, v15, s[8:11], s19 offen offset:16")
    if opt.get("stamp"):
        stamp(A, opt, 8, 76)
        A("s_waitcnt vmcnt(0)")
        stamp(A, opt, 9, 78)
        stamp_flush(A, opt, 1, 10, 60, 20, "s12", 4, (174, 175))
    A.label("A_END")
    A("s_endpgm")
    gen_fallback(A, opt)

def gen_fallback(A, opt):
    A.label("A_FALLBACK")
    S = 16; P = 32; KF = 40; VF = 72
    O = V_O0 + 16
    M, L, T0, T1 = 96, 97, 98, 99
    A("s_lshl_b32 s40, s14, 20")
    A("s_mov_b32 s41, 0")
    A(f"v_mov_b32 v{M}, 0xff800000")
    A(f"v_mov_b32 v{L}, 0")
    for r in range(16): A(f"v_mov_b32 v{O + r}, 0")
    A.label("A_FB_LOOP")
    A("s_add_u32 s42, s40, 4096")
    for i in range(8):
        so = "s40" if i < 4 else "s42"
        A(f"buffer_load_dwordx4 {vr(KF + 4 * i, 4)}, v{V_LANE16}, s[4:7], {so} offen offset:{(i & 3) * 1024}")
    for ks in range(2):
        A(f"buffer_load_dwordx4 {vr(VF + 4 * ks, 4)}, v{V_OFFV}, s[4:7], s40 offen offset:{ks * 1024}")
    A("s_waitcnt vmcnt(0)")
    for i in range(8):
        C = "0" if i == 0 else vr(S, 16)
        A(f"v_mfma_f32_32x32x16_bf16 {vr(S, 16)}, {vr(KF + 4 * i, 4)}, {Qreg(1, i)}, {C}")
    A("s_nop 15")
    A(f"v_max3_f32 v{T0}, v{S}, v{S + 1}, v{S + 2}")
    for r in range(3, 15, 2):
        A(f"v_max3_f32 v{T0}, v{T0}, v{S + r}, v{S + r + 1}")
    A(f"v_max_f32 v{T0}, v{T0}, v{S + 15}")
    A(f"v_mov_b32 v{T1}, v{T0}")
    A("s_nop 1")
    A(f"v_permlane32_swap_b32 v{T0}, v{T1}")
    A("s_nop 1")
    A(f"v_max3_f32 v{T0}, v{T0}, v{T1}, v{M}")
    A(f"v_sub_f32 v{T1}, v{M}, v{T0}")
    A(f"v_exp_f32 v{T1}, v{T1}")
    A(f"v_mov_b32 v{M}, v{T0}")
    for r in range(16): A(f"v_sub_f32 v{S + r}, v{S + r}, v{T0}")
    for r in range(16): A(f"v_exp_f32 v{S + r}, v{S + r}")
    A(f"v_mul_f32 v{L}, v{L}, v{T1}")
    for r in range(16): A(f"v_mul_f32 v{O + r}, v{O + r}, v{T1}")
    for r in range(16): A(f"v_add_f32 v{L}, v{L}, v{S + r}")
    for k in range(8): A(f"v_cvt_pk_bf16_f32 v{P + k}, v{S + 2 * k}, v{S + 2 * k + 1}")
    A("s_nop 1")
    for ks in range(2):
        A(f"v_mfma_f32_32x32x16_bf16 {vr(O, 16)}, {vr(VF + 4 * ks, 4)}, {vr(P + 4 * ks, 4)}, {vr(O, 16)}")
    A("s_nop 15")
    A("s_add_u32 s40, s40, 16384")
    A("s_add_u32 s41, s41, 1")
    A("s_cmp_lt_u32 s41, 64")
    A("s_cbranch_scc1 A_FB_LOOP")
    A(f"v_mov_b32 v{T1}, v{L}")
    A("s_nop 1")
    A(f"v_permlane32_swap_b32 v{L}, v{T1}")
    A("s_nop 1")
    A(f"v_add_f32 v{L}, v{L}, v{T1}")
    A(f"v_rcp_f32 v{L}, v{L}")
    A("s_nop 0")
    for r in range(16): A(f"v_mul_f32 v{O + r}, v{O + r}, v{L}")
    A("s_branch A_STORE")

HEADER = open("cdna_kernels/" + NAME + ".s.ref").read().split("; Override launch geometry")[0]

def generate(opt=None):
    opt = opt or {}
    A = Asm()
    A(HEADER.rstrip("\n"))
    if opt.get("empty_first"): A("; @launch kernel=empty_kernel grid=(256,1,1) block=(64,1,1) lds=0")
    A("; @launch kernel=prep_kernel grid=(256,1,1) block=(768,1,1) lds=0")
    if opt.get("empty_mid"): A("; @launch kernel=empty_kernel grid=(256,1,1) block=(64,1,1) lds=0")
    if opt.get("prep_twice"): A("; @launch kernel=prep_kernel grid=(256,1,1) block=(768,1,1) lds=0")
    A(f"; @launch kernel=attn_kernel grid=(256,1,1) block=(256,1,1) lds={LDS_BYTES}")
    if opt.get("attn_twice"):
        A("; @launch kernel=prep_kernel grid=(256,1,1) block=(768,1,1) lds=0")
        A(f"; @launch kernel=attn_kernel grid=(256,1,1) block=(256,1,1) lds={LDS_BYTES}")
    if opt.get("empty_last"): A("; @launch kernel=empty_kernel grid=(256,1,1) block=(64,1,1) lds=0")
    A('.amdgcn_target "amdgcn-amd-amdhsa--gfx950"')
    A(".text")
    A(".globl prep_kernel\n.p2align 8\n.type prep_kernel,@function")
    n0 = len(A.lines)
    gen_prep(A, opt)
    n1 = len(A.lines)
    A(".globl attn_kernel\n.p2align 8\n.type attn_kernel,@function")
    n2 = len(A.lines)
    gen_attn(A, opt)
    n3 = len(A.lines)
    has_empty = opt.get("empty_first") or opt.get("empty_last") or opt.get("empty_mid")
    if has_empty:
        A(".globl empty_kernel\n.p2align 8\n.type empty_kernel,@function\nempty_kernel:\ns_endpgm")
    A('.section .rodata,"a"\n.p2align 6')
    if has_empty:
        kd(A, "empty_kernel", 8, 16, 8)
        A(".p2align 6")
    kd(A, "prep_kernel", 104, 102 if opt.get("stamp") else 64, 104)
    A(".p2align 6")
    kd(A, "attn_kernel", NVGPR_ARCH + 256, 102 if opt.get("stamp") else 96, NVGPR_ARCH)
    errs = []
    L = A.lines
    def seg(a, b, name):
        return check(L[a:b], name)
    iq = L.index("P_Q:"); iv = L.index("P_V:")
    errs += seg(n0, iq, "prepK"); errs += check(L[n0:L.index("    s_cbranch_scc1 P_V") if False else n0+16] + L[iq:iv], "prepQ"); errs += check(L[n0:n0+16] + L[iv:n1], "prepV")
    ifb = L.index("A_FALLBACK:")
    errs += seg(n2, ifb, "attn"); errs += seg(ifb, n3, "fallback")
    return A.text(), errs

if __name__ == "__main__":
    opt = {}
    for a in sys.argv[2:]:
        k, v = a.split("=")
        try: v = int(v)
        except ValueError: pass
        opt[k] = v
    txt, errs = generate(opt)
    out = sys.argv[1] if len(sys.argv) > 1 else "cdna_kernels/" + NAME + ".s"
    open(out, "w").write(txt)
    print("wrote", out, len(txt), "bytes;", len(errs), "check problems")
```

```python
import sys, math, struct
from asmlib import Asm, vr, ar, sr, check

NAME = "standalone__kv_cache_quant_pre_rope_vs_post_rope__prompt"

WS_KV = 0
WS_Q  = 4 << 20
WS_X  = 6 << 20
WS_L  = 8 << 20
WS_SIZE = (8 << 20) + (256 << 10)

def f32bits(x): return struct.unpack("<I", struct.pack("<f", x))[0]
QSCALE = math.log2(math.e) / math.sqrt(128.0)

WS_STAMP = 12 << 20
def stamp(A, opt, idx, sreg):
    if opt.get("stamp"):
        A(f"{'s_memtime' if opt.get('stamp') == 2 else 's_memrealtime'} s[{sreg}:{sreg+1}]")

def stamp_flush(A, opt, kern, nst, sbase, wsptr, wavereg, nwaves, vt=(200,201)):
    if not opt.get("stamp"): return
    a, b = vt
    A("s_waitcnt lgkmcnt(0)")
    A(f"s_mul_i32 s98, s2, {nwaves}")
    A(f"s_add_u32 s98, s98, {wavereg}")
    A("s_lshl_b32 s98, s98, 6")
    A(f"s_add_u32 s98, s98, {WS_STAMP + kern * (1 << 20)}")
    A(f"v_mov_b32 v{a}, s98")
    A("s_mov_b64 s[96:97], exec")
    A("s_mov_b64 exec, 1")
    for i in range(nst):
        A(f"v_mov_b32 v{b}, s{sbase + 2 * i}")
        A(f"global_store_dword v{a}, v{b}, s[{wsptr}:{wsptr+1}] offset:{4 * i}")
    A("s_mov_b64 exec, s[96:97]")

def srd(A, d, b, nbytes):
    A(f"s_mov_b32 s{d}, s{b}")
    A(f"s_and_b32 s{d+1}, s{b+1}, 0xffff")
    A(f"s_mov_b32 s{d+2}, {nbytes}")
    A(f"s_mov_b32 s{d+3}, 0x20000")

def gen_prep(A, opt):
    st = opt.get("prep_store_mod", "")
    ld = opt.get("prep_load_mod", "")
    ldt = opt.get("prep_tab_mod", "")
    A.label("prep_kernel")
    stamp(A, opt, 0, 60)
    A("s_cmp_ge_u32 s2, 256")
    A("s_cbranch_scc1 P_END")
    A("s_load_dwordx2 s[40:41], s[0:1], 104")
    A("v_lshrrev_b32 v1, 6, v0")
    A("v_and_b32 v2, 63, v0")
    A("v_readfirstlane_b32 s3, v1")
    A("s_lshr_b32 s4, s2, 5")
    A("s_lshl_b32 s4, s4, 3")
    A("s_and_b32 s5, s2, 7")
    A("s_add_u32 s4, s4, s5")
    A("s_lshr_b32 s5, s2, 3")
    A("s_and_b32 s5, s5, 3")
    A("s_lshl_b32 s6, s5, 6")
    A("s_add_u32 s6, s6, s4")
    A("s_cmp_ge_u32 s3, 8")
    A("s_cbranch_scc1 P_V")
    A("s_cmp_ge_u32 s3, 4")
    A("s_cbranch_scc1 P_Q")

    def rope_role(isK):
        lab = "K" if isK else "Q"
        if isK:
            A("s_load_dwordx4 s[8:11], s[0:1], 8")
            A("s_load_dwordx2 s[12:13], s[0:1], 24")
            A("s_load_dwordx4 s[16:19], s[0:1], 72")
            A("s_mov_b32 s7, s3")
        else:
            A("s_load_dwordx2 s[8:9], s[0:1], 0")
            A("s_load_dwordx4 s[16:19], s[0:1], 56")
            A("s_sub_u32 s7, s3, 4")
        A("v_and_b32 v3, 15, v2")
        A("v_lshrrev_b32 v4, 4, v2")
        A("s_lshl_b32 s14, s7, 2")
        A("v_add_u32 v4, s14, v4")
        A("v_lshlrev_b32 v5, 8, v4")
        A("v_lshl_add_u32 v5, v3, 3, v5")
        A("s_lshl_b32 s15, s4, 13")
        A("s_add_u32 s20, s15, 4096")
        if isK:
            A("v_lshlrev_b32 v6, 9, v4")
            A("v_lshl_add_u32 v6, v3, 4, v6")
            A("s_lshl_b32 s21, s6, 14")
            A("s_add_u32 s22, s21, 8192")
            A("v_lshlrev_b32 v7, 3, v4")
            A("s_lshl_b32 s23, s6, 8")
            A("v_lshrrev_b32 v8, 3, v3")
            A("v_lshlrev_b32 v8, 4, v8")
            A("v_sub_u32 v8, 16, v8")
        else:
            A("s_lshl_b32 s21, s6, 13")
            A("s_add_u32 s22, s21, 4096")
        A("v_lshrrev_b32 v9, 1, v3")
        A("v_lshlrev_b32 v9, 10, v9")
        A("v_and_b32 v10, 1, v3")
        A("v_lshl_add_u32 v9, v10, 9, v9")
        A("v_lshl_add_u32 v9, v4, 4, v9")
        if isK:
            A("s_lshl_b32 s24, s6, 14")
        else:
            A("s_lshl_b32 s24, s6, 13")
            A(f"s_add_u32 s24, s24, {WS_Q}")
        A("v_lshlrev_b32 v11, 4, v2")
        A("s_lshl_b32 s25, s2, 13")
        A("s_lshl_b32 s26, s3, 10")
        A("s_add_u32 s25, s25, s26")
        A(f"s_add_u32 s25, s25, {WS_X}")
        for j in range(4): A(f"v_mov_b32 v{12+j}, -1")
        A("s_waitcnt lgkmcnt(0)")
        stamp(A, opt, 1, 62)
        if isK:
            srd(A, 28, 8, 4 << 20); srd(A, 48, 10, 65536); srd(A, 52, 12, 65536)
        else:
            srd(A, 28, 8, 2 << 20)
        srd(A, 32, 16, 512 << 10); srd(A, 36, 18, 512 << 10); srd(A, 44, 40, WS_SIZE)
        for it in range(2):
            B = 20 + it * 40
            so_x = "s21" if it == 0 else "s22"
            so_t = "s15" if it == 0 else "s20"
            if isK:
                A(f"buffer_load_dwordx4 v[{B}:{B+3}], v6, s[28:31], {so_x} offen {ld}")
                A(f"buffer_load_dwordx4 v[{B+4}:{B+7}], v6, s[28:31], {so_x} offen offset:256 {ld}")
            else:
                A(f"buffer_load_dwordx2 v[{B}:{B+1}], v5, s[28:31], {so_x} offen {ld}")
                A(f"buffer_load_dwordx2 v[{B+4}:{B+5}], v5, s[28:31], {so_x} offen offset:128 {ld}")
            A(f"buffer_load_dwordx2 v[{B+8}:{B+9}], v5, s[32:35], {so_t} offen {ldt}")
            A(f"buffer_load_dwordx2 v[{B+10}:{B+11}], v5, s[32:35], {so_t} offen offset:128 {ldt}")
            A(f"buffer_load_dwordx2 v[{B+12}:{B+13}], v5, s[36:39], {so_t} offen {ldt}")
            A(f"buffer_load_dwordx2 v[{B+14}:{B+15}], v5, s[36:39], {so_t} offen offset:128 {ldt}")
            if isK:
                A(f"buffer_load_dwordx2 v[{B+16}:{B+17}], v7, s[48:51], s23 offen offset:{it*128}")
                A(f"buffer_load_dwordx2 v[{B+18}:{B+19}], v7, s[52:55], s23 offen offset:{it*128}")
        nper = 8 if isK else 6
        A(f"buffer_store_dwordx4 v[12:15], v11, s[44:47], s25 offen {st}")
        if not isK: A(f"s_mov_b32 s27, 0x{f32bits(QSCALE):08x}")
        for it in range(2):
            B = 20 + it * 40
            T = B + 20
            A(f"s_waitcnt vmcnt({(1-it)*nper + 1})")
            if it == 1:
                A.lines.pop()
                A("s_waitcnt vmcnt(2)")
            if it == 0: stamp(A, opt, 2, 64)
            else: stamp(A, opt, 3, 66)
            if isK:
                for k, src in enumerate((B+16, B+17, B+18, B+19)):
                    A(f"v_lshlrev_b32 v{T+8+k}, v8, v{src}")
                for k in range(4):
                    A(f"v_and_b32 v{T+8+k}, 0xffff0000, v{T+8+k}")
                for j in range(8):
                    A(f"v_cvt_f32_i32 v{T+j}, v{B+j}")
                for j in range(8):
                    A(f"v_sub_f32 v{T+j}, v{T+j}, v{T+10+(j>>2)}")
                for j in range(8):
                    A(f"v_mul_f32 v{T+j}, v{T+j}, v{T+8+(j>>2)}")
            else:
                for hh in range(2):
                    A(f"v_lshlrev_b32 v{T+4*hh+0}, 16, v{B+4*hh+0}")
                    A(f"v_and_b32 v{T+4*hh+1}, 0xffff0000, v{B+4*hh+0}")
                    A(f"v_lshlrev_b32 v{T+4*hh+2}, 16, v{B+4*hh+1}")
                    A(f"v_and_b32 v{T+4*hh+3}, 0xffff0000, v{B+4*hh+1}")
                for j in range(8):
                    A(f"v_mul_f32 v{T+j}, s27, v{T+j}")
            def unpack(dst, src):
                A(f"v_lshlrev_b32 v{dst}, 16, v{src}")
                A(f"v_and_b32 v{dst+1}, 0xffff0000, v{src}")
                A(f"v_lshlrev_b32 v{dst+2}, 16, v{src+1}")
                A(f"v_and_b32 v{dst+3}, 0xffff0000, v{src+1}")
            unpack(B+0, B+8); unpack(B+4, B+10); unpack(T+8, B+12); unpack(T+12, B+14)
            for j in range(4):
                A(f"v_mul_f32 v{T+8+j}, v{T+4+j}, v{T+8+j}")
                A(f"v_mul_f32 v{T+12+j}, v{T+j}, v{T+12+j}")
            for j in range(4):
                A(f"v_fma_f32 v{T+8+j}, v{T+j}, v{B+j}, -v{T+8+j}")
                A(f"v_fma_f32 v{T+12+j}, v{T+4+j}, v{B+4+j}, v{T+12+j}")
            O = T + 16
            A(f"v_cvt_pk_bf16_f32 v{O}, v{T+8}, v{T+9}")
            A(f"v_cvt_pk_bf16_f32 v{O+1}, v{T+10}, v{T+11}")
            A(f"v_cvt_pk_bf16_f32 v{O+2}, v{T+12}, v{T+13}")
            A(f"v_cvt_pk_bf16_f32 v{O+3}, v{T+14}, v{T+15}")
            A(f"buffer_store_dwordx4 v[{O}:{O+3}], v9, s[44:47], s24 offen offset:{it*256} {st}")
        if opt.get("stamp"):
            stamp(A, opt, 4, 68)
            A("s_waitcnt vmcnt(0)")
            stamp(A, opt, 5, 70)
            stamp_flush(A, opt, 0, 6, 60, 40, "s3", 12, (100, 101))
        A("s_endpgm")

    rope_role(True)
    A.label("P_Q")
    rope_role(False)

    A.label("P_V")
    A("s_load_dwordx4 s[8:11], s[0:1], 32")
    A("s_load_dwordx2 s[12:13], s[0:1], 48")
    A("s_sub_u32 s7, s3, 8")
    A("s_and_b32 s14, s7, 1")
    A("s_lshr_b32 s15, s7, 1")
    A("v_and_b32 v3, 31, v2")
    A("v_lshrrev_b32 v4, 5, v2")
    A("v_bfe_u32 v5, v3, 2, 1")
    A("v_lshlrev_b32 v5, 4, v5")
    A("v_lshrrev_b32 v6, 3, v3")
    A("v_lshl_add_u32 v5, v6, 2, v5")
    A("v_and_b32 v6, 3, v3")
    A("v_add_u32 v5, v5, v6")
    A("s_lshl_b32 s16, s14, 4")
    A("v_lshlrev_b32 v6, 2, v4")
    A("v_add_u32 v6, s16, v6")
    A("s_lshl_b32 s17, s15, 8")
    A("v_lshlrev_b32 v7, 9, v6")
    A("v_lshl_add_u32 v7, v5, 2, v7")
    A("v_add_u32 v7, s17, v7")
    A("s_lshl_b32 s21, s6, 14")
    A("s_add_u32 s22, s21, 4096")
    A("s_lshl_b32 s17, s15, 2")
    A("v_lshlrev_b32 v8, 3, v6")
    A("v_add_u32 v8, s17, v8")
    A("s_lshl_b32 s23, s6, 8")
    A("v_lshlrev_b32 v9, 4, v2")
    A("s_lshl_b32 s24, s6, 14")
    A("s_lshl_b32 s17, s15, 12")
    A("s_add_u32 s24, s24, s17")
    A("s_lshl_b32 s17, s14, 10")
    A("s_add_u32 s24, s24, s17")
    A("s_add_u32 s24, s24, 8192")
    A("v_lshlrev_b32 v11, 2, v2")
    A("s_lshl_b32 s25, s2, 10")
    A("s_lshl_b32 s26, s7, 8")
    A("s_add_u32 s25, s25, s26")
    A(f"s_add_u32 s25, s25, {WS_L}")
    A("v_mov_b32 v12, -1")
    A("s_waitcnt lgkmcnt(0)")
    stamp(A, opt, 1, 62)
    srd(A, 28, 8, 4 << 20); srd(A, 48, 10, 65536); srd(A, 52, 12, 65536); srd(A, 44, 40, WS_SIZE)
    for i in range(8):
        so = "s21" if i < 4 else "s22"
        for dbl in range(2):
            A(f"buffer_load_dword v{20+i*2+dbl}, v7, s[28:31], {so} offen offset:{(i&3)*512 + dbl*128} {ld}")
    for i in range(8):
        ro = (8*(i>>2) + (i&3)) * 8
        A(f"buffer_load_dword v{40+i}, v8, s[48:51], s23 offen offset:{ro}")
        A(f"buffer_load_dword v{48+i}, v8, s[52:55], s23 offen offset:{ro}")
    A(f"buffer_store_dword v12, v11, s[44:47], s25 offen {st}")
    A("s_waitcnt vmcnt(1)")
    stamp(A, opt, 2, 64)
    stamp(A, opt, 3, 66)
    for i in range(8):
        A(f"v_lshlrev_b32 v{56+i}, 16, v{40+i}")
        A(f"v_and_b32 v{64+i}, 0xffff0000, v{40+i}")
        A(f"v_lshlrev_b32 v{72+i}, 16, v{48+i}")
        A(f"v_and_b32 v{80+i}, 0xffff0000, v{48+i}")
    for i in range(8):
        for dbl in range(2):
            A(f"v_cvt_f32_i32 v{20+i*2+dbl}, v{20+i*2+dbl}")
    for i in range(8):
        for dbl in range(2):
            A(f"v_sub_f32 v{20+i*2+dbl}, v{20+i*2+dbl}, v{72+8*dbl+i}")
    for i in range(8):
        for dbl in range(2):
            A(f"v_mul_f32 v{20+i*2+dbl}, v{20+i*2+dbl}, v{56+8*dbl+i}")
    for dbl in range(2):
        O = 88 + 4*dbl
        for k in range(4):
            A(f"v_cvt_pk_bf16_f32 v{O+k}, v{20+(2*k)*2+dbl}, v{20+(2*k+1)*2+dbl}")
        A(f"buffer_store_dwordx4 v[{O}:{O+3}], v9, s[44:47], s24 offen offset:{dbl*2048} {st}")
    if opt.get("stamp"):
        stamp(A, opt, 4, 68)
        A("s_waitcnt vmcnt(0)")
        stamp(A, opt, 5, 70)
        stamp_flush(A, opt, 0, 6, 60, 40, "s3", 12, (100, 101))
    A.label("P_END")
    A("s_endpgm")

def kd(A, name, vgpr, sgpr, accum):
    A(f".amdhsa_kernel {name}")
    A(f"  .amdhsa_next_free_vgpr {vgpr}")
    A(f"  .amdhsa_next_free_sgpr {sgpr}")
    A(f"  .amdhsa_accum_offset {accum}")
    A("  .amdhsa_group_segment_fixed_size 0")
    A("  .amdhsa_kernarg_size 112")
    A("  .amdhsa_user_sgpr_count 2")
    A("  .amdhsa_user_sgpr_kernarg_segment_ptr 1")
    A("  .amdhsa_system_sgpr_workgroup_id_x 1")
    A(".end_amdhsa_kernel")

LDS_Q = 0
RED_A = 16384
RED_BOFF = 49152
LRED = 114688
LDS_BYTES = 116736

V_LANE16 = 1
V_OFFV = 2
V_LA, V_LB = 6, 7
V_S = 16
V_P = 80
V_O0 = 112
V_RING = 144
A_O = 0
A_Q = 96
A_RING = 160
NVGPR_ARCH = 176

def Sreg(par, X): return V_S + (par * 2 + X) * 16
def Preg(par, X): return V_P + (par * 2 + X) * 8
def Oreg(X, j):
    if j == 0: return vr(V_O0 + 16 * X, 16)
    return ar(A_O + X * 48 + (j - 1) * 16, 16)
def Qreg(X, ks): return ar(A_Q + (X * 8 + ks) * 4, 4)
def ring(p):
    s = p % 32
    return ar(A_RING + s * 4, 4) if s < 24 else vr(V_RING + (s - 24) * 4, 4)

def stream():
    seq = [("K", 0, i) for i in range(8)]
    for t in range(7):
        seq += [("K", t + 1, i) for i in range(8)]
        seq += [("V", t, i) for i in range(8)]
    seq += [("V", 7, i) for i in range(8)]
    return seq

def emit_ring_load(A, seq, p):
    kind, t, i = seq[p]
    dst = ring(p)
    if kind == "K":
        so = f"s{32 + 2 * t + (i >> 2)}"
        A(f"buffer_load_dwordx4 {dst}, v{V_LANE16}, s[4:7], {so} offen offset:{(i & 3) * 1024}")
    else:
        j, ks = i & 3, i >> 2
        so = f"s{32 + 2 * t}"
        A(f"buffer_load_dwordx4 {dst}, v{V_OFFV + j}, s[4:7], {so} offen offset:{ks * 1024}")

def gen_attn(A, opt):
    A.label("attn_kernel")
    stamp(A, opt, 0, 60)
    A("s_cmp_ge_u32 s2, 256")
    A("s_cbranch_scc1 A_END")
    A("s_load_dwordx2 s[20:21], s[0:1], 104")
    A("s_load_dwordx2 s[22:23], s[0:1], 88")
    A("v_lshrrev_b32 v8, 6, v0")
    A("v_and_b32 v0, 63, v0")
    A("v_readfirstlane_b32 s12, v8")
    A(f"v_lshlrev_b32 v{V_LANE16}, 4, v0")
    A("s_and_b32 s13, s2, 7")
    A("s_lshr_b32 s14, s13, 1")
    A("s_and_b32 s15, s13, 1")
    A("s_lshr_b32 s16, s2, 3")
    A("s_lshl_b32 s17, s14, 6")
    A("s_lshl_b32 s18, s15, 5")
    A("s_add_u32 s17, s17, s18")
    A("s_lshl_b32 s18, s12, 3")
    A("s_add_u32 s17, s17, s18")
    A("s_lshl_b32 s32, s17, 14")
    A("s_add_u32 s33, s32, 4096")
    A("s_lshr_b32 s18, s12, 1")
    A("s_xor_b32 s18, s18, 1")
    A("s_xor_b32 s18, s18, s15")
    A("s_lshl_b32 s19, s16, 1")
    A("s_add_u32 s18, s18, s19")
    A("s_lshl_b32 s19, s14, 6")
    A("s_add_u32 s18, s18, s19")
    A("s_lshl_b32 s18, s18, 13")
    A("s_and_b32 s19, s12, 1")
    A("s_lshl_b32 s19, s19, 12")
    A("s_add_u32 s18, s18, s19")
    A(f"s_add_u32 s18, s18, {WS_Q}")
    A("s_lshl_b32 s19, s12, 12")
    A("s_mov_b32 m0, s19")
    for j in range(4):
        A(f"s_add_u32 s19, s12, {j}")
        A("s_and_b32 s19, s19, 3")
        A("s_lshl_b32 s19, s19, 11")
        A("s_add_u32 s19, s19, 8192")
        A(f"v_add_u32 v{V_OFFV + j}, s19, v{V_LANE16}")
    for t in range(1, 8):
        A(f"s_add_u32 s{32 + 2 * t}, s32, {t * 16384}")
        A(f"s_add_u32 s{33 + 2 * t}, s32, {t * 16384 + 4096}")
    A("s_waitcnt lgkmcnt(0)")
    stamp(A, opt, 1, 62)
    srd(A, 4, 20, WS_SIZE)
    srd(A, 8, 22, 2 << 20)
    for i in range(4):
        A(f"buffer_load_dwordx4 v{V_LANE16}, s[4:7], s18 offen offset:{i * 1024} lds")
    seq = stream()
    for p in range(32):
        emit_ring_load(A, seq, p)
    A(f"v_mov_b32 v{V_LA}, 0")
    A(f"v_mov_b32 v{V_LB}, 0")
    A("s_waitcnt vmcnt(32)")
    A("s_barrier")
    if opt.get("stamp"):
        stamp(A, opt, 2, 64); A("s_waitcnt lgkmcnt(0)")
    def qread(ks):
        for X in range(2):
            A(f"ds_read_b128 {Qreg(X, ks)}, v{V_LANE16} offset:{(X * 8 + ks) * 1024}")
    for ks in range(4): qread(ks)

    NG = 256
    tasks = []
    for t in range(8):
        for half in range(2):
            for X in range(2):
                for j in range(8 * half, 8 * half + 8):
                    tasks.append((t, X, j))
    def avail(t, X):
        endph = 0 if t == 0 else 2 * t - 1
        return 16 * (endph + 1) + (opt.get("lag0", 4) if t == 0 else opt.get("lag", 2))
    def deadline(t, X, j):
        ph = 2 * t + 2 if t <= 6 else 15
        return 16 * ph + (8 if j >= 8 else 0) + X
    plan = [[] for _ in range(NG)]
    MARG = 3
    CAP = opt.get("cap", 2)
    LS = [0] * len(tasks)
    cnt = {}
    nxt = 10 ** 9
    for k in range(len(tasks) - 1, -1, -1):
        t, X, j = tasks[k]
        g = min(deadline(t, X, j) - MARG, nxt)
        while cnt.get(g, 0) >= CAP: g -= 1
        cnt[g] = cnt.get(g, 0) + 1
        LS[k] = g; nxt = g
    done = 0
    for g in range(NG):
        n = 0
        while done < len(tasks) and avail(tasks[done][0], tasks[done][1]) <= g and (n < 1 or LS[done] <= g):
            plan[g].append(tasks[done]); done += 1; n += 1
        if done < len(tasks): assert LS[done] > g, ("deadline miss", g, tasks[done], LS[done])
    assert done == len(tasks), done
    if opt.get("show_plan"):
        print("elements per gap:", "".join(str(len(x)) for x in plan), file=sys.stderr)

    pend_add = []
    pend_cvt = []
    mf = 0
    def fillers(g):
        nonlocal pend_add, pend_cvt
        out = []
        adds = pend_add; cvts = pend_cvt
        pend_add = []; pend_cvt = []
        exps = []
        for (t, X, j) in plan[g]:
            s = Sreg(t & 1, X) + j
            exps.append(f"v_exp_f32 v{s}, v{s}")
            pend_add.append((t, X, j))
            if j & 1: pend_cvt.append((t, X, j))
        rest = []
        for (t, X, j) in adds:
            s = Sreg(t & 1, X) + j
            l = V_LA + X
            rest.append(f"v_add_f32 v{l}, v{l}, v{s}")
        for (t, X, j) in cvts:
            s = Sreg(t & 1, X) + j
            rest.append(f"v_cvt_pk_bf16_f32 v{Preg(t & 1, X) + (j >> 1)}, v{s - 1}, v{s}")
        while exps or rest:
            if exps: out.append(exps.pop(0))
            if rest: out.append(rest.pop(0))
            if rest and not exps: out += rest; rest = []
        return out

    phases = [("QK", 0)]
    for t in range(7): phases += [("QK", t + 1), ("PV", t)]
    phases += [("PV", 7)]
    p = 0
    g = 0
    for (kind, t) in phases:
        A.c(f"---- phase {kind}({t})")
        for i in range(8):
            issued_after = min(127, p + 31) - p
            frag = ring(p)
            for X in range(2):
                pre = []
                if X == 0:
                    w = f"s_waitcnt vmcnt({issued_after})"
                    if kind == "QK" and t == 0:
                        nq = min(7, i + 3) - i
                        w += f" lgkmcnt({2 * nq})"
                    pre.append(w)
                for l in pre: A(l)
                if kind == "QK":
                    S = vr(Sreg(t & 1, X), 16)
                    C = "0" if i == 0 else S
                    A(f"v_mfma_f32_32x32x16_bf16 {S}, {frag}, {Qreg(X, i)}, {C}")
                else:
                    j, ks = i & 3, i >> 2
                    O = Oreg(X, j)
                    C = "0" if (t == 0 and ks == 0) else O
                    P = vr(Preg(t & 1, X) + 4 * ks, 4)
                    A(f"v_mfma_f32_32x32x16_bf16 {O}, {frag}, {P}, {C}")
                fl = fillers(g)
                if X == 1:
                    if p + 32 < 128:
                        tmp = Asm(); emit_ring_load(tmp, seq, p + 32)
                        fl.insert(min(1, len(fl)), tmp.lines[0])
                    if kind == "QK" and t == 0 and i + 4 <= 7:
                        tmp = []
                        for XX in range(2):
                            tmp.append(f"ds_read_b128 {Qreg(XX, i + 4)}, v{V_LANE16} offset:{(XX * 8 + i + 4) * 1024}")
                        fl += tmp
                for l in fl: A(l)
                g += 1
            p += 1
    assert not pend_cvt
    for (t, X, j) in pend_add:
        A(f"v_add_f32 v{V_LA + X}, v{V_LA + X}, v{Sreg(t & 1, X) + j}")
    gen_attn_epilogue(A, opt)

def gen_attn_epilogue(A, opt):
    A.c("==== epilogue")
    stamp(A, opt, 3, 66)
    vWr = [None, 8, 9, 10]; vRd = 11; vLw = 12; vLr = 13; vX = 14
    for j in range(1, 4):
        A(f"s_add_u32 s19, s12, {j}")
        A("s_and_b32 s19, s19, 3")
        A("s_mul_i32 s19, s19, 12288")
        A(f"s_add_u32 s19, s19, {RED_A + (j - 1) * 4096}")
        A(f"v_add_u32 v{vWr[j]}, s19, v{V_LANE16}")
    A("s_mul_i32 s19, s12, 12288")
    A(f"s_add_u32 s19, s19, {RED_A}")
    A(f"v_add_u32 v{vRd}, s19, v{V_LANE16}")
    A("v_and_b32 v15, 31, v0")
    A(f"v_lshlrev_b32 v{vLr}, 5, v15")
    A(f"v_add_u32 v{vLr}, {LRED}, v{vLr}")
    A("v_lshrrev_b32 v15, 5, v0")
    A(f"v_lshl_add_u32 v{vLw}, v15, 2, v{vLr}")
    A("s_lshl_b32 s19, s12, 3")
    A(f"v_add_u32 v{vLw}, s19, v{vLw}")
    A(f"ds_write_b32 v{vLw}, v{V_LA}")
    A(f"ds_write_b32 v{vLw}, v{V_LB} offset:1024")
    A("s_lshl_b32 s24, s2, 13")
    A("s_lshl_b32 s19, s12, 11")
    A("s_add_u32 s24, s24, s19")
    A(f"s_add_u32 s24, s24, {WS_X}")
    A("s_xor_b32 s25, s24, 8192")
    A("s_lshl_b32 s26, s2, 10")
    A("s_lshl_b32 s19, s12, 8")
    A("s_add_u32 s26, s26, s19")
    A(f"s_add_u32 s26, s26, {WS_L}")
    A("s_xor_b32 s27, s26, 1024")
    A(f"v_lshlrev_b32 v{vX}, 2, v0")
    A("s_nop 3")
    def owrite(X):
        for j in range(1, 4):
            for qd in range(4):
                a = A_O + X * 48 + (j - 1) * 16 + qd * 4
                A(f"ds_write_b128 v{vWr[j]}, {ar(a, 4)} offset:{X * RED_BOFF + qd * 1024}")
    TA = V_S
    TL = 64
    def oread(X):
        for j in range(1, 4):
            for qd in range(4):
                A(f"ds_read_b128 {vr(TA + (j - 1) * 16 + qd * 4, 4)}, v{vRd} offset:{X * RED_BOFF + (j - 1) * 4096 + qd * 1024}")
    def lread(X):
        A(f"ds_read_b128 {vr(TL, 4)}, v{vLr} offset:{X * 1024}")
        A(f"ds_read_b128 {vr(TL + 4, 4)}, v{vLr} offset:{X * 1024 + 16}")
    def osum(X):
        O = V_O0 + 16 * X
        for j in range(3):
            for r in range(16):
                A(f"v_add_f32 v{O + r}, v{O + r}, v{TA + j * 16 + r}")
    def lsum(dst):
        A(f"v_add_f32 v{TL}, v{TL}, v{TL + 1}")
        A(f"v_add_f32 v{TL + 2}, v{TL + 2}, v{TL + 3}")
        A(f"v_add_f32 v{TL + 4}, v{TL + 4}, v{TL + 5}")
        A(f"v_add_f32 v{TL + 6}, v{TL + 6}, v{TL + 7}")
        A(f"v_add_f32 v{TL}, v{TL}, v{TL + 2}")
        A(f"v_add_f32 v{TL + 4}, v{TL + 4}, v{TL + 6}")
        A(f"v_add_f32 v{dst}, v{TL}, v{TL + 4}")
    owrite(0)
    A("s_waitcnt lgkmcnt(0)")
    A("s_barrier")
    if opt.get("stamp"):
        stamp(A, opt, 4, 68); A("s_waitcnt lgkmcnt(0)")
    lread(0); oread(0)
    A("s_waitcnt lgkmcnt(0)")
    owrite(1)
    lsum(V_LA)
    osum(0)
    PK = 72
    for k in range(8):
        A(f"v_cvt_pk_bf16_f32 v{PK + k}, v{V_O0 + 2 * k}, v{V_O0 + 2 * k + 1}")
    A(f"buffer_store_dwordx4 {vr(PK, 4)}, v{V_LANE16}, s[4:7], s24 offen sc1")
    A(f"buffer_store_dwordx4 {vr(PK + 4, 4)}, v{V_LANE16}, s[4:7], s24 offen offset:1024 sc1")
    A(f"buffer_store_dword v{V_LA}, v{vX}, s[4:7], s26 offen sc1")
    A("s_waitcnt lgkmcnt(0)")
    if opt.get("stamp"):
        stamp(A, opt, 5, 70); A("s_waitcnt lgkmcnt(0)")
    A("s_barrier")
    lread(1); oread(1)
    RX = 80
    A("s_mov_b32 s28, 0")
    A.label("A_POLL")
    A(f"buffer_load_dwordx4 {vr(RX, 4)}, v{V_LANE16}, s[4:7], s25 offen sc1")
    A(f"buffer_load_dwordx4 {vr(RX + 4, 4)}, v{V_LANE16}, s[4:7], s25 offen offset:1024 sc1")
    A(f"buffer_load_dword v{RX + 8}, v{vX}, s[4:7], s27 offen sc1")
    A("s_cmp_lg_u32 s28, 0")
    A("s_cbranch_scc1 A_POLLW")
    A("s_waitcnt lgkmcnt(0)")
    lsum(V_LB)
    osum(1)
    A.label("A_POLLW")
    A("s_waitcnt vmcnt(0)")
    A(f"v_max3_u32 v90, v{RX}, v{RX + 1}, v{RX + 2}")
    A(f"v_max3_u32 v91, v{RX + 3}, v{RX + 4}, v{RX + 5}")
    A(f"v_max3_u32 v92, v{RX + 6}, v{RX + 7}, v{RX + 8}")
    A("v_max3_u32 v90, v90, v91, v92")
    A("s_add_u32 s28, s28, 1")
    A("v_cmp_eq_u32 vcc, -1, v90")
    A(f"s_cmp_ge_u32 s28, {opt.get('maxpoll', 20000)}")
    A("s_cbranch_scc1 A_FALLBACK")
    A("s_cbranch_vccnz A_POLL")
    stamp(A, opt, 6, 72)
    if opt.get("stamp"):
        A("s_mov_b32 s74, s28")
    O = V_O0 + 16
    for k in range(8):
        A(f"v_lshlrev_b32 v{16 + 2 * k}, 16, v{RX + k}")
        A(f"v_and_b32 v{17 + 2 * k}, 0xffff0000, v{RX + k}")
    A(f"v_add_f32 v{V_LB}, v{V_LB}, v{RX + 8}")
    for r in range(16):
        A(f"v_add_f32 v{O + r}, v{O + r}, v{16 + r}")
    A(f"v_rcp_f32 v32, v{V_LB}")
    A("v_mov_b32 v33, 0")
    for r in range(16):
        A(f"v_fma_f32 v33, v{O + r}, 0, v33")
    A(f"s_mov_b32 s29, 0x{f32bits(2.0 ** -30):08x}")
    A(f"s_mov_b32 s30, 0x{f32bits(2.0 ** 30):08x}")
    A(f"v_cmp_le_f32 s[80:81], s29, v{V_LB}")
    A(f"v_cmp_ge_f32 s[82:83], s30, v{V_LB}")
    A("v_cmp_o_f32 vcc, v33, v33")
    A("s_and_b64 s[80:81], s[80:81], s[82:83]")
    A("s_nop 1")
    A("s_and_b64 s[80:81], s[80:81], vcc")
    A("s_cmp_eq_u64 s[80:81], exec")
    A("s_cbranch_scc0 A_FALLBACK")
    for r in range(16):
        A(f"v_mul_f32 v{O + r}, v{O + r}, v32")
    A.label("A_STORE")
    for k in range(8):
        A(f"v_cvt_pk_bf16_f32 v{PK + k}, v{O + 2 * k}, v{O + 2 * k + 1}")
    A("s_lshl_b32 s19, s14, 6")
    A("s_lshl_b32 s31, s16, 1")
    A("s_add_u32 s19, s19, s31")
    A("s_add_u32 s19, s19, s15")
    A("s_lshl_b32 s19, s19, 13")
    A("s_lshl_b32 s31, s12, 6")
    A("s_add_u32 s19, s19, s31")
    A("v_and_b32 v15, 31, v0")
    A("v_lshlrev_b32 v15, 8, v15")
    A("v_lshrrev_b32 v34, 5, v0")
    A("v_lshl_add_u32 v15, v34, 5, v15")
    A(f"buffer_store_dwordx4 {vr(PK, 4)}, v15, s[8:11], s19 offen")
    A(f"buffer_store_dwordx4 {vr(PK + 4, 4)}, v15, s[8:11], s19 offen offset:16")
    if opt.get("stamp"):
        stamp(A, opt, 8, 76)
        A("s_waitcnt vmcnt(0)")
        stamp(A, opt, 9, 78)
        stamp_flush(A, opt, 1, 10, 60, 20, "s12", 4, (174, 175))
    A.label("A_END")
    A("s_endpgm")
    gen_fallback(A, opt)

def gen_fallback(A, opt):
    A.label("A_FALLBACK")
    S = 16; P = 32; KF = 40; VF = 72
    O = V_O0 + 16
    M, L, T0, T1 = 96, 97, 98, 99
    A("s_lshl_b32 s40, s14, 20")
    A("s_mov_b32 s41, 0")
    A(f"v_mov_b32 v{M}, 0xff800000")
    A(f"v_mov_b32 v{L}, 0")
    for r in range(16): A(f"v_mov_b32 v{O + r}, 0")
    A.label("A_FB_LOOP")
    A("s_add_u32 s42, s40, 4096")
    for i in range(8):
        so = "s40" if i < 4 else "s42"
        A(f"buffer_load_dwordx4 {vr(KF + 4 * i, 4)}, v{V_LANE16}, s[4:7], {so} offen offset:{(i & 3) * 1024}")
    for ks in range(2):
        A(f"buffer_load_dwordx4 {vr(VF + 4 * ks, 4)}, v{V_OFFV}, s[4:7], s40 offen offset:{ks * 1024}")
    A("s_waitcnt vmcnt(0)")
    for i in range(8):
        C = "0" if i == 0 else vr(S, 16)
        A(f"v_mfma_f32_32x32x16_bf16 {vr(S, 16)}, {vr(KF + 4 * i, 4)}, {Qreg(1, i)}, {C}")
    A("s_nop 15")
    A(f"v_max3_f32 v{T0}, v{S}, v{S + 1}, v{S + 2}")
    for r in range(3, 15, 2):
        A(f"v_max3_f32 v{T0}, v{T0}, v{S + r}, v{S + r + 1}")
    A(f"v_max_f32 v{T0}, v{T0}, v{S + 15}")
    A(f"v_mov_b32 v{T1}, v{T0}")
    A("s_nop 1")
    A(f"v_permlane32_swap_b32 v{T0}, v{T1}")
    A("s_nop 1")
    A(f"v_max3_f32 v{T0}, v{T0}, v{T1}, v{M}")
    A(f"v_sub_f32 v{T1}, v{M}, v{T0}")
    A(f"v_exp_f32 v{T1}, v{T1}")
    A(f"v_mov_b32 v{M}, v{T0}")
    for r in range(16): A(f"v_sub_f32 v{S + r}, v{S + r}, v{T0}")
    for r in range(16): A(f"v_exp_f32 v{S + r}, v{S + r}")
    A(f"v_mul_f32 v{L}, v{L}, v{T1}")
    for r in range(16): A(f"v_mul_f32 v{O + r}, v{O + r}, v{T1}")
    for r in range(16): A(f"v_add_f32 v{L}, v{L}, v{S + r}")
    for k in range(8): A(f"v_cvt_pk_bf16_f32 v{P + k}, v{S + 2 * k}, v{S + 2 * k + 1}")
    A("s_nop 1")
    for ks in range(2):
        A(f"v_mfma_f32_32x32x16_bf16 {vr(O, 16)}, {vr(VF + 4 * ks, 4)}, {vr(P + 4 * ks, 4)}, {vr(O, 16)}")
    A("s_nop 15")
    A("s_add_u32 s40, s40, 16384")
    A("s_add_u32 s41, s41, 1")
    A("s_cmp_lt_u32 s41, 64")
    A("s_cbranch_scc1 A_FB_LOOP")
    A(f"v_mov_b32 v{T1}, v{L}")
    A("s_nop 1")
    A(f"v_permlane32_swap_b32 v{L}, v{T1}")
    A("s_nop 1")
    A(f"v_add_f32 v{L}, v{L}, v{T1}")
    A(f"v_rcp_f32 v{L}, v{L}")
    A("s_nop 0")
    for r in range(16): A(f"v_mul_f32 v{O + r}, v{O + r}, v{L}")
    A("s_branch A_STORE")

HEADER = open("cdna_kernels/" + NAME + ".s.ref").read().split("; Override launch geometry")[0]

def generate(opt=None):
    opt = opt or {}
    A = Asm()
    A(HEADER.rstrip("\n"))
    if opt.get("empty_first"): A("; @launch kernel=empty_kernel grid=(256,1,1) block=(64,1,1) lds=0")
    A("; @launch kernel=prep_kernel grid=(256,1,1) block=(768,1,1) lds=0")
    if opt.get("empty_mid"): A("; @launch kernel=empty_kernel grid=(256,1,1) block=(64,1,1) lds=0")
    if opt.get("prep_twice"): A("; @launch kernel=prep_kernel grid=(256,1,1) block=(768,1,1) lds=0")
    A(f"; @launch kernel=attn_kernel grid=(256,1,1) block=(256,1,1) lds={LDS_BYTES}")
    if opt.get("attn_twice"):
        A("; @launch kernel=prep_kernel grid=(256,1,1) block=(768,1,1) lds=0")
        A(f"; @launch kernel=attn_kernel grid=(256,1,1) block=(256,1,1) lds={LDS_BYTES}")
    if opt.get("empty_last"): A("; @launch kernel=empty_kernel grid=(256,1,1) block=(64,1,1) lds=0")
    A('.amdgcn_target "amdgcn-amd-amdhsa--gfx950"')
    A(".text")
    A(".globl prep_kernel\n.p2align 8\n.type prep_kernel,@function")
    n0 = len(A.lines)
    gen_prep(A, opt)
    n1 = len(A.lines)
    A(".globl attn_kernel\n.p2align 8\n.type attn_kernel,@function")
    n2 = len(A.lines)
    gen_attn(A, opt)
    n3 = len(A.lines)
    has_empty = opt.get("empty_first") or opt.get("empty_last") or opt.get("empty_mid")
    if has_empty:
        A(".globl empty_kernel\n.p2align 8\n.type empty_kernel,@function\nempty_kernel:\ns_endpgm")
    A('.section .rodata,"a"\n.p2align 6')
    if has_empty:
        kd(A, "empty_kernel", 8, 16, 8)
        A(".p2align 6")
    kd(A, "prep_kernel", 104, 102 if opt.get("stamp") else 64, 104)
    A(".p2align 6")
    kd(A, "attn_kernel", NVGPR_ARCH + 256, 102 if opt.get("stamp") else 96, NVGPR_ARCH)
    errs = []
    L = A.lines
    def seg(a, b, name):
        return check(L[a:b], name)
    iq = L.index("P_Q:"); iv = L.index("P_V:")
    errs += seg(n0, iq, "prepK"); errs += check(L[n0:L.index("    s_cbranch_scc1 P_V") if False else n0+16] + L[iq:iv], "prepQ"); errs += check(L[n0:n0+16] + L[iv:n1], "prepV")
    ifb = L.index("A_FALLBACK:")
    errs += seg(n2, ifb, "attn"); errs += seg(ifb, n3, "fallback")
    return A.text(), errs

if __name__ == "__main__":
    opt = {}
    for a in sys.argv[2:]:
        k, v = a.split("=")
        try: v = int(v)
        except ValueError: pass
        opt[k] = v
    txt, errs = generate(opt)
    out = sys.argv[1] if len(sys.argv) > 1 else "cdna_kernels/" + NAME + ".s"
    open(out, "w").write(txt)
    print("wrote", out, len(txt), "bytes;", len(errs), "check problems")
```

```python
import sys, math, struct
from asmlib import Asm, vr, ar, sr, check

NAME = "standalone__kv_cache_quant_pre_rope_vs_post_rope__prompt"
KNAME = NAME + "_kernel"

WS_KV = 0
WS_X  = 4 << 20
WS_L  = 6 << 20
WS_SIZE = (6 << 20) + (256 << 10)
WS_STAMP = 12 << 20

def f32bits(x): return struct.unpack("<I", struct.pack("<f", x))[0]
def F(x): return f"0x{f32bits(x):08x}"
QSCALE = math.log2(math.e) / math.sqrt(128.0)
TRIG_A = -math.log2(10000.0) / 64.0
TRIG_B = -math.log2(2 * math.pi)

LDS_Q = 0
RED_A = 16384
RED_BOFF = 49152
LRED = 114688
LFAIL = 116736
LDS_BYTES = 116736 + 64

S_W, S_H, S_SP, S_QT, S_G = 3, 4, 5, 6, 7
S_WS = 12
S_OUT = 16
S_ARG = 20
S_DBG = 36
S_OUTP = 40
S_TILE = 48
S_XCC = 64
ST0 = 66

V_LANE16 = 1
V_OFFV = 2
V_LA, V_LB = 6, 7
V_S = 16
V_P = 80
V_O0 = 112
V_RING = 144
A_O = 0
A_Q = 96
A_RING = 160
NVGPR_ARCH = 176

def Sreg(par, X): return V_S + (par * 2 + X) * 16
def Preg(par, X): return V_P + (par * 2 + X) * 8
def Oreg(X, j):
    if j == 0: return vr(V_O0 + 16 * X, 16)
    return ar(A_O + X * 48 + (j - 1) * 16, 16)
def Qreg(X, ks): return ar(A_Q + (X * 8 + ks) * 4, 4)
def ring(p):
    s = p % 32
    return ar(A_RING + s * 4, 4) if s < 24 else vr(V_RING + (s - 24) * 4, 4)

class G:
    def __init__(self, opt):
        self.opt = opt; self.A = Asm(); self.nst = 0
    def stamp(self, idx):
        o = self.opt
        if o.get("stamp"):
            self.A(f"{'s_memtime' if o['stamp'] == 2 else 's_memrealtime'} s[{ST0 + 2*idx}:{ST0 + 2*idx + 1}]")
    def stamp_wait(self):
        if self.opt.get("stamp"): self.A("s_waitcnt lgkmcnt(0)")

def srd(A, d, b, nbytes):
    A(f"s_mov_b32 s{d}, s{b}")
    A(f"s_and_b32 s{d+1}, s{b+1}, 0xffff")
    A(f"s_mov_b32 s{d+2}, {nbytes}")
    A(f"s_mov_b32 s{d+3}, 0x20000")

def add64(A, d, b, off):
    A(f"s_add_u32 s{d}, s{b}, {off}")
    A(f"s_addc_u32 s{d+1}, s{b+1}, 0")

def stream():
    seq = [("K", 0, i) for i in range(8)]
    for t in range(7):
        seq += [("K", t + 1, i) for i in range(8)]
        seq += [("V", t, i) for i in range(8)]
    seq += [("V", 7, i) for i in range(8)]
    return seq

def ring_load(seq, p, mod=""):
    kind, t, i = seq[p]
    dst = ring(p)
    if kind == "K":
        so = f"s{S_TILE + 2 * t + (i >> 2)}"
        return f"buffer_load_dwordx4 {dst}, v{V_LANE16}, s[{S_WS}:{S_WS+3}], {so} offen offset:{(i & 3) * 1024} {mod}".rstrip()
    j, ks = i & 3, i >> 2
    so = f"s{S_TILE + 2 * t}"
    return f"buffer_load_dwordx4 {dst}, v{V_OFFV + j}, s[{S_WS}:{S_WS+3}], {so} offen offset:{ks * 1024} {mod}".rstrip()

def gen_prologue(g):
    A, opt = g.A, g.opt
    ldmod = opt.get("raw_load_mod", "")
    vC, vR0, vK0, vK1, vKs, vVd, vVs, vQd = 8, 9, 10, 11, 12, 13, 14, 15
    vKst, vQw, vSel, vX4 = 16, 17, 18, 19
    W = 20; CK, SK, CQ, SQ = 24, 32, 40, 56
    KD, KSC, KZ = 72, 88, 92
    VD, VSC, VZ = 96, 112, 120
    SENT = 128
    T = 132
    g.stamp(0)
    A("s_cmp_ge_u32 s2, 256")
    A("s_cbranch_scc1 L_END")
    A(f"s_load_dwordx16 s[{S_ARG}:{S_ARG+15}], s[0:1], 0")
    A(f"s_load_dwordx4 s[{S_DBG}:{S_DBG+3}], s[0:1], 96")
    A(f"s_load_dwordx2 s[{S_OUTP}:{S_OUTP+1}], s[0:1], 88")
    A("v_lshrrev_b32 v8, 6, v0")
    A("v_and_b32 v0, 63, v0")
    A(f"v_readfirstlane_b32 s{S_W}, v8")
    A(f"s_getreg_b32 s{S_XCC}, hwreg(HW_REG_XCC_ID, 0, 4)")
    A(f"v_lshlrev_b32 v{V_LANE16}, 4, v0")
    A("s_and_b32 s8, s2, 7")
    A(f"s_lshr_b32 s{S_H}, s8, 1")
    A(f"s_and_b32 s{S_SP}, s8, 1")
    A(f"s_lshr_b32 s{S_QT}, s2, 3")
    A(f"s_lshl_b32 s8, s{S_H}, 6")
    A(f"s_lshl_b32 s9, s{S_SP}, 5")
    A("s_add_u32 s8, s8, s9")
    A(f"s_add_u32 s{S_G}, s8, s{S_QT}")
    A(f"v_and_b32 v{vC}, 15, v0")
    A(f"v_lshrrev_b32 v{vR0}, 4, v0")
    A(f"s_lshl_b32 s9, s{S_W}, 2")
    A(f"v_add_u32 v{vR0}, s9, v{vR0}")
    A(f"v_lshlrev_b32 v{vK0}, 9, v{vR0}")
    A(f"v_lshl_add_u32 v{vK0}, v{vC}, 4, v{vK0}")
    A(f"v_add_u32 v{vK1}, 8192, v{vK0}")
    A(f"v_lshlrev_b32 v{vKs}, 3, v{vR0}")
    A(f"v_and_b32 v{T}, 31, v0")
    A(f"v_lshrrev_b32 v{T+1}, 5, v0")
    A(f"v_bfe_u32 v{T+2}, v{T}, 2, 1")
    A(f"v_lshlrev_b32 v{T+2}, 4, v{T+2}")
    A(f"v_lshrrev_b32 v{T+3}, 3, v{T}")
    A(f"v_lshl_add_u32 v{T+2}, v{T+3}, 2, v{T+2}")
    A(f"v_and_b32 v{T+3}, 3, v{T}")
    A(f"v_add_u32 v{T+2}, v{T+2}, v{T+3}")
    A(f"s_and_b32 s10, s{S_W}, 1")
    A(f"s_lshr_b32 s11, s{S_W}, 1")
    A("s_lshl_b32 s9, s10, 4")
    A(f"v_lshlrev_b32 v{T+1}, 2, v{T+1}")
    A(f"v_add_u32 v{T+1}, s9, v{T+1}")
    A("s_lshl_b32 s9, s11, 8")
    A("s_add_u32 s9, s9, 2048")
    A(f"v_lshlrev_b32 v{vVd}, 9, v{T+1}")
    A(f"v_lshl_add_u32 v{vVd}, v{T+2}, 2, v{vVd}")
    A(f"v_add_u32 v{vVd}, s9, v{vVd}")
    A("s_lshl_b32 s9, s11, 2")
    A(f"v_lshlrev_b32 v{vVs}, 3, v{T+1}")
    A(f"v_add_u32 v{vVs}, s9, v{vVs}")
    A(f"s_lshl_b32 s42, s{S_G}, 14")
    A(f"s_lshl_b32 s43, s{S_G}, 8")
    A("s_waitcnt lgkmcnt(0)")
    g.stamp(1)
    add64(A, 22, 22, "s42")
    add64(A, 24, 24, "s43")
    add64(A, 26, 26, "s43")
    add64(A, 28, 28, "s42")
    add64(A, 30, 30, "s43")
    add64(A, 32, 32, "s43")
    for it in range(2):
        vo = vK0 if it == 0 else vK1
        A(f"global_load_dwordx4 {vr(KD + 8*it, 4)}, v{vo}, s[22:23] {ldmod}")
        A(f"global_load_dwordx4 {vr(KD + 8*it + 4, 4)}, v{vo}, s[22:23] offset:256 {ldmod}")
        A(f"global_load_dwordx2 {vr(KSC + 2*it, 2)}, v{vKs}, s[24:25] offset:{it*128}")
        A(f"global_load_dwordx2 {vr(KZ + 2*it, 2)}, v{vKs}, s[26:27] offset:{it*128}")
    for i in range(8):
        for dbl in range(2):
            off = (i >> 2) * 4096 + (i & 3) * 512 + dbl * 128 - 2048
            A(f"global_load_dword v{VD + 2*i + dbl}, v{vVd}, s[28:29] offset:{off} {ldmod}")
    for i in range(8):
        ro = (8 * (i >> 2) + (i & 3)) * 8
        A(f"global_load_dword v{VSC + i}, v{vVs}, s[30:31] offset:{ro}")
        A(f"global_load_dword v{VZ + i}, v{vVs}, s[32:33] offset:{ro}")
    srd(A, S_WS, 38, WS_SIZE)
    for j in range(4): A(f"v_mov_b32 v{SENT + j}, -1")
    A(f"v_lshlrev_b32 v{vX4}, 2, v0")
    A("s_lshl_b32 s44, s2, 13")
    A(f"s_lshl_b32 s9, s{S_W}, 11")
    A("s_add_u32 s44, s44, s9")
    A(f"s_add_u32 s44, s44, {WS_X}")
    A("s_lshl_b32 s45, s2, 10")
    A(f"s_lshl_b32 s9, s{S_W}, 8")
    A("s_add_u32 s45, s45, s9")
    A(f"s_add_u32 s45, s45, {WS_L}")
    A(f"buffer_store_dwordx4 {vr(SENT, 4)}, v{V_LANE16}, s[{S_WS}:{S_WS+3}], s44 offen sc1")
    A(f"buffer_store_dwordx4 {vr(SENT, 4)}, v{V_LANE16}, s[{S_WS}:{S_WS+3}], s44 offen offset:1024 sc1")
    A(f"buffer_store_dword v{SENT}, v{vX4}, s[{S_WS}:{S_WS+3}], s45 offen sc1")
    NV = 40 + 3
    A(f"v_lshrrev_b32 v{T}, 1, v{vC}")
    A(f"v_lshlrev_b32 v{vKst}, 10, v{T}")
    A(f"v_and_b32 v{T+1}, 1, v{vC}")
    A(f"v_lshl_add_u32 v{vKst}, v{T+1}, 9, v{vKst}")
    A(f"v_lshl_add_u32 v{vKst}, v{vR0}, 4, v{vKst}")
    A(f"v_lshl_add_u32 v{T+1}, v{T+1}, 5, v{vR0}")
    A(f"v_and_b32 v{T+2}, 7, v{vC}")
    A(f"v_xor_b32 v{T+1}, v{T+1}, v{T+2}")
    A(f"v_lshlrev_b32 v{vQw}, 10, v{T}")
    A(f"v_lshl_add_u32 v{vQw}, v{T+1}, 4, v{vQw}")
    A(f"v_lshrrev_b32 v{vSel}, 3, v{vC}")
    A(f"v_lshlrev_b32 v{vSel}, 4, v{vSel}")
    A(f"v_sub_u32 v{vSel}, 16, v{vSel}")
    A(f"v_lshlrev_b32 v{vQd}, 8, v{vR0}")
    A(f"v_lshl_add_u32 v{vQd}, v{vC}, 3, v{vQd}")
    A(f"v_add_u32 v{vQd}, 2048, v{vQd}")
    A(f"s_lshl_b32 s9, s{S_QT}, 1")
    A(f"s_add_u32 s46, s9, s{S_SP}")
    A(f"s_xor_b32 s47, s46, 1")
    A(f"s_lshl_b32 s10, s{S_H}, 6")
    A("s_add_u32 s11, s10, s47")
    A("s_lshl_b32 s11, s11, 13")
    add64(A, 34, 20, "s11")
    A("s_add_u32 s11, s10, s46")
    A("s_lshl_b32 s11, s11, 13")
    add64(A, 20, 20, "s11")
    A(f"v_lshlrev_b32 v{T}, 2, v{vC}")
    A(f"v_cvt_f32_u32 v{T}, v{T}")
    A(f"s_mov_b32 s9, {F(TRIG_A)}")
    for j in range(4):
        A(f"v_mov_b32 v{W+j}, {F(TRIG_B + j * TRIG_A)}")
    for j in range(4):
        A(f"v_fma_f32 v{W+j}, v{T}, s9, v{W+j}")
    for j in range(4):
        A(f"v_exp_f32 v{W+j}, v{W+j}")
    A(f"s_lshl_b32 s9, s{S_SP}, 5")
    A(f"s_add_u32 s9, s9, s{S_QT}")
    A("s_lshl_b32 s9, s9, 5")
    A("s_lshl_b32 s10, s47, 5")
    A("s_lshl_b32 s11, s46, 5")
    P0 = T + 4
    def trig(pos_s, extra, c0, s0, scale):
        A(f"v_add_u32 v{P0}, {pos_s}, v{vR0}")
        if extra: A(f"v_add_u32 v{P0}, {extra}, v{P0}")
        A(f"v_cvt_f32_u32 v{P0}, v{P0}")
        for j in range(4): A(f"v_mul_f32 v{P0+1+j}, v{P0}, v{W+j}")
        for j in range(4): A(f"v_fract_f32 v{P0+1+j}, v{P0+1+j}")
        for j in range(4):
            A(f"v_cos_f32 v{c0+j}, v{P0+1+j}")
            A(f"v_sin_f32 v{s0+j}, v{P0+1+j}")
        if scale:
            A("s_nop 0")
            for j in range(4):
                A(f"v_mul_f32 v{c0+j}, s42, v{c0+j}")
                A(f"v_mul_f32 v{s0+j}, s42, v{s0+j}")
    trig("s9", 0, CK, SK, False)
    trig("s9", 16, CK + 4, SK + 4, False)
    A(f"s_lshl_b32 s43, s{S_G}, 14")
    A(f"s_mov_b32 s42, {F(QSCALE)}")
    trig("s10", 0, CQ, SQ, True); trig("s10", 16, CQ + 4, SQ + 4, True)
    trig("s11", 0, CQ + 8, SQ + 8, True); trig("s11", 16, CQ + 12, SQ + 12, True)
    for j in range(4):
        A(f"s_add_u32 s9, s{S_W}, {j}")
        A("s_and_b32 s9, s9, 3")
        A("s_lshl_b32 s9, s9, 11")
        A("s_add_u32 s9, s9, 8192")
        A(f"v_add_u32 v{V_OFFV + j}, s9, v{V_LANE16}")
    A(f"s_lshl_b32 s9, s{S_W}, 3")
    A("s_add_u32 s8, s8, s9")
    A(f"s_lshl_b32 s{S_TILE}, s8, 14")
    A(f"s_add_u32 s{S_TILE+1}, s{S_TILE}, 4096")
    for t in range(1, 8):
        A(f"s_add_u32 s{S_TILE + 2*t}, s{S_TILE}, {t * 16384}")
        A(f"s_add_u32 s{S_TILE + 2*t + 1}, s{S_TILE}, {t * 16384 + 4096}")
    A(f"s_add_u32 s{S_XCC}, s{S_XCC}, 1")
    A(f"s_mul_i32 s{S_XCC}, s{S_XCC}, 0x01010101")
    A(f"s_and_b32 s9, s{S_W}, 1")
    A("s_lshl_b32 s9, s9, 10")
    A(f"s_lshr_b32 s10, s{S_W}, 1")
    A("s_lshl_b32 s10, s10, 12")
    A("s_add_u32 s9, s9, s10")
    A("s_add_u32 s9, s9, s43")
    A("s_add_u32 s9, s9, 8192")
    def rope(x, c0, s0, out):
        U = T + 8
        for j in range(4):
            A(f"v_mul_f32 v{U+j}, v{x+4+j}, v{s0+j}")
            A(f"v_mul_f32 v{U+4+j}, v{x+j}, v{s0+j}")
        for j in range(4):
            A(f"v_fma_f32 v{U+j}, v{x+j}, v{c0+j}, -v{U+j}")
            A(f"v_fma_f32 v{U+4+j}, v{x+4+j}, v{c0+j}, v{U+4+j}")
        for k in range(4):
            A(f"v_cvt_pk_bf16_f32 v{out+k}, v{U+2*k}, v{U+2*k+1}")
    nst = 0
    for it in range(2):
        younger = NV - 4 * (it + 1) + nst
        A(f"s_waitcnt vmcnt({younger})")
        if it == 0: g.stamp(2)
        x = KD + 8 * it
        sc = T + 16
        for k, src in enumerate((KSC + 2*it, KSC + 2*it + 1, KZ + 2*it, KZ + 2*it + 1)):
            A(f"v_lshlrev_b32 v{sc+k}, v{vSel}, v{src}")
        for j in range(8): A(f"v_cvt_f32_i32 v{x+j}, v{x+j}")
        for k in range(4): A(f"v_and_b32 v{sc+k}, 0xffff0000, v{sc+k}")
        for j in range(8): A(f"v_sub_f32 v{x+j}, v{x+j}, v{sc+2+(j>>2)}")
        for j in range(8): A(f"v_mul_f32 v{x+j}, v{x+j}, v{sc+(j>>2)}")
        out = T + 20 + 4 * it
        rope(x, CK + 4*it, SK + 4*it, out)
        A(f"buffer_store_dwordx4 {vr(out, 4)}, v{vKst}, s[{S_WS}:{S_WS+3}], s43 offen offset:{it*256}")
        nst += 1
    A(f"s_waitcnt vmcnt({3 + nst})")
    g.stamp(3)
    U = T + 28
    SL, SH, ZL, ZH = 72, 80, 24, 32
    for i in range(8):
        A(f"v_lshlrev_b32 v{SL+i}, 16, v{VSC+i}")
        A(f"v_and_b32 v{SH+i}, 0xffff0000, v{VSC+i}")
        A(f"v_lshlrev_b32 v{ZL+i}, 16, v{VZ+i}")
        A(f"v_and_b32 v{ZH+i}, 0xffff0000, v{VZ+i}")
    for i in range(8):
        for dbl in range(2): A(f"v_cvt_f32_i32 v{VD+2*i+dbl}, v{VD+2*i+dbl}")
    for i in range(8):
        for dbl in range(2): A(f"v_sub_f32 v{VD+2*i+dbl}, v{VD+2*i+dbl}, v{(ZL, ZH)[dbl]+i}")
    for i in range(8):
        for dbl in range(2): A(f"v_mul_f32 v{VD+2*i+dbl}, v{VD+2*i+dbl}, v{(SL, SH)[dbl]+i}")
    for dbl in range(2):
        O = T + 28 + 4 * dbl
        for k in range(4):
            A(f"v_cvt_pk_bf16_f32 v{O+k}, v{VD+(2*k)*2+dbl}, v{VD+(2*k+1)*2+dbl}")
        A(f"buffer_store_dwordx4 {vr(O, 4)}, v{V_LANE16}, s[{S_WS}:{S_WS+3}], s9 offen offset:{dbl*2048}")
    QD = 72
    for X in range(2):
        base = "s[34:35]" if X == 0 else "s[20:21]"
        for it in range(2):
            r = QD + (X * 2 + it) * 4
            A(f"global_load_dwordx2 {vr(r, 2)}, v{vQd}, {base} offset:{it*4096 - 2048} {ldmod}")
            A(f"global_load_dwordx2 {vr(r + 2, 2)}, v{vQd}, {base} offset:{it*4096 - 2048 + 128} {ldmod}")
    A(f"v_mov_b32 v{T}, s{S_G}")
    A(f"v_mov_b32 v{T+1}, s{S_XCC}")
    A(f"v_mov_b32 v{T+2}, s8")
    A("s_waitcnt vmcnt(8)")
    g.stamp(4)
    A("s_barrier")
    A("s_mov_b64 exec, 1")
    A(f"global_store_byte v{T}, v{T+1}, s[{S_DBG}:{S_DBG+1}]")
    FL = T + 4
    assert FL % 2 == 0
    A(f"global_load_dwordx2 {vr(FL, 2)}, v{T+2}, s[{S_DBG}:{S_DBG+1}] sc1")
    A("s_mov_b64 exec, -1")
    A("s_waitcnt vmcnt(2)")
    g.stamp(5)
    for pc in range(4):
        X, it = pc >> 1, pc & 1
        r = QD + pc * 4
        x = 96 + 8 * (pc & 1)
        for hh in range(2):
            for k in range(2):
                A(f"v_lshlrev_b32 v{x+4*hh+2*k}, 16, v{r+2*hh+k}")
                A(f"v_and_b32 v{x+4*hh+2*k+1}, 0xffff0000, v{r+2*hh+k}")
        out = T + 20 + 4 * (pc & 1)
        rope(x, CQ + 4*pc, SQ + 4*pc, out)
        A(f"ds_write_b128 v{vQw}, {vr(out, 4)} offset:{X*8192 + it*256}")
    A("s_mov_b32 s10, 0")
    A("s_mov_b32 s11, 0")
    A.label("L_FPOLL")
    A("s_waitcnt vmcnt(0)")
    A("s_mov_b64 exec, 1")
    A(f"v_cmp_ne_u32 vcc, s{S_XCC}, v{FL}")
    A(f"v_cmp_ne_u32 s[46:47], s{S_XCC}, v{FL+1}")
    A("s_nop 0")
    A("s_or_b64 vcc, vcc, s[46:47]")
    A("s_cbranch_vccz L_FOK")
    A("s_add_u32 s10, s10, 1")
    A(f"s_cmp_ge_u32 s10, {opt.get('maxpoll1', 400)}")
    A("s_cbranch_scc1 L_FTIMEOUT")
    A(f"global_load_dwordx2 {vr(FL, 2)}, v{T+2}, s[{S_DBG}:{S_DBG+1}] sc1")
    A("s_branch L_FPOLL")
    A.label("L_FTIMEOUT")
    A("s_mov_b32 s11, 1")
    A.label("L_FOK")
    A("s_mov_b64 exec, -1")
    g.stamp(6)
    if opt.get("stamp"): A(f"s_mov_b32 s{ST0 + 2*11}, s10")
    seq = stream()
    rmod = opt.get("ring_mod", "")
    for p in range(32): A(ring_load(seq, p, rmod))
    A(f"s_lshl_b32 s10, s{S_W}, 2")
    A(f"s_add_u32 s10, s10, {LFAIL}")
    A(f"v_mov_b32 v{T}, s10")
    A(f"v_mov_b32 v{T+1}, s11")
    A(f"ds_write_b32 v{T}, v{T+1}")
    A(f"v_lshrrev_b32 v{T+2}, 5, v0")
    for k in range(4):
        A(f"v_add_u32 v{8+k}, {2*k}, v{T+2}")
        A(f"v_xor_b32 v{8+k}, v{8+k}, v0")
        A(f"v_lshlrev_b32 v{8+k}, 4, v{8+k}")
    A(f"v_mov_b32 v{T}, {LFAIL}")
    A(f"v_mov_b32 v{V_LA}, 0")
    A(f"v_mov_b32 v{V_LB}, 0")
    A("s_waitcnt lgkmcnt(0)")
    A("s_barrier")
    A(f"ds_read_b128 {vr(T+8, 4)}, v{T}")
    for ks in range(4):
        for X in range(2):
            A(f"ds_read_b128 {Qreg(X, ks)}, v{8 + (ks & 3)} offset:{(X * 8 + ks) * 1024}")
    A("s_waitcnt lgkmcnt(8)")
    A(f"v_or3_b32 v{T+8}, v{T+8}, v{T+9}, v{T+10}")
    A(f"v_or_b32 v{T+8}, v{T+8}, v{T+11}")
    A("s_nop 0")
    A(f"v_readfirstlane_b32 s10, v{T+8}")
    A("s_cmp_lg_u32 s10, 0")
    A("s_cbranch_scc1 L_FALLBACK_EARLY")
    g.stamp(7)
    g.stamp_wait_q = True

def gen_main(g):
    A, opt = g.A, g.opt
    seq = stream()
    rmod = opt.get("ring_mod", "")
    pos_of = {(k, t, i): p for p, (k, t, i) in enumerate(seq)}
    ops = []
    def phase(kind, t, Xs=(0, 1)):
        if len(Xs) == 2:
            for i in range(8):
                for X in (0, 1): ops.append((kind, t, i, X))
        else:
            for i in range(8): ops.append((kind, t, i, Xs[0]))
    phase("K", 0)
    for t in range(6):
        phase("K", t + 1); phase("V", t)
    phase("K", 7)
    phase("V", 6, (0,)); phase("V", 7, (0,))
    iB = len(ops)
    phase("V", 6, (1,)); phase("V", 7, (1,))
    NG = len(ops); assert NG == 256
    first, last = {}, {}
    for n, (k, t, i, X) in enumerate(ops):
        p = pos_of[(k, t, i)]
        first.setdefault(p, n); last[p] = n
    lastS = {}
    for n, (k, t, i, X) in enumerate(ops):
        if k == "K": lastS[(t, X)] = n
    firstP = {}
    for n, (k, t, i, X) in enumerate(ops):
        if k == "V": firstP.setdefault((t, X, i >> 2), n)
    tasks = []
    for t in range(8):
        if t < 7:
            order = [(0, 0), (1, 0), (0, 1), (1, 1)]
        else:
            order = [(0, 0), (0, 1), (1, 0), (1, 1)]
        if t == 6: order = [(0, 0), (0, 1), (1, 0), (1, 1)]
        for X, half in order:
            for j in range(8 * half, 8 * half + 8): tasks.append((t, X, j))
    def avail(t, X):
        lag = opt.get("lag0", 5) if t == 0 else opt.get("lag", 3)
        return lastS[(t, X)] + lag + (0 if X == 1 else 1)
    def deadline(t, X, j): return firstP[(t, X, j >> 3)]
    plan = [[] for _ in range(NG)]
    MARG = 3
    CAP = opt.get("cap", 2)
    LS = [0] * len(tasks); cnt = {}; nxt = 10 ** 9
    for k in range(len(tasks) - 1, -1, -1):
        t, X, j = tasks[k]
        gg = min(deadline(t, X, j) - MARG, nxt)
        while cnt.get(gg, 0) >= CAP: gg -= 1
        cnt[gg] = cnt.get(gg, 0) + 1
        LS[k] = gg; nxt = gg
    done = 0
    for gg in range(NG):
        n = 0
        while done < len(tasks) and avail(tasks[done][0], tasks[done][1]) <= gg and (n < 1 or LS[done] <= gg):
            plan[gg].append(tasks[done]); done += 1; n += 1
        if done < len(tasks): assert LS[done] > gg, ("deadline miss", gg, tasks[done], LS[done])
    assert done == len(tasks)
    if opt.get("show_plan"):
        print("elements per gap:", "".join(str(len(x)) for x in plan), file=sys.stderr)
    st = dict(add=[], cvt=[])
    def fillers(gg):
        out = []
        adds, cvts = st["add"], st["cvt"]
        st["add"], st["cvt"] = [], []
        exps = []
        for (t, X, j) in plan[gg]:
            s = Sreg(t & 1, X) + j
            exps.append(f"v_exp_f32 v{s}, v{s}")
            st["add"].append((t, X, j))
            if j & 1: st["cvt"].append((t, X, j))
        rest = []
        for (t, X, j) in adds:
            rest.append(f"v_add_f32 v{V_LA + X}, v{V_LA + X}, v{Sreg(t & 1, X) + j}")
        for (t, X, j) in cvts:
            s = Sreg(t & 1, X) + j
            rest.append(f"v_cvt_pk_bf16_f32 v{Preg(t & 1, X) + (j >> 1)}, v{s - 1}, v{s}")
        while exps or rest:
            if exps: out.append(exps.pop(0))
            if rest: out.append(rest.pop(0))
            if rest and not exps: out += rest; rest = []
        return out
    extra = {n: [] for n in range(NG)}
    epi = Epi(g)
    pre = epi.address_setup()
    for k, ins in enumerate(pre):
        extra[200 + k // 2].append(ins)
    wa = epi.lwrite(0) + epi.owrite(0)
    lastA_add = max(n for n in range(NG) for (t, X, j) in plan[n] if X == 0) + 1
    startA = max(iB + 2, lastA_add + 1)
    for k, ins in enumerate(wa):
        extra[min(NG - 4, startA + k)].append(ins)
    issued = 32
    for n, (k, t, i, X) in enumerate(ops):
        p = pos_of[(k, t, i)]
        if n in (0, 16, 32, 128, 240): A.c(f"---- mfma {n}: {k}{t} i{i} X{X}")
        if first[p] == n:
            w = f"s_waitcnt vmcnt({issued - 1 - p})"
            if k == "K" and t == 0:
                nq = min(7, i + 3) - i
                w += f" lgkmcnt({2 * nq})"
            A(w)
        frag = ring(p)
        if k == "K":
            S = vr(Sreg(t & 1, X), 16)
            C = "0" if i == 0 else S
            A(f"v_mfma_f32_32x32x16_bf16 {S}, {frag}, {Qreg(X, i)}, {C}")
        else:
            j, ks = i & 3, i >> 2
            O = Oreg(X, j)
            C = "0" if (t == 0 and ks == 0) else O
            A(f"v_mfma_f32_32x32x16_bf16 {O}, {frag}, {vr(Preg(t & 1, X) + 4 * ks, 4)}, {C}")
        fl = fillers(n)
        if last[p] == n and issued < 128 and p + 32 == issued:
            fl.insert(min(1, len(fl)), ring_load(seq, issued, rmod)); issued += 1
        if k == "K" and t == 0 and X == 1 and i + 4 <= 7:
            for XX in range(2):
                fl.append(f"ds_read_b128 {Qreg(XX, i + 4)}, v{8 + ((i + 4) & 3)} offset:{(XX * 8 + i + 4) * 1024}")
        fl += extra[n]
        for l in fl: A(l)
    assert issued == 128
    assert not st["cvt"]
    for (t, X, j) in st["add"]:
        A(f"v_add_f32 v{V_LA + X}, v{V_LA + X}, v{Sreg(t & 1, X) + j}")
    epi.finish()

class Epi:
    vWr = [None, 8, 9, 10]; vRd = 11; vLw = 12; vLr = 13; vX = 14
    TA = V_S
    TL = 64
    PK = 72
    RX = 80
    def __init__(self, g): self.g = g; self.A = g.A; self.opt = g.opt
    def address_setup(self):
        L = []
        for j in range(1, 4):
            L += [f"s_add_u32 s9, s{S_W}, {j}", "s_and_b32 s9, s9, 3", "s_mul_i32 s9, s9, 12288",
                  f"s_add_u32 s9, s9, {RED_A + (j - 1) * 4096}", f"v_add_u32 v{self.vWr[j]}, s9, v{V_LANE16}"]
        L += [f"s_mul_i32 s9, s{S_W}, 12288", f"s_add_u32 s9, s9, {RED_A}", f"v_add_u32 v{self.vRd}, s9, v{V_LANE16}"]
        L += ["v_and_b32 v15, 31, v0", f"v_lshlrev_b32 v{self.vLr}, 5, v15", f"v_add_u32 v{self.vLr}, {LRED}, v{self.vLr}",
              "v_lshrrev_b32 v15, 5, v0", f"v_lshl_add_u32 v{self.vLw}, v15, 2, v{self.vLr}",
              f"s_lshl_b32 s9, s{S_W}, 3", f"v_add_u32 v{self.vLw}, s9, v{self.vLw}",
              f"v_lshlrev_b32 v{self.vX}, 2, v0"]
        L += ["s_xor_b32 s46, s44, 8192", "s_xor_b32 s47, s45, 1024"]
        L += [f"s_lshl_b32 s9, s{S_H}, 6", f"s_lshl_b32 s10, s{S_QT}, 1", "s_add_u32 s9, s9, s10", f"s_add_u32 s9, s9, s{S_SP}",
              "s_lshl_b32 s9, s9, 13", f"s_lshl_b32 s10, s{S_W}, 6", "s_add_u32 s42, s9, s10",
              "v_and_b32 v15, 31, v0", "v_lshlrev_b32 v15, 8, v15"]
        L += [f"s_mov_b32 s{S_OUT}, s{S_OUTP}", f"s_and_b32 s{S_OUT+1}, s{S_OUTP+1}, 0xffff", f"s_mov_b32 s{S_OUT+2}, {2 << 20}", f"s_mov_b32 s{S_OUT+3}, 0x20000"]
        return L
    def lwrite(self, X):
        return [f"ds_write_b32 v{self.vLw}, v{V_LA + X} offset:{X * 1024}"]
    def owrite(self, X):
        L = []
        for j in range(1, 4):
            for qd in range(4):
                a = A_O + X * 48 + (j - 1) * 16 + qd * 4
                L.append(f"ds_write_b128 v{self.vWr[j]}, {ar(a, 4)} offset:{X * RED_BOFF + qd * 1024}")
        return L
    def oread(self, X):
        L = [f"ds_read_b128 {vr(self.TL, 4)}, v{self.vLr} offset:{X * 1024}",
             f"ds_read_b128 {vr(self.TL + 4, 4)}, v{self.vLr} offset:{X * 1024 + 16}"]
        for j in range(1, 4):
            for qd in range(4):
                L.append(f"ds_read_b128 {vr(self.TA + (j - 1) * 16 + qd * 4, 4)}, v{self.vRd} offset:{X * RED_BOFF + (j - 1) * 4096 + qd * 1024}")
        return L
    def sums(self, X):
        A = self.A; TL = self.TL; O = V_O0 + 16 * X
        A(f"v_add_f32 v{TL}, v{TL}, v{TL + 1}")
        A(f"v_add_f32 v{TL + 2}, v{TL + 2}, v{TL + 3}")
        A(f"v_add_f32 v{TL + 4}, v{TL + 4}, v{TL + 5}")
        A(f"v_add_f32 v{TL + 6}, v{TL + 6}, v{TL + 7}")
        A(f"v_add_f32 v{TL}, v{TL}, v{TL + 2}")
        A(f"v_add_f32 v{TL + 4}, v{TL + 4}, v{TL + 6}")
        A(f"v_add_f32 v{V_LA + X}, v{TL}, v{TL + 4}")
        for j in range(3):
            for r in range(0, 16, 2):
                A(f"v_pk_add_f32 {vr(O + r, 2)}, {vr(O + r, 2)}, {vr(self.TA + j * 16 + r, 2)}")
    def finish(self):
        g, A, opt = self.g, self.A, self.opt
        PK, RX = self.PK, self.RX
        A.c("==== epilogue")
        g.stamp(8)
        A("s_waitcnt lgkmcnt(0)")
        A("s_barrier")
        for l in self.oread(0): A(l)
        for l in self.lwrite(1): A(l)
        A("s_nop 4")
        wb = self.owrite(1)
        A("s_waitcnt lgkmcnt(1)")
        for l in wb: A(l)
        self.sums(0)
        for k in range(8):
            A(f"v_cvt_pk_bf16_f32 v{PK + k}, v{V_O0 + 2 * k}, v{V_O0 + 2 * k + 1}")
        ws = f"s[{S_WS}:{S_WS+3}]"
        A(f"buffer_store_dwordx4 {vr(PK, 4)}, v{V_LANE16}, {ws}, s46 offen sc1")
        A(f"buffer_store_dwordx4 {vr(PK + 4, 4)}, v{V_LANE16}, {ws}, s46 offen offset:1024 sc1")
        A(f"buffer_store_dword v{V_LA}, v{self.vX}, {ws}, s47 offen sc1")
        g.stamp(9)
        A("s_waitcnt lgkmcnt(0)")
        A("s_barrier")
        for l in self.oread(1): A(l)
        A("s_mov_b32 s10, 0")
        A.label("L_POLL")
        A(f"buffer_load_dwordx4 {vr(RX, 4)}, v{V_LANE16}, {ws}, s44 offen sc1")
        A(f"buffer_load_dwordx4 {vr(RX + 4, 4)}, v{V_LANE16}, {ws}, s44 offen offset:1024 sc1")
        A(f"buffer_load_dword v{RX + 8}, v{self.vX}, {ws}, s45 offen sc1")
        A("s_cmp_lg_u32 s10, 0")
        A("s_cbranch_scc1 L_POLLW")
        A("s_waitcnt lgkmcnt(0)")
        self.sums(1)
        A.label("L_POLLW")
        A("s_waitcnt vmcnt(0)")
        A(f"v_max3_u32 v90, v{RX}, v{RX + 1}, v{RX + 2}")
        A(f"v_max3_u32 v91, v{RX + 3}, v{RX + 4}, v{RX + 5}")
        A(f"v_max3_u32 v92, v{RX + 6}, v{RX + 7}, v{RX + 8}")
        A("v_max3_u32 v90, v90, v91, v92")
        A("s_add_u32 s10, s10, 1")
        A("v_cmp_eq_u32 vcc, -1, v90")
        A(f"s_cmp_ge_u32 s10, {opt.get('maxpoll2', 200)}")
        A("s_cbranch_scc1 L_FALLBACK")
        A("s_cbranch_vccnz L_POLL")
        g.stamp(10)
        if opt.get("stamp"): A(f"s_mov_b32 s{ST0 + 2*11 + 1}, s10")
        O = V_O0 + 16
        for k in range(8):
            A(f"v_lshlrev_b32 v{16 + 2 * k}, 16, v{RX + k}")
            A(f"v_and_b32 v{17 + 2 * k}, 0xffff0000, v{RX + k}")
        A(f"v_add_f32 v{V_LB}, v{V_LB}, v{RX + 8}")
        for r in range(0, 16, 2):
            A(f"v_pk_add_f32 {vr(O + r, 2)}, {vr(O + r, 2)}, {vr(16 + r, 2)}")
        A(f"v_rcp_f32 v32, v{V_LB}")
        A("v_mov_b32 v33, 0")
        for r in range(16):
            A(f"v_fma_f32 v33, v{O + r}, 0, v33")
        A(f"s_mov_b32 s9, {F(2.0 ** -30)}")
        A(f"s_mov_b32 s10, {F(2.0 ** 30)}")
        A(f"v_cmp_le_f32 s[46:47], s9, v{V_LB}")
        A(f"v_cmp_ge_f32 s[8:9], s10, v{V_LB}")
        A("v_cmp_o_f32 vcc, v33, v33")
        A("s_and_b64 s[46:47], s[46:47], s[8:9]")
        A("s_nop 1")
        A("s_and_b64 s[46:47], s[46:47], vcc")
        A("s_cmp_eq_u64 s[46:47], exec")
        A("s_cbranch_scc0 L_FALLBACK")
        for r in range(16):
            A(f"v_mul_f32 v{O + r}, v{O + r}, v32")
        A.label("L_STORE")
        for k in range(8):
            A(f"v_cvt_pk_bf16_f32 v{PK + k}, v{O + 2 * k}, v{O + 2 * k + 1}")
        A("v_lshrrev_b32 v34, 5, v0")
        A("v_lshl_add_u32 v35, v34, 5, v15")
        A(f"buffer_store_dwordx4 {vr(PK, 4)}, v35, s[{S_OUT}:{S_OUT+3}], s42 offen")
        A(f"buffer_store_dwordx4 {vr(PK + 4, 4)}, v35, s[{S_OUT}:{S_OUT+3}], s42 offen offset:16")
        if opt.get("stamp"):
            A("s_waitcnt vmcnt(0)")
            g.stamp(12)
            A("s_waitcnt lgkmcnt(0)")
            A("s_lshl_b32 s98, s2, 2")
            A(f"s_add_u32 s98, s98, s{S_W}")
            A("s_lshl_b32 s98, s98, 7")
            A(f"s_add_u32 s98, s98, {WS_STAMP}")
            A("v_mov_b32 v174, s98")
            A("s_mov_b64 exec, 1")
            for i in range(13):
                A(f"v_mov_b32 v175, s{ST0 + 2 * i}")
                A(f"global_store_dword v174, v175, s[38:39] offset:{4 * i}")
            A(f"v_mov_b32 v175, s{ST0 + 2*11 + 1}")
            A(f"global_store_dword v174, v175, s[38:39] offset:{4 * 13}")
        A.label("L_END")
        A("s_endpgm")

def gen_fallback(g):
    A, opt = g.A, g.opt
    S = 16; P = 32; XL = 40; KS = 48; KZ = 50; CS = 52; SN = 56; U = 60; KF = 68; QF = 72; WV = 76
    VX = 80; VS = 88; VZ = 96; VF = 104
    M, L, T0, T1, POS, vM, vH, vA = 108, 109, 110, 111, 144, 145, 146, 147
    vKo, vSo, vVo, vVso = 148, 149, 150, 151
    O = V_O0 + 16
    A.label("L_FALLBACK_EARLY")
    for l in Epi(g).address_setup(): A(l)
    A.label("L_FALLBACK")
    A("s_waitcnt vmcnt(0) lgkmcnt(0)")
    A(f"s_load_dwordx16 s[{S_ARG}:{S_ARG+15}], s[0:1], 0")
    A(f"v_and_b32 v{vM}, 31, v0")
    A(f"v_lshrrev_b32 v{vH}, 5, v0")
    A(f"v_lshlrev_b32 v{vKo}, 9, v{vM}")
    A(f"v_lshl_add_u32 v{vKo}, v{vH}, 4, v{vKo}")
    A(f"v_lshlrev_b32 v{vSo}, 3, v{vM}")
    A(f"v_bfe_u32 v{T0}, v{vM}, 2, 1")
    A(f"v_lshlrev_b32 v{T0}, 4, v{T0}")
    A(f"v_lshrrev_b32 v{T1}, 3, v{vM}")
    A(f"v_lshl_add_u32 v{T0}, v{T1}, 2, v{T0}")
    A(f"v_and_b32 v{T1}, 3, v{vM}")
    A(f"v_add_u32 v{T0}, v{T0}, v{T1}")
    A(f"s_lshl_b32 s9, s{S_W}, 5")
    A(f"v_add_u32 v{T0}, s9, v{T0}")
    A(f"v_lshlrev_b32 v{T0}, 2, v{T0}")
    A(f"v_lshl_add_u32 v{vVo}, v{vH}, 11, v{T0}")
    A(f"s_lshl_b32 s9, s{S_W}, 1")
    A(f"v_lshlrev_b32 v{vVso}, 5, v{vH}")
    A(f"v_add_u32 v{vVso}, s9, v{vVso}")
    A(f"v_mov_b32 v{M}, 0xff800000")
    A(f"v_mov_b32 v{L}, 0")
    for r in range(16): A(f"v_mov_b32 v{O + r}, 0")
    A("s_waitcnt lgkmcnt(0)")
    A(f"s_lshl_b32 s8, s{S_H}, 20")
    A(f"s_lshl_b32 s9, s{S_H}, 14")
    add64(A, 22, 22, "s8"); add64(A, 28, 28, "s8")
    add64(A, 24, 24, "s9"); add64(A, 26, 26, "s9"); add64(A, 30, 30, "s9"); add64(A, 32, 32, "s9")
    A("s_mov_b32 s48, 0")
    A.label("L_FB_TILE")
    A(f"global_load_dwordx2 {vr(KS, 2)}, v{vSo}, s[24:25]")
    A(f"global_load_dwordx2 {vr(KZ, 2)}, v{vSo}, s[26:27]")
    A("s_lshl_b32 s49, s48, 5")
    A(f"v_add_u32 v{POS}, s49, v{vM}")
    A(f"v_cvt_f32_u32 v{POS}, v{POS}")
    for r in range(16): A(f"v_mov_b32 v{S + r}, 0")
    A("s_mov_b32 s50, 0")
    A.label("L_FB_KS")
    A("s_lshl_b32 s51, s50, 5")
    A(f"v_add_u32 v{vA}, s51, v{vKo}")
    A(f"global_load_dwordx4 {vr(XL, 4)}, v{vA}, s[22:23]")
    A(f"global_load_dwordx4 {vr(XL + 4, 4)}, v{vA}, s[22:23] offset:256")
    A("s_and_b32 s51, s50, 3")
    A("s_lshl_b32 s51, s51, 1")
    A(f"v_add_u32 v{vA}, s51, v{vH}")
    A(f"v_xor_b32 v{vA}, v{vA}, v0")
    A(f"v_lshlrev_b32 v{vA}, 4, v{vA}")
    A("s_lshl_b32 s51, s50, 10")
    A("s_add_u32 s51, s51, 8192")
    A(f"v_add_u32 v{vA}, s51, v{vA}")
    A(f"ds_read_b128 {vr(QF, 4)}, v{vA}")
    A("s_lshl_b32 s51, s50, 1")
    A(f"v_add_u32 v{T0}, s51, v{vH}")
    A(f"v_lshlrev_b32 v{T0}, 2, v{T0}")
    A(f"v_cvt_f32_u32 v{T0}, v{T0}")
    A(f"s_mov_b32 s51, {F(TRIG_A)}")
    for j in range(4): A(f"v_mov_b32 v{WV + j}, {F(TRIG_B + j * TRIG_A)}")
    for j in range(4): A(f"v_fma_f32 v{WV + j}, v{T0}, s51, v{WV + j}")
    for j in range(4): A(f"v_exp_f32 v{WV + j}, v{WV + j}")
    A("s_nop 0")
    for j in range(4): A(f"v_mul_f32 v{WV + j}, v{POS}, v{WV + j}")
    for j in range(4): A(f"v_fract_f32 v{WV + j}, v{WV + j}")
    for j in range(4):
        A(f"v_cos_f32 v{CS + j}, v{WV + j}")
        A(f"v_sin_f32 v{SN + j}, v{WV + j}")
    A("s_cmp_lt_u32 s50, 4")
    A("s_cselect_b32 s51, 16, 0")
    A("s_waitcnt vmcnt(0) lgkmcnt(0)")
    for k, src in enumerate((KS, KS + 1, KZ, KZ + 1)):
        A(f"v_lshlrev_b32 v{U + k}, s51, v{src}")
    for k in range(4): A(f"v_and_b32 v{WV + k}, 0xffff0000, v{U + k}")
    for j in range(8): A(f"v_cvt_f32_i32 v{XL + j}, v{XL + j}")
    for j in range(8): A(f"v_sub_f32 v{XL + j}, v{XL + j}, v{WV + 2 + (j >> 2)}")
    for j in range(8): A(f"v_mul_f32 v{XL + j}, v{XL + j}, v{WV + (j >> 2)}")
    for j in range(4):
        A(f"v_mul_f32 v{U + j}, v{XL + 4 + j}, v{SN + j}")
        A(f"v_mul_f32 v{U + 4 + j}, v{XL + j}, v{SN + j}")
    for j in range(4):
        A(f"v_fma_f32 v{U + j}, v{XL + j}, v{CS + j}, -v{U + j}")
        A(f"v_fma_f32 v{U + 4 + j}, v{XL + 4 + j}, v{CS + j}, v{U + 4 + j}")
    for k in range(4): A(f"v_cvt_pk_bf16_f32 v{KF + k}, v{U + 2 * k}, v{U + 2 * k + 1}")
    A("s_nop 1")
    A(f"v_mfma_f32_32x32x16_bf16 {vr(S, 16)}, {vr(KF, 4)}, {vr(QF, 4)}, {vr(S, 16)}")
    A("s_nop 15")
    A("s_add_u32 s50, s50, 1")
    A("s_cmp_lt_u32 s50, 8")
    A("s_cbranch_scc1 L_FB_KS")
    A(f"v_max3_f32 v{T0}, v{S}, v{S + 1}, v{S + 2}")
    for r in range(3, 15, 2): A(f"v_max3_f32 v{T0}, v{T0}, v{S + r}, v{S + r + 1}")
    A(f"v_max_f32 v{T0}, v{T0}, v{S + 15}")
    A(f"v_mov_b32 v{T1}, v{T0}")
    A("s_nop 1")
    A(f"v_permlane32_swap_b32 v{T0}, v{T1}")
    A("s_nop 1")
    A(f"v_max3_f32 v{T0}, v{T0}, v{T1}, v{M}")
    A(f"v_sub_f32 v{T1}, v{M}, v{T0}")
    A(f"v_exp_f32 v{T1}, v{T1}")
    A(f"v_mov_b32 v{M}, v{T0}")
    for r in range(16): A(f"v_sub_f32 v{S + r}, v{S + r}, v{T0}")
    for r in range(16): A(f"v_exp_f32 v{S + r}, v{S + r}")
    A(f"v_mul_f32 v{L}, v{L}, v{T1}")
    for r in range(16): A(f"v_mul_f32 v{O + r}, v{O + r}, v{T1}")
    for r in range(16): A(f"v_add_f32 v{L}, v{L}, v{S + r}")
    for k in range(8): A(f"v_cvt_pk_bf16_f32 v{P + k}, v{S + 2 * k}, v{S + 2 * k + 1}")
    for kst in range(2):
        A(f"v_add_u32 v{vA}, {kst * 8192}, v{vVo}")
        A(f"v_add_u32 v{T0}, {kst * 8192 + 4096}, v{vVo}")
        for i in range(8):
            A(f"global_load_dword v{VX + i}, v{vA if i < 4 else T0}, s[28:29] offset:{(i & 3) * 512}")
        for i in range(8):
            ro = (16 * kst + 8 * (i >> 2) + (i & 3)) * 8
            A(f"global_load_ushort v{VS + i}, v{vVso}, s[30:31] offset:{ro}")
            A(f"global_load_ushort v{VZ + i}, v{vVso}, s[32:33] offset:{ro}")
        A("s_waitcnt vmcnt(0)")
        for i in range(8):
            A(f"v_cvt_f32_i32 v{VX + i}, v{VX + i}")
            A(f"v_lshlrev_b32 v{VS + i}, 16, v{VS + i}")
            A(f"v_lshlrev_b32 v{VZ + i}, 16, v{VZ + i}")
        for i in range(8): A(f"v_sub_f32 v{VX + i}, v{VX + i}, v{VZ + i}")
        for i in range(8): A(f"v_mul_f32 v{VX + i}, v{VX + i}, v{VS + i}")
        for k in range(4): A(f"v_cvt_pk_bf16_f32 v{VF + k}, v{VX + 2 * k}, v{VX + 2 * k + 1}")
        A("s_nop 1")
        A(f"v_mfma_f32_32x32x16_bf16 {vr(O, 16)}, {vr(VF, 4)}, {vr(P + 4 * kst, 4)}, {vr(O, 16)}")
        A("s_nop 15")
    add64(A, 22, 22, 16384); add64(A, 28, 28, 16384)
    add64(A, 24, 24, 256); add64(A, 26, 26, 256); add64(A, 30, 30, 256); add64(A, 32, 32, 256)
    A("s_add_u32 s48, s48, 1")
    A("s_cmp_lt_u32 s48, 64")
    A("s_cbranch_scc1 L_FB_TILE")
    A(f"v_mov_b32 v{T1}, v{L}")
    A("s_nop 1")
    A(f"v_permlane32_swap_b32 v{L}, v{T1}")
    A("s_nop 1")
    A(f"v_add_f32 v{L}, v{L}, v{T1}")
    A(f"v_rcp_f32 v{L}, v{L}")
    A("s_nop 0")
    for r in range(16): A(f"v_mul_f32 v{O + r}, v{O + r}, v{L}")
    A("s_branch L_STORE")

def kd(A, name, vgpr, sgpr, accum):
    A(f".amdhsa_kernel {name}")
    A(f"  .amdhsa_next_free_vgpr {vgpr}")
    A(f"  .amdhsa_next_free_sgpr {sgpr}")
    A(f"  .amdhsa_accum_offset {accum}")
    A("  .amdhsa_group_segment_fixed_size 0")
    A("  .amdhsa_kernarg_size 112")
    A("  .amdhsa_user_sgpr_count 2")
    A("  .amdhsa_user_sgpr_kernarg_segment_ptr 1")
    A("  .amdhsa_system_sgpr_workgroup_id_x 1")
    A(".end_amdhsa_kernel")

HEADER = open("cdna_kernels/" + NAME + ".s.ref").read().split("; Override launch geometry")[0]

def generate(opt):
    g = G(opt); A = g.A
    A(HEADER.rstrip("\n"))
    A(f"; @launch grid=(256,1,1) block=(256,1,1) lds={LDS_BYTES}")
    A('.amdgcn_target "amdgcn-amd-amdhsa--gfx950"')
    A(".text")
    A(f".globl {KNAME}\n.p2align 8\n.type {KNAME},@function")
    A.label(KNAME)
    n0 = len(A.lines)
    gen_prologue(g)
    if opt.get("force_fallback"): A("s_branch L_FALLBACK_EARLY")
    gen_main(g)
    n1 = len(A.lines)
    gen_fallback(g)
    n2 = len(A.lines)
    A('.section .rodata,"a"\n.p2align 6')
    kd(A, KNAME, NVGPR_ARCH + 256, 102 if opt.get("stamp") else 72, NVGPR_ARCH)
    L = A.lines
    errs = check(L[n0:n1], "main") + check(L[n1:n2], "fallback")
    return A.text(), errs

if __name__ == "__main__":
    opt = {}
    for a in sys.argv[2:]:
        k, v = a.split("=")
        try: v = int(v)
        except ValueError: pass
        opt[k] = v
    txt, errs = generate(opt)
    out = sys.argv[1]
    open(out, "w").write(txt)
    print("wrote", out, len(txt), "bytes;", len(errs), "check problems")
```

```python
import sys, math, struct
from asmlib import Asm, vr, ar, sr, check

NAME = "standalone__kv_cache_quant_pre_rope_vs_post_rope__prompt"
KNAME = NAME + "_kernel"

WS_KV = 0
WS_X  = 4 << 20
WS_L  = 6 << 20
WS_SIZE = (6 << 20) + (256 << 10)
WS_STAMP = 12 << 20

def f32bits(x): return struct.unpack("<I", struct.pack("<f", x))[0]
def F(x): return f"0x{f32bits(x):08x}"
QSCALE = math.log2(math.e) / math.sqrt(128.0)
TRIG_A = -math.log2(10000.0) / 64.0
TRIG_B = -math.log2(2 * math.pi)

LDS_Q = 0
RED_A = 16384
RED_BOFF = 49152
LRED = 114688
LFAIL = 116736
LDS_BYTES = 116736 + 64

S_W, S_H, S_SP, S_QT, S_G = 3, 4, 5, 6, 7
S_WS = 12
S_OUT = 16
S_ARG = 20
S_DBG = 36
S_OUTP = 40
S_TILE = 48
S_XCC = 64
ST0 = 66

V_LANE16 = 1
V_OFFV = 2
V_LA, V_LB = 6, 7
V_S = 16
V_P = 80
V_O0 = 112
V_RING = 144
A_O = 0
A_Q = 96
A_RING = 160
NVGPR_ARCH = 176

def Sreg(par, X): return V_S + (par * 2 + X) * 16
def Preg(par, X): return V_P + (par * 2 + X) * 8
def Oreg(X, j):
    if j == 0: return vr(V_O0 + 16 * X, 16)
    return ar(A_O + X * 48 + (j - 1) * 16, 16)
def Qreg(X, ks): return ar(A_Q + (X * 8 + ks) * 4, 4)
def ring(p):
    s = p % 32
    return ar(A_RING + s * 4, 4) if s < 24 else vr(V_RING + (s - 24) * 4, 4)

class G:
    def __init__(self, opt):
        self.opt = opt; self.A = Asm(); self.nst = 0
    def stamp(self, idx):
        o = self.opt
        if o.get("stamp"):
            self.A(f"{'s_memtime' if o['stamp'] == 2 else 's_memrealtime'} s[{ST0 + 2*idx}:{ST0 + 2*idx + 1}]")
    def stamp_wait(self):
        if self.opt.get("stamp"): self.A("s_waitcnt lgkmcnt(0)")

def srd(A, d, b, nbytes):
    A(f"s_mov_b32 s{d}, s{b}")
    A(f"s_and_b32 s{d+1}, s{b+1}, 0xffff")
    A(f"s_mov_b32 s{d+2}, {nbytes}")
    A(f"s_mov_b32 s{d+3}, 0x20000")

def add64(A, d, b, off):
    A(f"s_add_u32 s{d}, s{b}, {off}")
    A(f"s_addc_u32 s{d+1}, s{b+1}, 0")

def stream():
    seq = [("K", 0, i) for i in range(8)]
    for t in range(7):
        seq += [("K", t + 1, i) for i in range(8)]
        seq += [("V", t, i) for i in range(8)]
    seq += [("V", 7, i) for i in range(8)]
    return seq

def ring_load(seq, p, mod=""):
    kind, t, i = seq[p]
    dst = ring(p)
    if kind == "K":
        so = f"s{S_TILE + 2 * t + (i >> 2)}"
        return f"buffer_load_dwordx4 {dst}, v{V_LANE16}, s[{S_WS}:{S_WS+3}], {so} offen offset:{(i & 3) * 1024} {mod}".rstrip()
    j, ks = i & 3, i >> 2
    so = f"s{S_TILE + 2 * t}"
    return f"buffer_load_dwordx4 {dst}, v{V_OFFV + j}, s[{S_WS}:{S_WS+3}], {so} offen offset:{ks * 1024} {mod}".rstrip()

def gen_prologue(g):
    A, opt = g.A, g.opt
    ldmod = opt.get("raw_load_mod", "")
    kvmod = opt.get("kv_store_mod", "sc1")
    vC, vR0, vK0, vK1, vKs, vVd, vVs, vQd = 8, 9, 10, 11, 12, 13, 14, 15
    vKst, vQw, vSel, vX4 = 16, 17, 18, 19
    W = 20; CK, SK, CQ, SQ = 24, 32, 40, 56
    KD, KSC, KZ = 72, 88, 92
    VD, VSC, VZ = 96, 112, 120
    SENT = 128
    T = 132
    g.stamp(0)
    A("s_cmp_ge_u32 s2, 256")
    A("s_cbranch_scc1 L_END")
    A(f"s_load_dwordx16 s[{S_ARG}:{S_ARG+15}], s[0:1], 0")
    A(f"s_load_dwordx4 s[{S_DBG}:{S_DBG+3}], s[0:1], 96")
    A(f"s_load_dwordx2 s[{S_OUTP}:{S_OUTP+1}], s[0:1], 88")
    A("v_lshrrev_b32 v8, 6, v0")
    A("v_and_b32 v0, 63, v0")
    A(f"v_readfirstlane_b32 s{S_W}, v8")
    A(f"s_getreg_b32 s{S_XCC}, hwreg(HW_REG_XCC_ID, 0, 4)")
    A(f"v_lshlrev_b32 v{V_LANE16}, 4, v0")
    A("s_and_b32 s8, s2, 7")
    A(f"s_lshr_b32 s{S_H}, s8, 1")
    A(f"s_and_b32 s{S_SP}, s8, 1")
    A(f"s_lshr_b32 s{S_QT}, s2, 3")
    A(f"s_lshl_b32 s8, s{S_H}, 6")
    A(f"s_lshl_b32 s9, s{S_SP}, 5")
    A("s_add_u32 s8, s8, s9")
    A(f"s_add_u32 s{S_G}, s8, s{S_QT}")
    A(f"v_and_b32 v{vC}, 15, v0")
    A(f"v_lshrrev_b32 v{vR0}, 4, v0")
    A(f"s_lshl_b32 s9, s{S_W}, 2")
    A(f"v_add_u32 v{vR0}, s9, v{vR0}")
    A(f"v_lshlrev_b32 v{vK0}, 9, v{vR0}")
    A(f"v_lshl_add_u32 v{vK0}, v{vC}, 4, v{vK0}")
    A(f"v_add_u32 v{vK1}, 8192, v{vK0}")
    A(f"v_lshlrev_b32 v{vKs}, 3, v{vR0}")
    A(f"v_and_b32 v{T}, 31, v0")
    A(f"v_lshrrev_b32 v{T+1}, 5, v0")
    A(f"v_bfe_u32 v{T+2}, v{T}, 2, 1")
    A(f"v_lshlrev_b32 v{T+2}, 4, v{T+2}")
    A(f"v_lshrrev_b32 v{T+3}, 3, v{T}")
    A(f"v_lshl_add_u32 v{T+2}, v{T+3}, 2, v{T+2}")
    A(f"v_and_b32 v{T+3}, 3, v{T}")
    A(f"v_add_u32 v{T+2}, v{T+2}, v{T+3}")
    A(f"s_and_b32 s10, s{S_W}, 1")
    A(f"s_lshr_b32 s11, s{S_W}, 1")
    A("s_lshl_b32 s9, s10, 4")
    A(f"v_lshlrev_b32 v{T+1}, 2, v{T+1}")
    A(f"v_add_u32 v{T+1}, s9, v{T+1}")
    A("s_lshl_b32 s9, s11, 8")
    A("s_add_u32 s9, s9, 2048")
    A(f"v_lshlrev_b32 v{vVd}, 9, v{T+1}")
    A(f"v_lshl_add_u32 v{vVd}, v{T+2}, 2, v{vVd}")
    A(f"v_add_u32 v{vVd}, s9, v{vVd}")
    A("s_lshl_b32 s9, s11, 2")
    A(f"v_lshlrev_b32 v{vVs}, 3, v{T+1}")
    A(f"v_add_u32 v{vVs}, s9, v{vVs}")
    A(f"s_lshl_b32 s42, s{S_G}, 14")
    A(f"s_lshl_b32 s43, s{S_G}, 8")
    A("s_waitcnt lgkmcnt(0)")
    g.stamp(1)
    add64(A, 22, 22, "s42")
    add64(A, 24, 24, "s43")
    add64(A, 26, 26, "s43")
    add64(A, 28, 28, "s42")
    add64(A, 30, 30, "s43")
    add64(A, 32, 32, "s43")
    for it in range(2):
        vo = vK0 if it == 0 else vK1
        A(f"global_load_dwordx4 {vr(KD + 8*it, 4)}, v{vo}, s[22:23] {ldmod}")
        A(f"global_load_dwordx4 {vr(KD + 8*it + 4, 4)}, v{vo}, s[22:23] offset:256 {ldmod}")
        A(f"global_load_dwordx2 {vr(KSC + 2*it, 2)}, v{vKs}, s[24:25] offset:{it*128}")
        A(f"global_load_dwordx2 {vr(KZ + 2*it, 2)}, v{vKs}, s[26:27] offset:{it*128}")
    for i in range(8):
        for dbl in range(2):
            off = (i >> 2) * 4096 + (i & 3) * 512 + dbl * 128 - 2048
            A(f"global_load_dword v{VD + 2*i + dbl}, v{vVd}, s[28:29] offset:{off} {ldmod}")
    for i in range(8):
        ro = (8 * (i >> 2) + (i & 3)) * 8
        A(f"global_load_dword v{VSC + i}, v{vVs}, s[30:31] offset:{ro}")
        A(f"global_load_dword v{VZ + i}, v{vVs}, s[32:33] offset:{ro}")
    NPRE = 0
    if opt.get("flag_preread", 1):
        A(f"v_mov_b32 v{T}, s8")
        A(f"global_load_dword v175, v{T}, s[{S_DBG}:{S_DBG+1}] sc1")
        NPRE = 1
    srd(A, S_WS, 38, WS_SIZE)
    for j in range(4): A(f"v_mov_b32 v{SENT + j}, -1")
    A(f"v_lshlrev_b32 v{vX4}, 2, v0")
    A("s_lshl_b32 s44, s2, 13")
    A(f"s_lshl_b32 s9, s{S_W}, 11")
    A("s_add_u32 s44, s44, s9")
    A(f"s_add_u32 s44, s44, {WS_X}")
    A("s_lshl_b32 s45, s2, 10")
    A(f"s_lshl_b32 s9, s{S_W}, 8")
    A("s_add_u32 s45, s45, s9")
    A(f"s_add_u32 s45, s45, {WS_L}")
    A(f"buffer_store_dwordx4 {vr(SENT, 4)}, v{V_LANE16}, s[{S_WS}:{S_WS+3}], s44 offen sc1")
    A(f"buffer_store_dwordx4 {vr(SENT, 4)}, v{V_LANE16}, s[{S_WS}:{S_WS+3}], s44 offen offset:1024 sc1")
    A(f"buffer_store_dword v{SENT}, v{vX4}, s[{S_WS}:{S_WS+3}], s45 offen sc1")
    NV = 40 + 3 + NPRE
    A(f"v_lshrrev_b32 v{T}, 1, v{vC}")
    A(f"v_lshlrev_b32 v{vKst}, 10, v{T}")
    A(f"v_and_b32 v{T+1}, 1, v{vC}")
    A(f"v_lshl_add_u32 v{vKst}, v{T+1}, 9, v{vKst}")
    A(f"v_lshl_add_u32 v{vKst}, v{vR0}, 4, v{vKst}")
    A(f"v_lshl_add_u32 v{T+1}, v{T+1}, 5, v{vR0}")
    A(f"v_and_b32 v{T+2}, 7, v{vC}")
    A(f"v_xor_b32 v{T+1}, v{T+1}, v{T+2}")
    A(f"v_lshlrev_b32 v{vQw}, 10, v{T}")
    A(f"v_lshl_add_u32 v{vQw}, v{T+1}, 4, v{vQw}")
    A(f"v_lshrrev_b32 v{vSel}, 3, v{vC}")
    A(f"v_lshlrev_b32 v{vSel}, 4, v{vSel}")
    A(f"v_sub_u32 v{vSel}, 16, v{vSel}")
    A(f"v_lshlrev_b32 v{vQd}, 8, v{vR0}")
    A(f"v_lshl_add_u32 v{vQd}, v{vC}, 3, v{vQd}")
    A(f"v_add_u32 v{vQd}, 2048, v{vQd}")
    A(f"s_lshl_b32 s9, s{S_QT}, 1")
    A(f"s_add_u32 s46, s9, s{S_SP}")
    A(f"s_xor_b32 s47, s46, 1")
    A(f"s_lshl_b32 s10, s{S_H}, 6")
    A("s_add_u32 s11, s10, s47")
    A("s_lshl_b32 s11, s11, 13")
    add64(A, 34, 20, "s11")
    A("s_add_u32 s11, s10, s46")
    A("s_lshl_b32 s11, s11, 13")
    add64(A, 20, 20, "s11")
    A(f"v_lshlrev_b32 v{T}, 2, v{vC}")
    A(f"v_cvt_f32_u32 v{T}, v{T}")
    A(f"s_mov_b32 s9, {F(TRIG_A)}")
    for j in range(4):
        A(f"v_mov_b32 v{W+j}, {F(TRIG_B + j * TRIG_A)}")
    for j in range(4):
        A(f"v_fma_f32 v{W+j}, v{T}, s9, v{W+j}")
    for j in range(4):
        A(f"v_exp_f32 v{W+j}, v{W+j}")
    A(f"s_lshl_b32 s9, s{S_SP}, 5")
    A(f"s_add_u32 s9, s9, s{S_QT}")
    A("s_lshl_b32 s9, s9, 5")
    A("s_lshl_b32 s10, s47, 5")
    A("s_lshl_b32 s11, s46, 5")
    P0 = T + 4
    def trig(pos_s, extra, c0, s0, scale):
        A(f"v_add_u32 v{P0}, {pos_s}, v{vR0}")
        if extra: A(f"v_add_u32 v{P0}, {extra}, v{P0}")
        A(f"v_cvt_f32_u32 v{P0}, v{P0}")
        for j in range(4): A(f"v_mul_f32 v{P0+1+j}, v{P0}, v{W+j}")
        for j in range(4): A(f"v_fract_f32 v{P0+1+j}, v{P0+1+j}")
        for j in range(4):
            A(f"v_cos_f32 v{c0+j}, v{P0+1+j}")
            A(f"v_sin_f32 v{s0+j}, v{P0+1+j}")
        if scale:
            A("s_nop 0")
            for j in range(4):
                A(f"v_mul_f32 v{c0+j}, s42, v{c0+j}")
                A(f"v_mul_f32 v{s0+j}, s42, v{s0+j}")
    trig("s9", 0, CK, SK, False)
    trig("s9", 16, CK + 4, SK + 4, False)
    A(f"s_lshl_b32 s43, s{S_G}, 14")
    A(f"s_mov_b32 s42, {F(QSCALE)}")
    trig("s10", 0, CQ, SQ, True); trig("s10", 16, CQ + 4, SQ + 4, True)
    trig("s11", 0, CQ + 8, SQ + 8, True); trig("s11", 16, CQ + 12, SQ + 12, True)
    for j in range(4):
        A(f"s_add_u32 s9, s{S_W}, {j}")
        A("s_and_b32 s9, s9, 3")
        A("s_lshl_b32 s9, s9, 11")
        A("s_add_u32 s9, s9, 8192")
        A(f"v_add_u32 v{V_OFFV + j}, s9, v{V_LANE16}")
    A(f"s_lshl_b32 s9, s{S_W}, 3")
    A("s_add_u32 s8, s8, s9")
    A(f"s_lshl_b32 s{S_TILE}, s8, 14")
    A(f"s_add_u32 s{S_TILE+1}, s{S_TILE}, 4096")
    for t in range(1, 8):
        A(f"s_add_u32 s{S_TILE + 2*t}, s{S_TILE}, {t * 16384}")
        A(f"s_add_u32 s{S_TILE + 2*t + 1}, s{S_TILE}, {t * 16384 + 4096}")
    A(f"s_add_u32 s{S_XCC}, s{S_XCC}, 1")
    A(f"s_mul_i32 s{S_XCC}, s{S_XCC}, 0x01010101")
    A(f"s_and_b32 s9, s{S_W}, 1")
    A("s_lshl_b32 s9, s9, 10")
    A(f"s_lshr_b32 s10, s{S_W}, 1")
    A("s_lshl_b32 s10, s10, 12")
    A("s_add_u32 s9, s9, s10")
    A("s_add_u32 s9, s9, s43")
    A("s_add_u32 s9, s9, 8192")
    def rope(x, c0, s0, out):
        U = T + 8
        for j in range(4):
            A(f"v_mul_f32 v{U+j}, v{x+4+j}, v{s0+j}")
            A(f"v_mul_f32 v{U+4+j}, v{x+j}, v{s0+j}")
        for j in range(4):
            A(f"v_fma_f32 v{U+j}, v{x+j}, v{c0+j}, -v{U+j}")
            A(f"v_fma_f32 v{U+4+j}, v{x+4+j}, v{c0+j}, v{U+4+j}")
        for k in range(4):
            A(f"v_cvt_pk_bf16_f32 v{out+k}, v{U+2*k}, v{U+2*k+1}")
    nst = 0
    for it in range(2):
        younger = NV - 4 * (it + 1) + nst
        A(f"s_waitcnt vmcnt({younger})")
        if it == 0: g.stamp(2)
        x = KD + 8 * it
        sc = T + 16
        for k, src in enumerate((KSC + 2*it, KSC + 2*it + 1, KZ + 2*it, KZ + 2*it + 1)):
            A(f"v_lshlrev_b32 v{sc+k}, v{vSel}, v{src}")
        for j in range(8): A(f"v_cvt_f32_i32 v{x+j}, v{x+j}")
        for k in range(4): A(f"v_and_b32 v{sc+k}, 0xffff0000, v{sc+k}")
        for j in range(8): A(f"v_sub_f32 v{x+j}, v{x+j}, v{sc+2+(j>>2)}")
        for j in range(8): A(f"v_mul_f32 v{x+j}, v{x+j}, v{sc+(j>>2)}")
        out = T + 20 + 4 * it
        rope(x, CK + 4*it, SK + 4*it, out)
        A(f"buffer_store_dwordx4 {vr(out, 4)}, v{vKst}, s[{S_WS}:{S_WS+3}], s43 offen offset:{it*256} {kvmod}")
        nst += 1
    A(f"s_waitcnt vmcnt({3 + NPRE + nst})")
    g.stamp(3)
    U = T + 28
    SL, SH, ZL, ZH = 72, 80, 24, 32
    for i in range(8):
        A(f"v_lshlrev_b32 v{SL+i}, 16, v{VSC+i}")
        A(f"v_and_b32 v{SH+i}, 0xffff0000, v{VSC+i}")
        A(f"v_lshlrev_b32 v{ZL+i}, 16, v{VZ+i}")
        A(f"v_and_b32 v{ZH+i}, 0xffff0000, v{VZ+i}")
    for i in range(8):
        for dbl in range(2): A(f"v_cvt_f32_i32 v{VD+2*i+dbl}, v{VD+2*i+dbl}")
    for i in range(8):
        for dbl in range(2): A(f"v_sub_f32 v{VD+2*i+dbl}, v{VD+2*i+dbl}, v{(ZL, ZH)[dbl]+i}")
    for i in range(8):
        for dbl in range(2): A(f"v_mul_f32 v{VD+2*i+dbl}, v{VD+2*i+dbl}, v{(SL, SH)[dbl]+i}")
    for dbl in range(2):
        O = T + 28 + 4 * dbl
        for k in range(4):
            A(f"v_cvt_pk_bf16_f32 v{O+k}, v{VD+(2*k)*2+dbl}, v{VD+(2*k+1)*2+dbl}")
        A(f"buffer_store_dwordx4 {vr(O, 4)}, v{V_LANE16}, s[{S_WS}:{S_WS+3}], s9 offen offset:{dbl*2048} {kvmod}")
    QD = 72
    for X in range(2):
        base = "s[34:35]" if X == 0 else "s[20:21]"
        for it in range(2):
            r = QD + (X * 2 + it) * 4
            A(f"global_load_dwordx2 {vr(r, 2)}, v{vQd}, {base} offset:{it*4096 - 2048} {ldmod}")
            A(f"global_load_dwordx2 {vr(r + 2, 2)}, v{vQd}, {base} offset:{it*4096 - 2048 + 128} {ldmod}")
    A(f"v_mov_b32 v{T}, s{S_G}")
    A(f"v_mov_b32 v{T+1}, s{S_XCC}")
    A(f"v_mov_b32 v{T+2}, s8")
    A("s_waitcnt vmcnt(8)")
    g.stamp(4)
    A("s_barrier")
    A("s_mov_b64 exec, 1")
    A(f"global_store_byte v{T}, v{T+1}, s[{S_DBG}:{S_DBG+1}]")
    FL = T + 4
    assert FL % 2 == 0
    A(f"global_load_dwordx2 {vr(FL, 2)}, v{T+2}, s[{S_DBG}:{S_DBG+1}] sc1")
    A("s_mov_b64 exec, -1")
    A("s_waitcnt vmcnt(2)")
    g.stamp(5)
    for pc in range(4):
        X, it = pc >> 1, pc & 1
        r = QD + pc * 4
        x = 96 + 8 * (pc & 1)
        for hh in range(2):
            for k in range(2):
                A(f"v_lshlrev_b32 v{x+4*hh+2*k}, 16, v{r+2*hh+k}")
                A(f"v_and_b32 v{x+4*hh+2*k+1}, 0xffff0000, v{r+2*hh+k}")
        out = T + 20 + 4 * (pc & 1)
        rope(x, CQ + 4*pc, SQ + 4*pc, out)
        A(f"ds_write_b128 v{vQw}, {vr(out, 4)} offset:{X*8192 + it*256}")
    A("s_mov_b32 s10, 0")
    A("s_mov_b32 s11, 0")
    A.label("L_FPOLL")
    A("s_waitcnt vmcnt(0)")
    A("s_mov_b64 exec, 1")
    A(f"v_cmp_ne_u32 vcc, s{S_XCC}, v{FL}")
    A(f"v_cmp_ne_u32 s[46:47], s{S_XCC}, v{FL+1}")
    A("s_nop 0")
    A("s_or_b64 vcc, vcc, s[46:47]")
    A("s_cbranch_vccz L_FOK")
    A("s_add_u32 s10, s10, 1")
    A(f"s_cmp_ge_u32 s10, {opt.get('maxpoll1', 400)}")
    A("s_cbranch_scc1 L_FTIMEOUT")
    A(f"global_load_dwordx2 {vr(FL, 2)}, v{T+2}, s[{S_DBG}:{S_DBG+1}] sc1")
    A("s_branch L_FPOLL")
    A.label("L_FTIMEOUT")
    A("s_mov_b32 s11, 1")
    A.label("L_FOK")
    A("s_mov_b64 exec, -1")
    g.stamp(6)
    if opt.get("stamp"): A(f"s_mov_b32 s{ST0 + 2*11}, s10")
    seq = stream()
    rmod = opt.get("ring_mod", "")
    for p in range(32): A(ring_load(seq, p, rmod))
    A(f"s_lshl_b32 s10, s{S_W}, 2")
    A(f"s_add_u32 s10, s10, {LFAIL}")
    A(f"v_mov_b32 v{T}, s10")
    A(f"v_mov_b32 v{T+1}, s11")
    A(f"ds_write_b32 v{T}, v{T+1}")
    A(f"v_lshrrev_b32 v{T+2}, 5, v0")
    for k in range(4):
        A(f"v_add_u32 v{8+k}, {2*k}, v{T+2}")
        A(f"v_xor_b32 v{8+k}, v{8+k}, v0")
        A(f"v_lshlrev_b32 v{8+k}, 4, v{8+k}")
    A(f"v_mov_b32 v{T}, {LFAIL}")
    A(f"v_mov_b32 v{V_LA}, 0")
    A(f"v_mov_b32 v{V_LB}, 0")
    A("s_waitcnt lgkmcnt(0)")
    A("s_barrier")
    A(f"ds_read_b128 {vr(T+8, 4)}, v{T}")
    for ks in range(4):
        for X in range(2):
            A(f"ds_read_b128 {Qreg(X, ks)}, v{8 + (ks & 3)} offset:{(X * 8 + ks) * 1024}")
    A("s_waitcnt lgkmcnt(8)")
    A(f"v_or3_b32 v{T+8}, v{T+8}, v{T+9}, v{T+10}")
    A(f"v_or_b32 v{T+8}, v{T+8}, v{T+11}")
    A("s_nop 0")
    A(f"v_readfirstlane_b32 s10, v{T+8}")
    A("s_cmp_lg_u32 s10, 0")
    A("s_cbranch_scc1 L_FALLBACK_EARLY")
    g.stamp(7)
    g.stamp_wait()

def gen_main(g):
    A, opt = g.A, g.opt
    if opt.get("align64"): A(".p2align 6")
    for _ in range(opt.get("prenop", 0)): A("s_nop 0")
    seq = stream()
    rmod = opt.get("ring_mod", "")
    pos_of = {(k, t, i): p for p, (k, t, i) in enumerate(seq)}
    ops = []
    def phase(kind, t, Xs=(0, 1)):
        if len(Xs) == 2:
            for i in range(8):
                for X in (0, 1): ops.append((kind, t, i, X))
        else:
            for i in range(8): ops.append((kind, t, i, Xs[0]))
    phase("K", 0)
    for t in range(6):
        phase("K", t + 1); phase("V", t)
    phase("K", 7)
    phase("V", 6, (0,)); phase("V", 7, (0,))
    iB = len(ops)
    phase("V", 6, (1,)); phase("V", 7, (1,))
    NG = len(ops); assert NG == 256
    first, last = {}, {}
    for n, (k, t, i, X) in enumerate(ops):
        p = pos_of[(k, t, i)]
        first.setdefault(p, n); last[p] = n
    lastS = {}
    for n, (k, t, i, X) in enumerate(ops):
        if k == "K": lastS[(t, X)] = n
    firstP = {}
    for n, (k, t, i, X) in enumerate(ops):
        if k == "V": firstP.setdefault((t, X, i >> 2), n)
    tasks = []
    for t in range(8):
        if t < 7:
            order = [(0, 0), (1, 0), (0, 1), (1, 1)]
        else:
            order = [(0, 0), (0, 1), (1, 0), (1, 1)]
        if t == 6: order = [(0, 0), (0, 1), (1, 0), (1, 1)]
        for X, half in order:
            for j in range(8 * half, 8 * half + 8): tasks.append((t, X, j))
    def avail(t, X):
        lag = opt.get("lag0", 5) if t == 0 else opt.get("lag", 3)
        return lastS[(t, X)] + lag + (0 if X == 1 else 1)
    def deadline(t, X, j): return firstP[(t, X, j >> 3)]
    plan = [[] for _ in range(NG)]
    MARG = 3
    CAP = opt.get("cap", 2)
    LS = [0] * len(tasks); cnt = {}; nxt = 10 ** 9
    for k in range(len(tasks) - 1, -1, -1):
        t, X, j = tasks[k]
        gg = min(deadline(t, X, j) - MARG, nxt)
        while cnt.get(gg, 0) >= CAP: gg -= 1
        cnt[gg] = cnt.get(gg, 0) + 1
        LS[k] = gg; nxt = gg
    done = 0
    for gg in range(NG):
        n = 0
        while done < len(tasks) and avail(tasks[done][0], tasks[done][1]) <= gg and (n < 1 or LS[done] <= gg):
            plan[gg].append(tasks[done]); done += 1; n += 1
        if done < len(tasks): assert LS[done] > gg, ("deadline miss", gg, tasks[done], LS[done])
    assert done == len(tasks)
    if opt.get("show_plan"):
        print("elements per gap:", "".join(str(len(x)) for x in plan), file=sys.stderr)
    st = dict(add=[], cvt=[])
    E64 = "_e64" if opt.get("e64") else ""
    def fillers(gg):
        out = []
        adds, cvts = st["add"], st["cvt"]
        st["add"], st["cvt"] = [], []
        exps = []
        for (t, X, j) in plan[gg]:
            s = Sreg(t & 1, X) + j
            exps.append(f"v_exp_f32{E64} v{s}, v{s}")
            st["add"].append((t, X, j))
            if j & 1: st["cvt"].append((t, X, j))
        rest = []
        for (t, X, j) in adds:
            rest.append(f"v_add_f32{E64} v{V_LA + X}, v{V_LA + X}, v{Sreg(t & 1, X) + j}")
        for (t, X, j) in cvts:
            s = Sreg(t & 1, X) + j
            rest.append(f"v_cvt_pk_bf16_f32 v{Preg(t & 1, X) + (j >> 1)}, v{s - 1}, v{s}")
        while exps or rest:
            if exps: out.append(exps.pop(0))
            if rest: out.append(rest.pop(0))
            if rest and not exps: out += rest; rest = []
        return out
    extra = {n: [] for n in range(NG)}
    epi = Epi(g)
    pre = epi.address_setup()
    for k, ins in enumerate(pre):
        extra[200 + k // 2].append(ins)
    wa = epi.lwrite(0) + epi.owrite(0)
    lastA_add = max(n for n in range(NG) for (t, X, j) in plan[n] if X == 0) + 1
    startA = max(iB + 2, lastA_add + 1)
    for k, ins in enumerate(wa):
        extra[min(NG - 4, startA + k)].append(ins)
    issued = 32
    for n, (k, t, i, X) in enumerate(ops):
        p = pos_of[(k, t, i)]
        if n in (0, 16, 32, 128, 240): A.c(f"---- mfma {n}: {k}{t} i{i} X{X}")
        if opt.get("stamp") and opt.get("loopstamp") and n in (32, 64, 96, 128, 160, 192, 224):
            g.stamp(n // 32)
        if first[p] == n:
            w = f"s_waitcnt vmcnt({issued - 1 - p})"
            if k == "K" and t == 0:
                nq = min(7, i + 3) - i
                w += f" lgkmcnt({2 * nq})"
            A(w)
            if opt.get("e64"): A("s_nop 0")
        frag = ring(p)
        if k == "K":
            S = vr(Sreg(t & 1, X), 16)
            C = "0" if i == 0 else S
            A(f"v_mfma_f32_32x32x16_bf16 {S}, {frag}, {Qreg(X, i)}, {C}")
        else:
            j, ks = i & 3, i >> 2
            O = Oreg(X, j)
            C = "0" if (t == 0 and ks == 0) else O
            A(f"v_mfma_f32_32x32x16_bf16 {O}, {frag}, {vr(Preg(t & 1, X) + 4 * ks, 4)}, {C}")
        fl = fillers(n)
        if last[p] == n and issued < 128 and p + 32 == issued:
            fl.insert(min(1, len(fl)), ring_load(seq, issued, rmod)); issued += 1
        if k == "K" and t == 0 and X == 1 and i + 4 <= 7:
            for XX in range(2):
                fl.append(f"ds_read_b128 {Qreg(XX, i + 4)}, v{8 + ((i + 4) & 3)} offset:{(XX * 8 + i + 4) * 1024}")
        fl += extra[n]
        for l in fl: A(l)
    assert issued == 128
    assert not st["cvt"]
    for (t, X, j) in st["add"]:
        A(f"v_add_f32 v{V_LA + X}, v{V_LA + X}, v{Sreg(t & 1, X) + j}")
    epi.finish()

class Epi:
    vWr = [None, 8, 9, 10]; vRd = 11; vLw = 12; vLr = 13; vX = 14
    TA = V_S
    TL = 64
    PK = 72
    RX = 80
    def __init__(self, g): self.g = g; self.A = g.A; self.opt = g.opt
    def address_setup(self):
        L = []
        for j in range(1, 4):
            L += [f"s_add_u32 s9, s{S_W}, {j}", "s_and_b32 s9, s9, 3", "s_mul_i32 s9, s9, 12288",
                  f"s_add_u32 s9, s9, {RED_A + (j - 1) * 4096}", f"v_add_u32 v{self.vWr[j]}, s9, v{V_LANE16}"]
        L += [f"s_mul_i32 s9, s{S_W}, 12288", f"s_add_u32 s9, s9, {RED_A}", f"v_add_u32 v{self.vRd}, s9, v{V_LANE16}"]
        L += ["v_and_b32 v15, 31, v0", f"v_lshlrev_b32 v{self.vLr}, 5, v15", f"v_add_u32 v{self.vLr}, {LRED}, v{self.vLr}",
              "v_lshrrev_b32 v15, 5, v0", f"v_lshl_add_u32 v{self.vLw}, v15, 2, v{self.vLr}",
              f"s_lshl_b32 s9, s{S_W}, 3", f"v_add_u32 v{self.vLw}, s9, v{self.vLw}",
              f"v_lshlrev_b32 v{self.vX}, 2, v0"]
        L += ["s_xor_b32 s46, s44, 8192", "s_xor_b32 s47, s45, 1024"]
        L += [f"s_lshl_b32 s9, s{S_H}, 6", f"s_lshl_b32 s10, s{S_QT}, 1", "s_add_u32 s9, s9, s10", f"s_add_u32 s9, s9, s{S_SP}",
              "s_lshl_b32 s9, s9, 13", f"s_lshl_b32 s10, s{S_W}, 6", "s_add_u32 s42, s9, s10",
              "v_and_b32 v15, 31, v0", "v_lshlrev_b32 v15, 8, v15"]
        L += [f"s_mov_b32 s{S_OUT}, s{S_OUTP}", f"s_and_b32 s{S_OUT+1}, s{S_OUTP+1}, 0xffff", f"s_mov_b32 s{S_OUT+2}, {2 << 20}", f"s_mov_b32 s{S_OUT+3}, 0x20000"]
        return L
    def lwrite(self, X):
        return [f"ds_write_b32 v{self.vLw}, v{V_LA + X} offset:{X * 1024}"]
    def owrite(self, X):
        L = []
        for j in range(1, 4):
            for qd in range(4):
                a = A_O + X * 48 + (j - 1) * 16 + qd * 4
                L.append(f"ds_write_b128 v{self.vWr[j]}, {ar(a, 4)} offset:{X * RED_BOFF + qd * 1024}")
        return L
    def oread(self, X):
        L = [f"ds_read_b128 {vr(self.TL, 4)}, v{self.vLr} offset:{X * 1024}",
             f"ds_read_b128 {vr(self.TL + 4, 4)}, v{self.vLr} offset:{X * 1024 + 16}"]
        for j in range(1, 4):
            for qd in range(4):
                L.append(f"ds_read_b128 {vr(self.TA + (j - 1) * 16 + qd * 4, 4)}, v{self.vRd} offset:{X * RED_BOFF + (j - 1) * 4096 + qd * 1024}")
        return L
    def sums(self, X):
        A = self.A; TL = self.TL; O = V_O0 + 16 * X
        A(f"v_add_f32 v{TL}, v{TL}, v{TL + 1}")
        A(f"v_add_f32 v{TL + 2}, v{TL + 2}, v{TL + 3}")
        A(f"v_add_f32 v{TL + 4}, v{TL + 4}, v{TL + 5}")
        A(f"v_add_f32 v{TL + 6}, v{TL + 6}, v{TL + 7}")
        A(f"v_add_f32 v{TL}, v{TL}, v{TL + 2}")
        A(f"v_add_f32 v{TL + 4}, v{TL + 4}, v{TL + 6}")
        A(f"v_add_f32 v{V_LA + X}, v{TL}, v{TL + 4}")
        for j in range(3):
            for r in range(0, 16, 2):
                A(f"v_pk_add_f32 {vr(O + r, 2)}, {vr(O + r, 2)}, {vr(self.TA + j * 16 + r, 2)}")
    def finish(self):
        g, A, opt = self.g, self.A, self.opt
        PK, RX = self.PK, self.RX
        A.c("==== epilogue")
        g.stamp(8)
        A("s_waitcnt lgkmcnt(0)")
        A("s_barrier")
        for l in self.oread(0): A(l)
        for l in self.lwrite(1): A(l)
        A("s_nop 4")
        wb = self.owrite(1)
        A("s_waitcnt lgkmcnt(1)")
        for l in wb: A(l)
        self.sums(0)
        for k in range(8):
            A(f"v_cvt_pk_bf16_f32 v{PK + k}, v{V_O0 + 2 * k}, v{V_O0 + 2 * k + 1}")
        ws = f"s[{S_WS}:{S_WS+3}]"
        A(f"buffer_store_dwordx4 {vr(PK, 4)}, v{V_LANE16}, {ws}, s46 offen sc1")
        A(f"buffer_store_dwordx4 {vr(PK + 4, 4)}, v{V_LANE16}, {ws}, s46 offen offset:1024 sc1")
        A(f"buffer_store_dword v{V_LA}, v{self.vX}, {ws}, s47 offen sc1")
        g.stamp(9)
        A("s_waitcnt lgkmcnt(0)")
        A("s_barrier")
        for l in self.oread(1): A(l)
        A("s_mov_b32 s10, 0")
        A.label("L_POLL")
        A(f"buffer_load_dwordx4 {vr(RX, 4)}, v{V_LANE16}, {ws}, s44 offen sc1")
        A(f"buffer_load_dwordx4 {vr(RX + 4, 4)}, v{V_LANE16}, {ws}, s44 offen offset:1024 sc1")
        A(f"buffer_load_dword v{RX + 8}, v{self.vX}, {ws}, s45 offen sc1")
        A("s_cmp_lg_u32 s10, 0")
        A("s_cbranch_scc1 L_POLLW")
        A("s_waitcnt lgkmcnt(0)")
        self.sums(1)
        A.label("L_POLLW")
        A("s_waitcnt vmcnt(0)")
        A(f"v_max3_u32 v90, v{RX}, v{RX + 1}, v{RX + 2}")
        A(f"v_max3_u32 v91, v{RX + 3}, v{RX + 4}, v{RX + 5}")
        A(f"v_max3_u32 v92, v{RX + 6}, v{RX + 7}, v{RX + 8}")
        A("v_max3_u32 v90, v90, v91, v92")
        A("s_add_u32 s10, s10, 1")
        A("v_cmp_eq_u32 vcc, -1, v90")
        A(f"s_cmp_ge_u32 s10, {opt.get('maxpoll2', 200)}")
        A("s_cbranch_scc1 L_FALLBACK")
        A("s_cbranch_vccnz L_POLL")
        g.stamp(10)
        if opt.get("stamp"): A(f"s_mov_b32 s{ST0 + 2*11 + 1}, s10")
        O = V_O0 + 16
        for k in range(8):
            A(f"v_lshlrev_b32 v{16 + 2 * k}, 16, v{RX + k}")
            A(f"v_and_b32 v{17 + 2 * k}, 0xffff0000, v{RX + k}")
        A(f"v_add_f32 v{V_LB}, v{V_LB}, v{RX + 8}")
        for r in range(0, 16, 2):
            A(f"v_pk_add_f32 {vr(O + r, 2)}, {vr(O + r, 2)}, {vr(16 + r, 2)}")
        A(f"v_rcp_f32 v32, v{V_LB}")
        A("v_mov_b32 v33, 0")
        for r in range(16):
            A(f"v_fma_f32 v33, v{O + r}, 0, v33")
        A(f"s_mov_b32 s9, {F(2.0 ** -30)}")
        A(f"s_mov_b32 s10, {F(2.0 ** 30)}")
        A(f"v_cmp_le_f32 s[46:47], s9, v{V_LB}")
        A(f"v_cmp_ge_f32 s[8:9], s10, v{V_LB}")
        A("v_cmp_o_f32 vcc, v33, v33")
        A("s_and_b64 s[46:47], s[46:47], s[8:9]")
        A("s_nop 1")
        A("s_and_b64 s[46:47], s[46:47], vcc")
        A("s_cmp_eq_u64 s[46:47], exec")
        A("s_cbranch_scc0 L_FALLBACK")
        for r in range(16):
            A(f"v_mul_f32 v{O + r}, v{O + r}, v32")
        A.label("L_STORE")
        for k in range(8):
            A(f"v_cvt_pk_bf16_f32 v{PK + k}, v{O + 2 * k}, v{O + 2 * k + 1}")
        A("v_lshrrev_b32 v34, 5, v0")
        A("v_lshl_add_u32 v35, v34, 5, v15")
        A(f"buffer_store_dwordx4 {vr(PK, 4)}, v35, s[{S_OUT}:{S_OUT+3}], s42 offen")
        A(f"buffer_store_dwordx4 {vr(PK + 4, 4)}, v35, s[{S_OUT}:{S_OUT+3}], s42 offen offset:16")
        if opt.get("stamp"):
            A("s_waitcnt vmcnt(0)")
            g.stamp(12)
            A("s_waitcnt lgkmcnt(0)")
            A("s_lshl_b32 s98, s2, 2")
            A(f"s_add_u32 s98, s98, s{S_W}")
            A("s_lshl_b32 s98, s98, 7")
            A(f"s_add_u32 s98, s98, {WS_STAMP}")
            A("v_mov_b32 v174, s98")
            A("s_mov_b64 exec, 1")
            for i in range(13):
                A(f"v_mov_b32 v175, s{ST0 + 2 * i}")
                A(f"global_store_dword v174, v175, s[38:39] offset:{4 * i}")
            A(f"v_mov_b32 v175, s{ST0 + 2*11 + 1}")
            A(f"global_store_dword v174, v175, s[38:39] offset:{4 * 13}")
        A.label("L_END")
        A("s_endpgm")

def gen_fallback(g):
    A, opt = g.A, g.opt
    S = 16; P = 32; XL = 40; KS = 48; KZ = 50; CS = 52; SN = 56; U = 60; KF = 68; QF = 72; WV = 76
    VX = 80; VS = 88; VZ = 96; VF = 104
    M, L, T0, T1, POS, vM, vH, vA = 108, 109, 110, 111, 144, 145, 146, 147
    vKo, vSo, vVo, vVso = 148, 149, 150, 151
    O = V_O0 + 16
    A.label("L_FALLBACK_EARLY")
    for l in Epi(g).address_setup(): A(l)
    A.label("L_FALLBACK")
    A("s_waitcnt vmcnt(0) lgkmcnt(0)")
    A(f"s_load_dwordx16 s[{S_ARG}:{S_ARG+15}], s[0:1], 0")
    A(f"v_and_b32 v{vM}, 31, v0")
    A(f"v_lshrrev_b32 v{vH}, 5, v0")
    A(f"v_lshlrev_b32 v{vKo}, 9, v{vM}")
    A(f"v_lshl_add_u32 v{vKo}, v{vH}, 4, v{vKo}")
    A(f"v_lshlrev_b32 v{vSo}, 3, v{vM}")
    A(f"v_bfe_u32 v{T0}, v{vM}, 2, 1")
    A(f"v_lshlrev_b32 v{T0}, 4, v{T0}")
    A(f"v_lshrrev_b32 v{T1}, 3, v{vM}")
    A(f"v_lshl_add_u32 v{T0}, v{T1}, 2, v{T0}")
    A(f"v_and_b32 v{T1}, 3, v{vM}")
    A(f"v_add_u32 v{T0}, v{T0}, v{T1}")
    A(f"s_lshl_b32 s9, s{S_W}, 5")
    A(f"v_add_u32 v{T0}, s9, v{T0}")
    A(f"v_lshlrev_b32 v{T0}, 2, v{T0}")
    A(f"v_lshl_add_u32 v{vVo}, v{vH}, 11, v{T0}")
    A(f"s_lshl_b32 s9, s{S_W}, 1")
    A(f"v_lshlrev_b32 v{vVso}, 5, v{vH}")
    A(f"v_add_u32 v{vVso}, s9, v{vVso}")
    A(f"v_mov_b32 v{M}, 0xff800000")
    A(f"v_mov_b32 v{L}, 0")
    for r in range(16): A(f"v_mov_b32 v{O + r}, 0")
    A("s_waitcnt lgkmcnt(0)")
    A(f"s_lshl_b32 s8, s{S_H}, 20")
    A(f"s_lshl_b32 s9, s{S_H}, 14")
    add64(A, 22, 22, "s8"); add64(A, 28, 28, "s8")
    add64(A, 24, 24, "s9"); add64(A, 26, 26, "s9"); add64(A, 30, 30, "s9"); add64(A, 32, 32, "s9")
    A("s_mov_b32 s48, 0")
    A.label("L_FB_TILE")
    A(f"global_load_dwordx2 {vr(KS, 2)}, v{vSo}, s[24:25]")
    A(f"global_load_dwordx2 {vr(KZ, 2)}, v{vSo}, s[26:27]")
    A("s_lshl_b32 s49, s48, 5")
    A(f"v_add_u32 v{POS}, s49, v{vM}")
    A(f"v_cvt_f32_u32 v{POS}, v{POS}")
    for r in range(16): A(f"v_mov_b32 v{S + r}, 0")
    A("s_mov_b32 s50, 0")
    A.label("L_FB_KS")
    A("s_lshl_b32 s51, s50, 5")
    A(f"v_add_u32 v{vA}, s51, v{vKo}")
    A(f"global_load_dwordx4 {vr(XL, 4)}, v{vA}, s[22:23]")
    A(f"global_load_dwordx4 {vr(XL + 4, 4)}, v{vA}, s[22:23] offset:256")
    A("s_and_b32 s51, s50, 3")
    A("s_lshl_b32 s51, s51, 1")
    A(f"v_add_u32 v{vA}, s51, v{vH}")
    A(f"v_xor_b32 v{vA}, v{vA}, v0")
    A(f"v_lshlrev_b32 v{vA}, 4, v{vA}")
    A("s_lshl_b32 s51, s50, 10")
    A("s_add_u32 s51, s51, 8192")
    A(f"v_add_u32 v{vA}, s51, v{vA}")
    A(f"ds_read_b128 {vr(QF, 4)}, v{vA}")
    A("s_lshl_b32 s51, s50, 1")
    A(f"v_add_u32 v{T0}, s51, v{vH}")
    A(f"v_lshlrev_b32 v{T0}, 2, v{T0}")
    A(f"v_cvt_f32_u32 v{T0}, v{T0}")
    A(f"s_mov_b32 s51, {F(TRIG_A)}")
    for j in range(4): A(f"v_mov_b32 v{WV + j}, {F(TRIG_B + j * TRIG_A)}")
    for j in range(4): A(f"v_fma_f32 v{WV + j}, v{T0}, s51, v{WV + j}")
    for j in range(4): A(f"v_exp_f32 v{WV + j}, v{WV + j}")
    A("s_nop 0")
    for j in range(4): A(f"v_mul_f32 v{WV + j}, v{POS}, v{WV + j}")
    for j in range(4): A(f"v_fract_f32 v{WV + j}, v{WV + j}")
    for j in range(4):
        A(f"v_cos_f32 v{CS + j}, v{WV + j}")
        A(f"v_sin_f32 v{SN + j}, v{WV + j}")
    A("s_cmp_lt_u32 s50, 4")
    A("s_cselect_b32 s51, 16, 0")
    A("s_waitcnt vmcnt(0) lgkmcnt(0)")
    for k, src in enumerate((KS, KS + 1, KZ, KZ + 1)):
        A(f"v_lshlrev_b32 v{U + k}, s51, v{src}")
    for k in range(4): A(f"v_and_b32 v{WV + k}, 0xffff0000, v{U + k}")
    for j in range(8): A(f"v_cvt_f32_i32 v{XL + j}, v{XL + j}")
    for j in range(8): A(f"v_sub_f32 v{XL + j}, v{XL + j}, v{WV + 2 + (j >> 2)}")
    for j in range(8): A(f"v_mul_f32 v{XL + j}, v{XL + j}, v{WV + (j >> 2)}")
    for j in range(4):
        A(f"v_mul_f32 v{U + j}, v{XL + 4 + j}, v{SN + j}")
        A(f"v_mul_f32 v{U + 4 + j}, v{XL + j}, v{SN + j}")
    for j in range(4):
        A(f"v_fma_f32 v{U + j}, v{XL + j}, v{CS + j}, -v{U + j}")
        A(f"v_fma_f32 v{U + 4 + j}, v{XL + 4 + j}, v{CS + j}, v{U + 4 + j}")
    for k in range(4): A(f"v_cvt_pk_bf16_f32 v{KF + k}, v{U + 2 * k}, v{U + 2 * k + 1}")
    A("s_nop 1")
    A(f"v_mfma_f32_32x32x16_bf16 {vr(S, 16)}, {vr(KF, 4)}, {vr(QF, 4)}, {vr(S, 16)}")
    A("s_nop 15")
    A("s_add_u32 s50, s50, 1")
    A("s_cmp_lt_u32 s50, 8")
    A("s_cbranch_scc1 L_FB_KS")
    A(f"v_max3_f32 v{T0}, v{S}, v{S + 1}, v{S + 2}")
    for r in range(3, 15, 2): A(f"v_max3_f32 v{T0}, v{T0}, v{S + r}, v{S + r + 1}")
    A(f"v_max_f32 v{T0}, v{T0}, v{S + 15}")
    A(f"v_mov_b32 v{T1}, v{T0}")
    A("s_nop 1")
    A(f"v_permlane32_swap_b32 v{T0}, v{T1}")
    A("s_nop 1")
    A(f"v_max3_f32 v{T0}, v{T0}, v{T1}, v{M}")
    A(f"v_sub_f32 v{T1}, v{M}, v{T0}")
    A(f"v_exp_f32 v{T1}, v{T1}")
    A(f"v_mov_b32 v{M}, v{T0}")
    for r in range(16): A(f"v_sub_f32 v{S + r}, v{S + r}, v{T0}")
    for r in range(16): A(f"v_exp_f32 v{S + r}, v{S + r}")
    A(f"v_mul_f32 v{L}, v{L}, v{T1}")
    for r in range(16): A(f"v_mul_f32 v{O + r}, v{O + r}, v{T1}")
    for r in range(16): A(f"v_add_f32 v{L}, v{L}, v{S + r}")
    for k in range(8): A(f"v_cvt_pk_bf16_f32 v{P + k}, v{S + 2 * k}, v{S + 2 * k + 1}")
    for kst in range(2):
        A(f"v_add_u32 v{vA}, {kst * 8192}, v{vVo}")
        A(f"v_add_u32 v{T0}, {kst * 8192 + 4096}, v{vVo}")
        for i in range(8):
            A(f"global_load_dword v{VX + i}, v{vA if i < 4 else T0}, s[28:29] offset:{(i & 3) * 512}")
        for i in range(8):
            ro = (16 * kst + 8 * (i >> 2) + (i & 3)) * 8
            A(f"global_load_ushort v{VS + i}, v{vVso}, s[30:31] offset:{ro}")
            A(f"global_load_ushort v{VZ + i}, v{vVso}, s[32:33] offset:{ro}")
        A("s_waitcnt vmcnt(0)")
        for i in range(8):
            A(f"v_cvt_f32_i32 v{VX + i}, v{VX + i}")
            A(f"v_lshlrev_b32 v{VS + i}, 16, v{VS + i}")
            A(f"v_lshlrev_b32 v{VZ + i}, 16, v{VZ + i}")
        for i in range(8): A(f"v_sub_f32 v{VX + i}, v{VX + i}, v{VZ + i}")
        for i in range(8): A(f"v_mul_f32 v{VX + i}, v{VX + i}, v{VS + i}")
        for k in range(4): A(f"v_cvt_pk_bf16_f32 v{VF + k}, v{VX + 2 * k}, v{VX + 2 * k + 1}")
        A("s_nop 1")
        A(f"v_mfma_f32_32x32x16_bf16 {vr(O, 16)}, {vr(VF, 4)}, {vr(P + 4 * kst, 4)}, {vr(O, 16)}")
        A("s_nop 15")
    add64(A, 22, 22, 16384); add64(A, 28, 28, 16384)
    add64(A, 24, 24, 256); add64(A, 26, 26, 256); add64(A, 30, 30, 256); add64(A, 32, 32, 256)
    A("s_add_u32 s48, s48, 1")
    A("s_cmp_lt_u32 s48, 64")
    A("s_cbranch_scc1 L_FB_TILE")
    A(f"v_mov_b32 v{T1}, v{L}")
    A("s_nop 1")
    A(f"v_permlane32_swap_b32 v{L}, v{T1}")
    A("s_nop 1")
    A(f"v_add_f32 v{L}, v{L}, v{T1}")
    A(f"v_rcp_f32 v{L}, v{L}")
    A("s_nop 0")
    for r in range(16): A(f"v_mul_f32 v{O + r}, v{O + r}, v{L}")
    A("s_branch L_STORE")

def kd(A, name, vgpr, sgpr, accum):
    A(f".amdhsa_kernel {name}")
    A(f"  .amdhsa_next_free_vgpr {vgpr}")
    A(f"  .amdhsa_next_free_sgpr {sgpr}")
    A(f"  .amdhsa_accum_offset {accum}")
    A("  .amdhsa_group_segment_fixed_size 0")
    A("  .amdhsa_kernarg_size 112")
    A("  .amdhsa_user_sgpr_count 2")
    A("  .amdhsa_user_sgpr_kernarg_segment_ptr 1")
    A("  .amdhsa_system_sgpr_workgroup_id_x 1")
    A(".end_amdhsa_kernel")

HEADER = open("cdna_kernels/" + NAME + ".s.ref").read().split("; Override launch geometry")[0]

def generate(opt):
    g = G(opt); A = g.A
    A(HEADER.rstrip("\n"))
    A(f"; @launch grid=(256,1,1) block=(256,1,1) lds={LDS_BYTES}")
    A('.amdgcn_target "amdgcn-amd-amdhsa--gfx950"')
    A(".text")
    A(f".globl {KNAME}\n.p2align 8\n.type {KNAME},@function")
    A.label(KNAME)
    n0 = len(A.lines)
    gen_prologue(g)
    if opt.get("force_fallback"): A("s_branch L_FALLBACK_EARLY")
    gen_main(g)
    n1 = len(A.lines)
    gen_fallback(g)
    n2 = len(A.lines)
    A('.section .rodata,"a"\n.p2align 6')
    kd(A, KNAME, NVGPR_ARCH + 256, 102 if opt.get("stamp") else 72, NVGPR_ARCH)
    L = A.lines
    errs = check(L[n0:n1], "main") + check(L[n1:n2], "fallback")
    return A.text(), errs

if __name__ == "__main__":
    opt = {}
    for a in sys.argv[2:]:
        k, v = a.split("=")
        try: v = int(v)
        except ValueError: pass
        opt[k] = v
    txt, errs = generate(opt)
    out = sys.argv[1]
    open(out, "w").write(txt)
    print("wrote", out, len(txt), "bytes;", len(errs), "check problems")
```

```python
import sys, math, struct
from asmlib import Asm, vr, ar, sr, check

NAME = "standalone__kv_cache_quant_pre_rope_vs_post_rope__prompt"
KNAME = NAME + "_kernel"

WS_KV = 0
WS_X  = 4 << 20
WS_L  = 6 << 20
WS_F  = 7 << 20
WS_SIZE = 8 << 20
WS_STAMP = 12 << 20

def f32bits(x): return struct.unpack("<I", struct.pack("<f", x))[0]
def F(x): return f"0x{f32bits(x):08x}"
QSCALE = math.log2(math.e) / math.sqrt(128.0)
TRIG_A = -math.log2(10000.0) / 64.0
TRIG_B = -math.log2(2 * math.pi)

LDS_Q = 0
RED_A = 16384
RED_BOFF = 49152
LRED = 114688
LFAIL = 116736
LDS_BYTES = 116736 + 64

S_W, S_H, S_SP, S_QT, S_G = 3, 4, 5, 6, 7
S_WS = 12
S_OUT = 16
S_ARG = 20
S_DBG = 36
S_OUTP = 40
S_TILE = 48
S_XCC = 64
ST0 = 66

V_LANE16 = 1
V_OFFV = 2
V_LA, V_LB = 6, 7
V_S = 16
V_P = 80
V_O0 = 112
V_RING = 144
A_O = 0
A_Q = 96
A_RING = 160
NVGPR_ARCH = 176

def Sreg(par, X): return V_S + (par * 2 + X) * 16
def Preg(par, X): return V_P + (par * 2 + X) * 8
def Oreg(X, j):
    if j == 0: return vr(V_O0 + 16 * X, 16)
    return ar(A_O + X * 48 + (j - 1) * 16, 16)
def Qreg(X, ks): return ar(A_Q + (X * 8 + ks) * 4, 4)
RINGSZ = 32
def ring(p):
    s = p % RINGSZ
    return ar(A_RING + s * 4, 4) if s < 24 else vr(V_RING + (s - 24) * 4, 4)

class G:
    def __init__(self, opt):
        self.opt = opt; self.A = Asm(); self.nst = 0
    def stamp(self, idx):
        o = self.opt
        if o.get("stamp"):
            self.A(f"{'s_memtime' if o['stamp'] == 2 else 's_memrealtime'} s[{ST0 + 2*idx}:{ST0 + 2*idx + 1}]")
    def stamp_wait(self):
        if self.opt.get("stamp"): self.A("s_waitcnt lgkmcnt(0)")

def srd(A, d, b, nbytes):
    A(f"s_mov_b32 s{d}, s{b}")
    A(f"s_and_b32 s{d+1}, s{b+1}, 0xffff")
    A(f"s_mov_b32 s{d+2}, {nbytes}")
    A(f"s_mov_b32 s{d+3}, 0x20000")

def add64(A, d, b, off):
    A(f"s_add_u32 s{d}, s{b}, {off}")
    A(f"s_addc_u32 s{d+1}, s{b+1}, 0")

def stream():
    seq = [("K", 0, i) for i in range(8)]
    for t in range(7):
        seq += [("K", t + 1, i) for i in range(8)]
        seq += [("V", t, i) for i in range(8)]
    seq += [("V", 7, i) for i in range(8)]
    return seq

def ring_load(seq, p, mod=""):
    kind, t, i = seq[p]
    dst = ring(p)
    if kind == "K":
        so = f"s{S_TILE + 2 * t + (i >> 2)}"
        return f"buffer_load_dwordx4 {dst}, v{V_LANE16}, s[{S_WS}:{S_WS+3}], {so} offen offset:{(i & 3) * 1024} {mod}".rstrip()
    j, ks = i & 3, i >> 2
    so = f"s{S_TILE + 2 * t}"
    return f"buffer_load_dwordx4 {dst}, v{V_OFFV + j}, s[{S_WS}:{S_WS+3}], {so} offen offset:{ks * 1024} {mod}".rstrip()

def gen_prologue(g):
    A, opt = g.A, g.opt
    ldmod = opt.get("raw_load_mod", "")
    kvmod = opt.get("kv_store_mod", "sc1")
    vC, vR0, vK0, vK1, vKs, vVd, vVs, vQd = 8, 9, 10, 11, 12, 13, 14, 15
    vKst, vQw, vSel, vX4 = 16, 17, 18, 19
    W = 20; CK, SK, CQ, SQ = 24, 32, 40, 56
    KD, KSC, KZ = 72, 88, 92
    VD, VSC, VZ = 96, 112, 120
    SENT = 128
    T = 132
    P0 = T + 4
    def trig(pos_s, extra, c0, s0, scale):
        A(f"v_add_u32 v{P0}, {pos_s}, v{vR0}")
        if extra: A(f"v_add_u32 v{P0}, {extra}, v{P0}")
        A(f"v_cvt_f32_u32 v{P0}, v{P0}")
        for j in range(4): A(f"v_mul_f32 v{P0+1+j}, v{P0}, v{W+j}")
        for j in range(4): A(f"v_fract_f32 v{P0+1+j}, v{P0+1+j}")
        for j in range(4):
            A(f"v_cos_f32 v{c0+j}, v{P0+1+j}")
            A(f"v_sin_f32 v{s0+j}, v{P0+1+j}")
        if scale:
            A("s_nop 0")
            for j in range(0, 4, 2):
                A(f"v_pk_mul_f32 {vr(c0+j, 2)}, {vr(c0+j, 2)}, s[{scale}:{scale+1}]")
                A(f"v_pk_mul_f32 {vr(s0+j, 2)}, {vr(s0+j, 2)}, s[{scale}:{scale+1}]")
    def rope(x, c0, s0, out):
        U = T + 8
        for j in range(0, 4, 2):
            A(f"v_pk_mul_f32 {vr(U+j, 2)}, {vr(x+4+j, 2)}, {vr(s0+j, 2)}")
            A(f"v_pk_mul_f32 {vr(U+4+j, 2)}, {vr(x+j, 2)}, {vr(s0+j, 2)}")
        for j in range(0, 4, 2):
            A(f"v_pk_fma_f32 {vr(U+j, 2)}, {vr(x+j, 2)}, {vr(c0+j, 2)}, {vr(U+j, 2)} neg_lo:[0,0,1] neg_hi:[0,0,1]")
            A(f"v_pk_fma_f32 {vr(U+4+j, 2)}, {vr(x+4+j, 2)}, {vr(c0+j, 2)}, {vr(U+4+j, 2)}")
        for k in range(4):
            A(f"v_cvt_pk_bf16_f32 v{out+k}, v{U+2*k}, v{U+2*k+1}")

    g.stamp(0)
    A("s_cmp_ge_u32 s2, 256")
    A("s_cbranch_scc1 L_END")
    A(f"s_load_dwordx16 s[{S_ARG}:{S_ARG+15}], s[0:1], 0")
    A(f"s_load_dwordx4 s[{S_DBG}:{S_DBG+3}], s[0:1], 96")
    A(f"s_load_dwordx2 s[{S_OUTP}:{S_OUTP+1}], s[0:1], 88")
    A("v_lshrrev_b32 v8, 6, v0")
    A("v_and_b32 v0, 63, v0")
    A(f"v_readfirstlane_b32 s{S_W}, v8")
    A(f"v_lshlrev_b32 v{V_LANE16}, 4, v0")
    A("s_and_b32 s8, s2, 7")
    A(f"s_lshr_b32 s{S_H}, s8, 1")
    A(f"s_and_b32 s{S_SP}, s8, 1")
    A(f"s_lshr_b32 s{S_QT}, s2, 3")
    A(f"s_lshl_b32 s8, s{S_H}, 6")
    A(f"s_lshl_b32 s9, s{S_SP}, 5")
    A("s_add_u32 s8, s8, s9")
    A(f"s_add_u32 s{S_G}, s8, s{S_QT}")
    A(f"v_and_b32 v{vC}, 15, v0")
    A(f"v_lshrrev_b32 v{vR0}, 4, v0")
    A(f"s_lshl_b32 s9, s{S_W}, 2")
    A(f"v_add_u32 v{vR0}, s9, v{vR0}")
    A(f"v_lshlrev_b32 v{vK0}, 9, v{vR0}")
    A(f"v_lshl_add_u32 v{vK0}, v{vC}, 4, v{vK0}")
    A(f"v_add_u32 v{vK1}, 8192, v{vK0}")
    A(f"v_lshlrev_b32 v{vKs}, 3, v{vR0}")
    A(f"v_and_b32 v{T}, 31, v0")
    A(f"v_lshrrev_b32 v{T+1}, 5, v0")
    A(f"v_bfe_u32 v{T+2}, v{T}, 2, 1")
    A(f"v_lshlrev_b32 v{T+2}, 4, v{T+2}")
    A(f"v_lshrrev_b32 v{T+3}, 3, v{T}")
    A(f"v_lshl_add_u32 v{T+2}, v{T+3}, 2, v{T+2}")
    A(f"v_and_b32 v{T+3}, 3, v{T}")
    A(f"v_add_u32 v{T+2}, v{T+2}, v{T+3}")
    A(f"s_and_b32 s10, s{S_W}, 1")
    A(f"s_lshr_b32 s11, s{S_W}, 1")
    A("s_lshl_b32 s9, s10, 4")
    A(f"v_lshlrev_b32 v{T+1}, 2, v{T+1}")
    A(f"v_add_u32 v{T+1}, s9, v{T+1}")
    A("s_lshl_b32 s9, s11, 8")
    A("s_add_u32 s9, s9, 2048")
    A(f"v_lshlrev_b32 v{vVd}, 9, v{T+1}")
    A(f"v_lshl_add_u32 v{vVd}, v{T+2}, 2, v{vVd}")
    A(f"v_add_u32 v{vVd}, s9, v{vVd}")
    A("s_lshl_b32 s9, s11, 2")
    A(f"v_lshlrev_b32 v{vVs}, 3, v{T+1}")
    A(f"v_add_u32 v{vVs}, s9, v{vVs}")
    A(f"s_lshl_b32 s42, s{S_G}, 14")
    A(f"s_lshl_b32 s43, s{S_G}, 8")
    A(f"s_lshl_b32 s9, s8, 3")
    A(f"s_add_u32 s65, s9, {WS_F}")
    A(f"v_mov_b32 v{T+3}, s65")
    A(f"v_lshlrev_b32 v{T}, 2, v{vC}")
    A(f"v_cvt_f32_u32 v{T}, v{T}")
    A(f"s_mov_b32 s9, {F(TRIG_A)}")
    for j in range(4): A(f"v_mov_b32 v{W+j}, {F(TRIG_B + j * TRIG_A)}")
    for j in range(4): A(f"v_fma_f32 v{W+j}, v{T}, s9, v{W+j}")
    for j in range(4): A(f"v_exp_f32 v{W+j}, v{W+j}")
    A(f"s_lshl_b32 s9, s{S_SP}, 5")
    A(f"s_add_u32 s9, s9, s{S_QT}")
    A("s_lshl_b32 s9, s9, 5")
    trig("s9", 0, CK, SK, None)
    A("s_waitcnt lgkmcnt(0)")
    g.stamp(1)
    add64(A, 22, 22, "s42")
    add64(A, 24, 24, "s43")
    add64(A, 26, 26, "s43")
    def kloads(it):
        vo = vK0 if it == 0 else vK1
        A(f"global_load_dwordx4 {vr(KD + 8*it, 4)}, v{vo}, s[22:23] {ldmod}")
        A(f"global_load_dwordx4 {vr(KD + 8*it + 4, 4)}, v{vo}, s[22:23] offset:256 {ldmod}")
        A(f"global_load_dwordx2 {vr(KSC + 2*it, 2)}, v{vKs}, s[24:25] offset:{it*128}")
        A(f"global_load_dwordx2 {vr(KZ + 2*it, 2)}, v{vKs}, s[26:27] offset:{it*128}")
    kloads(0); kloads(1)
    add64(A, 28, 28, "s42")
    add64(A, 30, 30, "s43")
    add64(A, 32, 32, "s43")
    for i in range(8):
        ro = (8 * (i >> 2) + (i & 3)) * 8
        A(f"global_load_dword v{VSC + i}, v{vVs}, s[30:31] offset:{ro}")
        A(f"global_load_dword v{VZ + i}, v{vVs}, s[32:33] offset:{ro}")
    for i in range(8):
        for dbl in range(2):
            off = (i >> 2) * 4096 + (i & 3) * 512 + dbl * 128 - 2048
            A(f"global_load_dword v{VD + 2*i + dbl}, v{vVd}, s[28:29] offset:{off} {ldmod}")
    A(f"global_load_dword v175, v{T+3}, s[38:39] sc1")
    A("s_or_b32 s10, s2, s3")
    A("s_cmp_lg_u32 s10, 0")
    A("s_cbranch_scc1 L_NONONCE")
    A("s_memrealtime s[10:11]")
    A(f"v_mov_b32 v{T+1}, 0")
    A("s_waitcnt lgkmcnt(0)")
    A("s_or_b32 s10, s10, 1")
    A(f"v_mov_b32 v{T+2}, s10")
    A("s_mov_b64 exec, 1")
    A(f"global_store_dword v{T+1}, v{T+2}, s[{S_DBG}:{S_DBG+1}] sc1")
    A("s_mov_b64 exec, -1")
    A.label("L_NONONCE")
    srd(A, S_WS, 38, WS_SIZE)
    A(f"v_lshlrev_b32 v{vX4}, 2, v0")
    A("s_lshl_b32 s44, s2, 13")
    A(f"s_lshl_b32 s10, s{S_W}, 11")
    A("s_add_u32 s44, s44, s10")
    A(f"s_add_u32 s44, s44, {WS_X}")
    A("s_lshl_b32 s45, s2, 10")
    A(f"s_lshl_b32 s10, s{S_W}, 8")
    A("s_add_u32 s45, s45, s10")
    A(f"s_add_u32 s45, s45, {WS_L}")
    NTAIL = 1
    NV = 40 + NTAIL
    trig("s9", 16, CK + 4, SK + 4, None)
    A(f"v_lshrrev_b32 v{T}, 1, v{vC}")
    A(f"v_lshlrev_b32 v{vKst}, 10, v{T}")
    A(f"v_and_b32 v{T+1}, 1, v{vC}")
    A(f"v_lshl_add_u32 v{vKst}, v{T+1}, 9, v{vKst}")
    A(f"v_lshl_add_u32 v{vKst}, v{vR0}, 4, v{vKst}")
    A(f"v_lshl_add_u32 v{T+1}, v{T+1}, 5, v{vR0}")
    A(f"v_and_b32 v{T+2}, 7, v{vC}")
    A(f"v_xor_b32 v{T+1}, v{T+1}, v{T+2}")
    A(f"v_lshlrev_b32 v{vQw}, 10, v{T}")
    A(f"v_lshl_add_u32 v{vQw}, v{T+1}, 4, v{vQw}")
    A(f"v_lshrrev_b32 v{vSel}, 3, v{vC}")
    A(f"v_lshlrev_b32 v{vSel}, 4, v{vSel}")
    A(f"v_sub_u32 v{vSel}, 16, v{vSel}")
    A(f"s_lshl_b32 s43, s{S_G}, 14")
    A(f"s_and_b32 s9, s{S_W}, 1")
    A("s_lshl_b32 s9, s9, 10")
    A(f"s_lshr_b32 s10, s{S_W}, 1")
    A("s_lshl_b32 s10, s10, 12")
    A("s_add_u32 s9, s9, s10")
    A("s_add_u32 s9, s9, s43")
    A("s_add_u32 s9, s9, 8192")
    nst = 0
    for it in range(2):
        A(f"s_waitcnt vmcnt({NV - 4 * (it + 1) + nst})")
        if it == 0: g.stamp(2)
        x = KD + 8 * it
        sc = T + 16
        for k, src in enumerate((KSC + 2*it, KSC + 2*it + 1, KZ + 2*it, KZ + 2*it + 1)):
            A(f"v_lshlrev_b32 v{sc+k}, v{vSel}, v{src}")
        for j in range(8): A(f"v_cvt_f32_i32 v{x+j}, v{x+j}")
        for k in range(4): A(f"v_and_b32 v{sc+k}, 0xffff0000, v{sc+k}")
        for j in range(0, 4, 2):
            A(f"v_pk_add_f32 {vr(x+j, 2)}, {vr(x+j, 2)}, {vr(sc+2, 2)} op_sel_hi:[1,0] neg_lo:[0,1] neg_hi:[0,1]")
            A(f"v_pk_add_f32 {vr(x+4+j, 2)}, {vr(x+4+j, 2)}, {vr(sc+2, 2)} op_sel:[0,1] op_sel_hi:[1,1] neg_lo:[0,1] neg_hi:[0,1]")
        for j in range(0, 4, 2):
            A(f"v_pk_mul_f32 {vr(x+j, 2)}, {vr(x+j, 2)}, {vr(sc, 2)} op_sel_hi:[1,0]")
            A(f"v_pk_mul_f32 {vr(x+4+j, 2)}, {vr(x+4+j, 2)}, {vr(sc, 2)} op_sel:[0,1] op_sel_hi:[1,1]")
        out = T + 20 + 4 * it
        rope(x, CK + 4*it, SK + 4*it, out)
        A(f"buffer_store_dwordx4 {vr(out, 4)}, v{vKst}, s[{S_WS}:{S_WS+3}], s43 offen offset:{it*256} {kvmod}")
        nst += 1
    A(f"s_waitcnt vmcnt({16 + NTAIL + nst})")
    SP_, ZP_ = 72, 24
    for i in range(8):
        A(f"v_lshlrev_b32 v{SP_+2*i}, 16, v{VSC+i}")
        A(f"v_and_b32 v{SP_+2*i+1}, 0xffff0000, v{VSC+i}")
        A(f"v_lshlrev_b32 v{ZP_+2*i}, 16, v{VZ+i}")
        A(f"v_and_b32 v{ZP_+2*i+1}, 0xffff0000, v{VZ+i}")
    A(f"s_waitcnt vmcnt({NTAIL + nst})")
    g.stamp(3)
    NON = SENT + 1
    A(f"v_mov_b32 v{T+1}, 0")
    A(f"global_load_dword v{NON}, v{T+1}, s[{S_DBG}:{S_DBG+1}] sc1")
    for i in range(16): A(f"v_cvt_f32_i32 v{VD+i}, v{VD+i}")
    for i in range(8): A(f"v_pk_add_f32 {vr(VD+2*i, 2)}, {vr(VD+2*i, 2)}, {vr(ZP_+2*i, 2)} neg_lo:[0,1] neg_hi:[0,1]")
    for i in range(8): A(f"v_pk_mul_f32 {vr(VD+2*i, 2)}, {vr(VD+2*i, 2)}, {vr(SP_+2*i, 2)}")
    for dbl in range(2):
        O = T + 28 + 4 * dbl
        for k in range(4):
            A(f"v_cvt_pk_bf16_f32 v{O+k}, v{VD+(2*k)*2+dbl}, v{VD+(2*k+1)*2+dbl}")
        A(f"buffer_store_dwordx4 {vr(O, 4)}, v{V_LANE16}, s[{S_WS}:{S_WS+3}], s9 offen offset:{dbl*2048} {kvmod}")
    A(f"v_lshlrev_b32 v{vQd}, 8, v{vR0}")
    A(f"v_lshl_add_u32 v{vQd}, v{vC}, 3, v{vQd}")
    A(f"v_add_u32 v{vQd}, 2048, v{vQd}")
    A(f"s_lshl_b32 s9, s{S_QT}, 1")
    A(f"s_add_u32 s46, s9, s{S_SP}")
    A(f"s_xor_b32 s47, s46, 1")
    A(f"s_lshl_b32 s10, s{S_H}, 6")
    A("s_add_u32 s11, s10, s47")
    A("s_lshl_b32 s11, s11, 13")
    add64(A, 34, 20, "s11")
    A("s_add_u32 s11, s10, s46")
    A("s_lshl_b32 s11, s11, 13")
    add64(A, 20, 20, "s11")
    QD = 72
    for X in range(2):
        base = "s[34:35]" if X == 0 else "s[20:21]"
        for it in range(2):
            r = QD + (X * 2 + it) * 4
            A(f"global_load_dwordx2 {vr(r, 2)}, v{vQd}, {base} offset:{it*4096 - 2048} {ldmod}")
            A(f"global_load_dwordx2 {vr(r + 2, 2)}, v{vQd}, {base} offset:{it*4096 - 2048 + 128} {ldmod}")
    A("s_lshl_b32 s10, s47, 5")
    A("s_lshl_b32 s11, s46, 5")
    A(f"s_mov_b32 s42, {F(QSCALE)}")
    A(f"s_mov_b32 s43, {F(QSCALE)}")
    trig("s10", 0, CQ, SQ, 42); trig("s10", 16, CQ + 4, SQ + 4, 42)
    for j in range(4):
        A(f"s_add_u32 s9, s{S_W}, {j}")
        A("s_and_b32 s9, s9, 3")
        A("s_lshl_b32 s9, s9, 11")
        A("s_add_u32 s9, s9, 8192")
        A(f"v_add_u32 v{V_OFFV + j}, s9, v{V_LANE16}")
    A(f"s_lshl_b32 s9, s{S_W}, 3")
    A("s_add_u32 s8, s8, s9")
    A(f"s_lshl_b32 s{S_TILE}, s8, 14")
    A(f"s_add_u32 s{S_TILE+1}, s{S_TILE}, 4096")
    for t in range(1, 8):
        A(f"s_add_u32 s{S_TILE + 2*t}, s{S_TILE}, {t * 16384}")
        A(f"s_add_u32 s{S_TILE + 2*t + 1}, s{S_TILE}, {t * 16384 + 4096}")
    A(f"s_lshl_b32 s9, s{S_QT}, 2")
    A("s_add_u32 s9, s9, s65")
    A(f"v_mov_b32 v{T}, s9")
    A(f"s_lshl_b32 s9, s{S_W}, 5")
    A("s_add_u32 s9, s9, s65")
    A(f"v_lshl_add_u32 v{T+2}, v0, 2, s9")
    A("s_mov_b32 s10, 0")
    A("s_mov_b32 s9, 0")
    A("s_waitcnt vmcnt(8)")
    g.stamp(4)
    A.label("L_NPOLL")
    A(f"v_readfirstlane_b32 s{S_XCC}, v{NON}")
    A("s_nop 1")
    A(f"s_cmp_lg_u32 s{S_XCC}, 0")
    A("s_cbranch_scc1 L_NOK")
    A("s_add_u32 s10, s10, 1")
    A(f"s_cmp_ge_u32 s10, {opt.get('maxpoll0', 200)}")
    A("s_cbranch_scc1 L_NTIMEOUT")
    A(f"v_mov_b32 v{T+1}, 0")
    A(f"global_load_dword v{NON}, v{T+1}, s[{S_DBG}:{S_DBG+1}] sc1")
    A("s_waitcnt vmcnt(0)")
    A("s_branch L_NPOLL")
    A.label("L_NTIMEOUT")
    A(f"s_mov_b32 s{S_XCC}, 1")
    A("s_mov_b32 s9, 1")
    A.label("L_NOK")
    A(f"v_mov_b32 v{T+1}, s{S_XCC}")
    A("s_barrier")
    A("s_mov_b64 exec, 1")
    A(f"global_store_dword v{T}, v{T+1}, s[38:39]")
    FL = SENT + 2
    A("s_mov_b64 exec, 0xff")
    A(f"global_load_dword v{FL}, v{T+2}, s[38:39] sc1")
    A("s_mov_b64 exec, -1")
    A("s_mov_b32 s65, s9")
    trig("s11", 0, CQ + 8, SQ + 8, 42); trig("s11", 16, CQ + 12, SQ + 12, 42)
    A("s_waitcnt vmcnt(2)")
    g.stamp(5)
    for pc in range(4):
        X, it = pc >> 1, pc & 1
        r = QD + pc * 4
        x = 96 + 8 * (pc & 1)
        for hh in range(2):
            for k in range(2):
                A(f"v_lshlrev_b32 v{x+4*hh+2*k}, 16, v{r+2*hh+k}")
                A(f"v_and_b32 v{x+4*hh+2*k+1}, 0xffff0000, v{r+2*hh+k}")
        out = T + 20 + 4 * (pc & 1)
        rope(x, CQ + 4*pc, SQ + 4*pc, out)
        A(f"ds_write_b128 v{vQw}, {vr(out, 4)} offset:{X*8192 + it*256}")
    A("s_mov_b32 s10, 0")
    A("s_mov_b32 s11, s65")
    A("s_mov_b64 exec, 0xff")
    A.label("L_FPOLL")
    A("s_waitcnt vmcnt(0)")
    A(f"v_cmp_ne_u32 vcc, s{S_XCC}, v{FL}")
    A("s_cbranch_vccz L_FOK")
    A("s_add_u32 s10, s10, 1")
    A(f"s_cmp_ge_u32 s10, {opt.get('maxpoll1', 400)}")
    A("s_cbranch_scc1 L_FTIMEOUT")
    A(f"global_load_dword v{FL}, v{T+2}, s[38:39] sc1")
    A("s_branch L_FPOLL")
    A.label("L_FTIMEOUT")
    A("s_mov_b32 s11, 1")
    A.label("L_FOK")
    A("s_mov_b64 exec, -1")
    g.stamp(6)
    if opt.get("stamp"): A(f"s_mov_b32 s{ST0 + 2*11}, s10")
    seq = stream()
    rmod = opt.get("ring_mod", "")
    DEPTH = opt.get("depth", 32)
    for p in range(DEPTH): A(ring_load(seq, p, rmod))
    SE = T + 4
    for j in range(4): A(f"v_mov_b32 v{SE + j}, -1")
    A(f"buffer_store_dwordx4 {vr(SE, 4)}, v{V_LANE16}, s[{S_WS}:{S_WS+3}], s44 offen sc1")
    A(f"buffer_store_dwordx4 {vr(SE, 4)}, v{V_LANE16}, s[{S_WS}:{S_WS+3}], s44 offen offset:1024 sc1")
    A(f"buffer_store_dword v{SE}, v{vX4}, s[{S_WS}:{S_WS+3}], s45 offen sc1")
    A(f"s_lshl_b32 s10, s{S_W}, 2")
    A(f"s_add_u32 s10, s10, {LFAIL}")
    A(f"v_mov_b32 v{T}, s10")
    A(f"v_mov_b32 v{T+1}, s11")
    A(f"ds_write_b32 v{T}, v{T+1}")
    A(f"v_lshrrev_b32 v{T+2}, 5, v0")
    for k in range(4):
        A(f"v_add_u32 v{8+k}, {2*k}, v{T+2}")
        A(f"v_xor_b32 v{8+k}, v{8+k}, v0")
        A(f"v_lshlrev_b32 v{8+k}, 4, v{8+k}")
    A(f"v_mov_b32 v{T}, {LFAIL}")
    A(f"v_mov_b32 v{V_LA}, 0")
    A(f"v_mov_b32 v{V_LB}, 0")
    A("s_waitcnt lgkmcnt(0)")
    A("s_barrier")
    A(f"ds_read_b128 {vr(T+8, 4)}, v{T}")
    for ks in range(4):
        for X in range(2):
            A(f"ds_read_b128 {Qreg(X, ks)}, v{8 + (ks & 3)} offset:{(X * 8 + ks) * 1024}")
    A("s_waitcnt lgkmcnt(8)")
    A(f"v_or3_b32 v{T+8}, v{T+8}, v{T+9}, v{T+10}")
    A(f"v_or_b32 v{T+8}, v{T+8}, v{T+11}")
    A("s_nop 0")
    A(f"v_readfirstlane_b32 s10, v{T+8}")
    A("s_nop 1")
    A("s_cmp_lg_u32 s10, 0")
    A("s_cbranch_scc1 L_FALLBACK_EARLY")
    g.stamp(7)
    g.stamp_wait()

def gen_main(g):
    A, opt = g.A, g.opt
    if opt.get("align64"): A(".p2align 6")
    for _ in range(opt.get("prenop", 0)): A("s_nop 0")
    seq = stream()
    rmod = opt.get("ring_mod", "")
    pos_of = {(k, t, i): p for p, (k, t, i) in enumerate(seq)}
    ops = []
    def phase(kind, t, Xs=(0, 1)):
        if len(Xs) == 2:
            for i in range(8):
                for X in (0, 1): ops.append((kind, t, i, X))
        else:
            for i in range(8): ops.append((kind, t, i, Xs[0]))
    phase("K", 0)
    for t in range(6):
        phase("K", t + 1); phase("V", t)
    phase("K", 7)
    phase("V", 6, (0,)); phase("V", 7, (0,))
    iB = len(ops)
    phase("V", 6, (1,)); phase("V", 7, (1,))
    NG = len(ops); assert NG == 256
    first, last = {}, {}
    for n, (k, t, i, X) in enumerate(ops):
        p = pos_of[(k, t, i)]
        first.setdefault(p, n); last[p] = n
    lastS = {}
    for n, (k, t, i, X) in enumerate(ops):
        if k == "K": lastS[(t, X)] = n
    firstP = {}
    for n, (k, t, i, X) in enumerate(ops):
        if k == "V": firstP.setdefault((t, X, i >> 2), n)
    tasks = []
    for t in range(8):
        if t < 7:
            order = [(0, 0), (1, 0), (0, 1), (1, 1)]
        else:
            order = [(0, 0), (0, 1), (1, 0), (1, 1)]
        if t == 6: order = [(0, 0), (0, 1), (1, 0), (1, 1)]
        for X, half in order:
            for j in range(8 * half, 8 * half + 8): tasks.append((t, X, j))
    def avail(t, X):
        lag = opt.get("lag0", 5) if t == 0 else opt.get("lag", 3)
        return lastS[(t, X)] + lag + (0 if X == 1 else 1)
    def deadline(t, X, j): return firstP[(t, X, j >> 3)]
    plan = [[] for _ in range(NG)]
    MARG = 3
    CAP = opt.get("cap", 2)
    LS = [0] * len(tasks); cnt = {}; nxt = 10 ** 9
    for k in range(len(tasks) - 1, -1, -1):
        t, X, j = tasks[k]
        gg = min(deadline(t, X, j) - MARG, nxt)
        while cnt.get(gg, 0) >= CAP: gg -= 1
        cnt[gg] = cnt.get(gg, 0) + 1
        LS[k] = gg; nxt = gg
    done = 0
    for gg in range(NG):
        n = 0
        while done < len(tasks) and avail(tasks[done][0], tasks[done][1]) <= gg and (n < 1 or LS[done] <= gg):
            plan[gg].append(tasks[done]); done += 1; n += 1
        if done < len(tasks): assert LS[done] > gg, ("deadline miss", gg, tasks[done], LS[done])
    assert done == len(tasks)
    if opt.get("show_plan"):
        print("elements per gap:", "".join(str(len(x)) for x in plan), file=sys.stderr)
    st = dict(add=[], cvt=[])
    E64 = "_e64" if opt.get("e64") else ""
    def fillers(gg):
        out = []
        adds, cvts = st["add"], st["cvt"]
        st["add"], st["cvt"] = [], []
        exps = []
        for (t, X, j) in plan[gg]:
            s = Sreg(t & 1, X) + j
            exps.append(f"v_exp_f32{E64} v{s}, v{s}")
            st["add"].append((t, X, j))
            if j & 1: st["cvt"].append((t, X, j))
        rest = []
        for (t, X, j) in adds:
            rest.append(f"v_add_f32{E64} v{V_LA + X}, v{V_LA + X}, v{Sreg(t & 1, X) + j}")
        for (t, X, j) in cvts:
            s = Sreg(t & 1, X) + j
            rest.append(f"v_cvt_pk_bf16_f32 v{Preg(t & 1, X) + (j >> 1)}, v{s - 1}, v{s}")
        while exps or rest:
            if exps: out.append(exps.pop(0))
            if rest: out.append(rest.pop(0))
            if rest and not exps: out += rest; rest = []
        return out
    extra = {n: [] for n in range(NG)}
    epi = Epi(g)
    pre = epi.address_setup()
    for k, ins in enumerate(pre):
        extra[200 + k // 2].append(ins)
    wa = epi.lwrite(0) + epi.owrite(0)
    lastA_add = max(n for n in range(NG) for (t, X, j) in plan[n] if X == 0) + 1
    startA = max(iB + 2, lastA_add + 1)
    for k, ins in enumerate(wa):
        extra[min(NG - 4, startA + k)].append(ins)
    DEPTH = opt.get("depth", 32)
    issued = DEPTH
    def younger(p):
        return (issued - 1 - p) + (3 if p < DEPTH else 0)
    for n, (k, t, i, X) in enumerate(ops):
        p = pos_of[(k, t, i)]
        if n in (0, 16, 32, 128, 240): A.c(f"---- mfma {n}: {k}{t} i{i} X{X}")
        if opt.get("stamp") and opt.get("loopstamp") and n in (32, 64, 96, 128, 160, 192, 224):
            g.stamp(n // 32)
        if first[p] == n:
            w = f"s_waitcnt vmcnt({younger(p)})"
            if k == "K" and t == 0:
                nq = min(7, i + 3) - i
                w += f" lgkmcnt({2 * nq})"
            A(w)
            if opt.get("e64"): A("s_nop 0")
        frag = ring(p)
        if k == "K":
            S = vr(Sreg(t & 1, X), 16)
            C = "0" if i == 0 else S
            A(f"v_mfma_f32_32x32x16_bf16 {S}, {frag}, {Qreg(X, i)}, {C}")
        else:
            j, ks = i & 3, i >> 2
            O = Oreg(X, j)
            C = "0" if (t == 0 and ks == 0) else O
            A(f"v_mfma_f32_32x32x16_bf16 {O}, {frag}, {vr(Preg(t & 1, X) + 4 * ks, 4)}, {C}")
        fl = fillers(n)
        if last[p] == n and issued < 128 and p + DEPTH == issued:
            fl.insert(min(1, len(fl)), ring_load(seq, issued, rmod)); issued += 1
        if k == "K" and t == 0 and X == 1 and i + 4 <= 7:
            for XX in range(2):
                fl.append(f"ds_read_b128 {Qreg(XX, i + 4)}, v{8 + ((i + 4) & 3)} offset:{(XX * 8 + i + 4) * 1024}")
        fl += extra[n]
        for l in fl: A(l)
    assert issued == 128
    assert not st["cvt"]
    for (t, X, j) in st["add"]:
        A(f"v_add_f32 v{V_LA + X}, v{V_LA + X}, v{Sreg(t & 1, X) + j}")
    epi.finish()

class Epi:
    vWr = [None, 8, 9, 10]; vRd = 11; vLw = 12; vLr = 13; vX = 14
    TA = V_S
    TL = 64
    PK = 72
    RX = 80
    def __init__(self, g): self.g = g; self.A = g.A; self.opt = g.opt
    def address_setup(self):
        L = []
        for j in range(1, 4):
            L += [f"s_add_u32 s9, s{S_W}, {j}", "s_and_b32 s9, s9, 3", "s_mul_i32 s9, s9, 12288",
                  f"s_add_u32 s9, s9, {RED_A + (j - 1) * 4096}", f"v_add_u32 v{self.vWr[j]}, s9, v{V_LANE16}"]
        L += [f"s_mul_i32 s9, s{S_W}, 12288", f"s_add_u32 s9, s9, {RED_A}", f"v_add_u32 v{self.vRd}, s9, v{V_LANE16}"]
        L += ["v_and_b32 v15, 31, v0", f"v_lshlrev_b32 v{self.vLr}, 5, v15", f"v_add_u32 v{self.vLr}, {LRED}, v{self.vLr}",
              "v_lshrrev_b32 v15, 5, v0", f"v_lshl_add_u32 v{self.vLw}, v15, 2, v{self.vLr}",
              f"s_lshl_b32 s9, s{S_W}, 3", f"v_add_u32 v{self.vLw}, s9, v{self.vLw}",
              f"v_lshlrev_b32 v{self.vX}, 2, v0"]
        L += ["s_xor_b32 s46, s44, 8192", "s_xor_b32 s47, s45, 1024"]
        L += [f"s_lshl_b32 s9, s{S_H}, 6", f"s_lshl_b32 s10, s{S_QT}, 1", "s_add_u32 s9, s9, s10", f"s_add_u32 s9, s9, s{S_SP}",
              "s_lshl_b32 s9, s9, 13", f"s_lshl_b32 s10, s{S_W}, 6", "s_add_u32 s42, s9, s10",
              "v_and_b32 v15, 31, v0", "v_lshlrev_b32 v15, 8, v15"]
        L += [f"s_mov_b32 s{S_OUT}, s{S_OUTP}", f"s_and_b32 s{S_OUT+1}, s{S_OUTP+1}, 0xffff", f"s_mov_b32 s{S_OUT+2}, {2 << 20}", f"s_mov_b32 s{S_OUT+3}, 0x20000"]
        return L
    def lwrite(self, X):
        return [f"ds_write_b32 v{self.vLw}, v{V_LA + X} offset:{X * 1024}"]
    def owrite(self, X):
        L = []
        for j in range(1, 4):
            for qd in range(4):
                a = A_O + X * 48 + (j - 1) * 16 + qd * 4
                L.append(f"ds_write_b128 v{self.vWr[j]}, {ar(a, 4)} offset:{X * RED_BOFF + qd * 1024}")
        return L
    def oread(self, X):
        L = [f"ds_read_b128 {vr(self.TL, 4)}, v{self.vLr} offset:{X * 1024}",
             f"ds_read_b128 {vr(self.TL + 4, 4)}, v{self.vLr} offset:{X * 1024 + 16}"]
        for j in range(1, 4):
            for qd in range(4):
                L.append(f"ds_read_b128 {vr(self.TA + (j - 1) * 16 + qd * 4, 4)}, v{self.vRd} offset:{X * RED_BOFF + (j - 1) * 4096 + qd * 1024}")
        return L
    def sums(self, X):
        A = self.A; TL = self.TL; O = V_O0 + 16 * X
        A(f"v_add_f32 v{TL}, v{TL}, v{TL + 1}")
        A(f"v_add_f32 v{TL + 2}, v{TL + 2}, v{TL + 3}")
        A(f"v_add_f32 v{TL + 4}, v{TL + 4}, v{TL + 5}")
        A(f"v_add_f32 v{TL + 6}, v{TL + 6}, v{TL + 7}")
        A(f"v_add_f32 v{TL}, v{TL}, v{TL + 2}")
        A(f"v_add_f32 v{TL + 4}, v{TL + 4}, v{TL + 6}")
        A(f"v_add_f32 v{V_LA + X}, v{TL}, v{TL + 4}")
        for j in range(3):
            for r in range(0, 16, 2):
                A(f"v_pk_add_f32 {vr(O + r, 2)}, {vr(O + r, 2)}, {vr(self.TA + j * 16 + r, 2)}")
    def finish(self):
        g, A, opt = self.g, self.A, self.opt
        PK, RX = self.PK, self.RX
        A.c("==== epilogue")
        g.stamp(8)
        ws = f"s[{S_WS}:{S_WS+3}]"
        A("s_waitcnt lgkmcnt(0)")
        A("s_barrier")
        for l in self.oread(0): A(l)
        for l in self.lwrite(1): A(l)
        A("s_waitcnt lgkmcnt(1)")
        self.sums(0)
        for k in range(8):
            A(f"v_cvt_pk_bf16_f32 v{PK + k}, v{V_O0 + 2 * k}, v{V_O0 + 2 * k + 1}")
        omod = opt.get("xchg_mod", "sc1")
        A(f"buffer_store_dwordx4 {vr(PK, 4)}, v{V_LANE16}, {ws}, s46 offen {omod}")
        A(f"buffer_store_dwordx4 {vr(PK + 4, 4)}, v{V_LANE16}, {ws}, s46 offen offset:1024 {omod}")
        A(f"buffer_store_dword v{V_LA}, v{self.vX}, {ws}, s47 offen {omod}")
        g.stamp(9)
        def poll():
            A(f"buffer_load_dwordx4 {vr(RX, 4)}, v{V_LANE16}, {ws}, s44 offen sc1")
            A(f"buffer_load_dwordx4 {vr(RX + 4, 4)}, v{V_LANE16}, {ws}, s44 offen offset:1024 sc1")
            A(f"buffer_load_dword v{RX + 8}, v{self.vX}, {ws}, s45 offen sc1")
        for l in self.owrite(1): A(l)
        poll()
        A("s_waitcnt lgkmcnt(0)")
        A("s_barrier")
        for l in self.oread(1): A(l)
        A("s_mov_b32 s10, 0")
        A("s_waitcnt lgkmcnt(0)")
        self.sums(1)
        A("s_branch L_POLLW")
        A.label("L_POLL")
        poll()
        A.label("L_POLLW")
        A("s_waitcnt vmcnt(0)")
        A(f"v_max3_u32 v90, v{RX}, v{RX + 1}, v{RX + 2}")
        A(f"v_max3_u32 v91, v{RX + 3}, v{RX + 4}, v{RX + 5}")
        A(f"v_max3_u32 v92, v{RX + 6}, v{RX + 7}, v{RX + 8}")
        A("v_max3_u32 v90, v90, v91, v92")
        A("s_add_u32 s10, s10, 1")
        A("v_cmp_eq_u32 vcc, -1, v90")
        A(f"s_cmp_ge_u32 s10, {opt.get('maxpoll2', 200)}")
        A("s_cbranch_scc1 L_FALLBACK")
        A("s_cbranch_vccnz L_POLL")
        g.stamp(10)
        if opt.get("stamp"): A(f"s_mov_b32 s{ST0 + 2*11 + 1}, s10")
        O = V_O0 + 16
        A(f"v_add_f32 v{V_LB}, v{V_LB}, v{RX + 8}")
        for k in range(8):
            A(f"v_lshlrev_b32 v{16 + 2 * k}, 16, v{RX + k}")
            A(f"v_and_b32 v{17 + 2 * k}, 0xffff0000, v{RX + k}")
        A(f"v_rcp_f32 v32, v{V_LB}")
        for r in range(0, 16, 2):
            A(f"v_pk_add_f32 {vr(O + r, 2)}, {vr(O + r, 2)}, {vr(16 + r, 2)}")
        A("v_pk_mul_f32 v[34:35], v[%d:%d], 0" % (O, O + 1))
        for r in range(2, 16, 2):
            A(f"v_pk_fma_f32 v[34:35], {vr(O + r, 2)}, 0, v[34:35]")
        A(f"s_mov_b32 s9, {F(2.0 ** -30)}")
        A(f"s_mov_b32 s10, {F(2.0 ** 30)}")
        A(f"v_cmp_le_f32 s[46:47], s9, v{V_LB}")
        A(f"v_cmp_ge_f32 s[8:9], s10, v{V_LB}")
        A("v_cmp_o_f32 vcc, v34, v35")
        A("v_mov_b32 v33, v32")
        A("s_and_b64 s[46:47], s[46:47], s[8:9]")
        A("s_and_b64 s[46:47], s[46:47], vcc")
        A("s_cmp_eq_u64 s[46:47], exec")
        A("s_cbranch_scc0 L_FALLBACK")
        for r in range(0, 16, 2):
            A(f"v_pk_mul_f32 {vr(O + r, 2)}, {vr(O + r, 2)}, v[32:33]")
        A.label("L_STORE")
        for k in range(8):
            A(f"v_cvt_pk_bf16_f32 v{PK + k}, v{O + 2 * k}, v{O + 2 * k + 1}")
        A("v_lshrrev_b32 v37, 5, v0")
        A("v_lshl_add_u32 v36, v37, 5, v15")
        om = opt.get("out_mod", "")
        A(f"buffer_store_dwordx4 {vr(PK, 4)}, v36, s[{S_OUT}:{S_OUT+3}], s42 offen {om}")
        A(f"buffer_store_dwordx4 {vr(PK + 4, 4)}, v36, s[{S_OUT}:{S_OUT+3}], s42 offen offset:16 {om}")
        if opt.get("stamp"):
            A("s_waitcnt vmcnt(0)")
            g.stamp(12)
            A("s_waitcnt lgkmcnt(0)")
            A("s_lshl_b32 s98, s2, 2")
            A(f"s_add_u32 s98, s98, s{S_W}")
            A("s_lshl_b32 s98, s98, 7")
            A(f"s_add_u32 s98, s98, {WS_STAMP}")
            A("v_mov_b32 v174, s98")
            A("s_mov_b64 exec, 1")
            for i in range(13):
                A(f"v_mov_b32 v175, s{ST0 + 2 * i}")
                A(f"global_store_dword v174, v175, s[38:39] offset:{4 * i}")
            A(f"v_mov_b32 v175, s{ST0 + 2*11 + 1}")
            A(f"global_store_dword v174, v175, s[38:39] offset:{4 * 13}")
        A.label("L_END")
        A("s_endpgm")

def gen_fallback(g):
    A, opt = g.A, g.opt
    S = 16; P = 32; XL = 40; KS = 48; KZ = 50; CS = 52; SN = 56; U = 60; KF = 68; QF = 72; WV = 76
    VX = 80; VS = 88; VZ = 96; VF = 104
    M, L, T0, T1, POS, vM, vH, vA = 108, 109, 110, 111, 144, 145, 146, 147
    vKo, vSo, vVo, vVso = 148, 149, 150, 151
    O = V_O0 + 16
    A.label("L_FALLBACK_EARLY")
    for l in Epi(g).address_setup(): A(l)
    A.label("L_FALLBACK")
    A("s_waitcnt vmcnt(0) lgkmcnt(0)")
    A(f"s_load_dwordx16 s[{S_ARG}:{S_ARG+15}], s[0:1], 0")
    A(f"v_and_b32 v{vM}, 31, v0")
    A(f"v_lshrrev_b32 v{vH}, 5, v0")
    A(f"v_lshlrev_b32 v{vKo}, 9, v{vM}")
    A(f"v_lshl_add_u32 v{vKo}, v{vH}, 4, v{vKo}")
    A(f"v_lshlrev_b32 v{vSo}, 3, v{vM}")
    A(f"v_bfe_u32 v{T0}, v{vM}, 2, 1")
    A(f"v_lshlrev_b32 v{T0}, 4, v{T0}")
    A(f"v_lshrrev_b32 v{T1}, 3, v{vM}")
    A(f"v_lshl_add_u32 v{T0}, v{T1}, 2, v{T0}")
    A(f"v_and_b32 v{T1}, 3, v{vM}")
    A(f"v_add_u32 v{T0}, v{T0}, v{T1}")
    A(f"s_lshl_b32 s9, s{S_W}, 5")
    A(f"v_add_u32 v{T0}, s9, v{T0}")
    A(f"v_lshlrev_b32 v{T0}, 2, v{T0}")
    A(f"v_lshl_add_u32 v{vVo}, v{vH}, 11, v{T0}")
    A(f"s_lshl_b32 s9, s{S_W}, 1")
    A(f"v_lshlrev_b32 v{vVso}, 5, v{vH}")
    A(f"v_add_u32 v{vVso}, s9, v{vVso}")
    A(f"v_mov_b32 v{M}, 0xff800000")
    A(f"v_mov_b32 v{L}, 0")
    for r in range(16): A(f"v_mov_b32 v{O + r}, 0")
    A("s_waitcnt lgkmcnt(0)")
    A(f"s_lshl_b32 s8, s{S_H}, 20")
    A(f"s_lshl_b32 s9, s{S_H}, 14")
    add64(A, 22, 22, "s8"); add64(A, 28, 28, "s8")
    add64(A, 24, 24, "s9"); add64(A, 26, 26, "s9"); add64(A, 30, 30, "s9"); add64(A, 32, 32, "s9")
    A("s_mov_b32 s48, 0")
    A.label("L_FB_TILE")
    A(f"global_load_dwordx2 {vr(KS, 2)}, v{vSo}, s[24:25]")
    A(f"global_load_dwordx2 {vr(KZ, 2)}, v{vSo}, s[26:27]")
    A("s_lshl_b32 s49, s48, 5")
    A(f"v_add_u32 v{POS}, s49, v{vM}")
    A(f"v_cvt_f32_u32 v{POS}, v{POS}")
    for r in range(16): A(f"v_mov_b32 v{S + r}, 0")
    A("s_mov_b32 s50, 0")
    A.label("L_FB_KS")
    A("s_lshl_b32 s51, s50, 5")
    A(f"v_add_u32 v{vA}, s51, v{vKo}")
    A(f"global_load_dwordx4 {vr(XL, 4)}, v{vA}, s[22:23]")
    A(f"global_load_dwordx4 {vr(XL + 4, 4)}, v{vA}, s[22:23] offset:256")
    A("s_and_b32 s51, s50, 3")
    A("s_lshl_b32 s51, s51, 1")
    A(f"v_add_u32 v{vA}, s51, v{vH}")
    A(f"v_xor_b32 v{vA}, v{vA}, v0")
    A(f"v_lshlrev_b32 v{vA}, 4, v{vA}")
    A("s_lshl_b32 s51, s50, 10")
    A("s_add_u32 s51, s51, 8192")
    A(f"v_add_u32 v{vA}, s51, v{vA}")
    A(f"ds_read_b128 {vr(QF, 4)}, v{vA}")
    A("s_lshl_b32 s51, s50, 1")
    A(f"v_add_u32 v{T0}, s51, v{vH}")
    A(f"v_lshlrev_b32 v{T0}, 2, v{T0}")
    A(f"v_cvt_f32_u32 v{T0}, v{T0}")
    A(f"s_mov_b32 s51, {F(TRIG_A)}")
    for j in range(4): A(f"v_mov_b32 v{WV + j}, {F(TRIG_B + j * TRIG_A)}")
    for j in range(4): A(f"v_fma_f32 v{WV + j}, v{T0}, s51, v{WV + j}")
    for j in range(4): A(f"v_exp_f32 v{WV + j}, v{WV + j}")
    A("s_nop 0")
    for j in range(4): A(f"v_mul_f32 v{WV + j}, v{POS}, v{WV + j}")
    for j in range(4): A(f"v_fract_f32 v{WV + j}, v{WV + j}")
    for j in range(4):
        A(f"v_cos_f32 v{CS + j}, v{WV + j}")
        A(f"v_sin_f32 v{SN + j}, v{WV + j}")
    A("s_cmp_lt_u32 s50, 4")
    A("s_cselect_b32 s51, 16, 0")
    A("s_waitcnt vmcnt(0) lgkmcnt(0)")
    for k, src in enumerate((KS, KS + 1, KZ, KZ + 1)):
        A(f"v_lshlrev_b32 v{U + k}, s51, v{src}")
    for k in range(4): A(f"v_and_b32 v{WV + k}, 0xffff0000, v{U + k}")
    for j in range(8): A(f"v_cvt_f32_i32 v{XL + j}, v{XL + j}")
    for j in range(8): A(f"v_sub_f32 v{XL + j}, v{XL + j}, v{WV + 2 + (j >> 2)}")
    for j in range(8): A(f"v_mul_f32 v{XL + j}, v{XL + j}, v{WV + (j >> 2)}")
    for j in range(4):
        A(f"v_mul_f32 v{U + j}, v{XL + 4 + j}, v{SN + j}")
        A(f"v_mul_f32 v{U + 4 + j}, v{XL + j}, v{SN + j}")
    for j in range(4):
        A(f"v_fma_f32 v{U + j}, v{XL + j}, v{CS + j}, -v{U + j}")
        A(f"v_fma_f32 v{U + 4 + j}, v{XL + 4 + j}, v{CS + j}, v{U + 4 + j}")
    for k in range(4): A(f"v_cvt_pk_bf16_f32 v{KF + k}, v{U + 2 * k}, v{U + 2 * k + 1}")
    A("s_nop 1")
    A(f"v_mfma_f32_32x32x16_bf16 {vr(S, 16)}, {vr(KF, 4)}, {vr(QF, 4)}, {vr(S, 16)}")
    A("s_nop 15")
    A("s_add_u32 s50, s50, 1")
    A("s_cmp_lt_u32 s50, 8")
    A("s_cbranch_scc1 L_FB_KS")
    A(f"v_max3_f32 v{T0}, v{S}, v{S + 1}, v{S + 2}")
    for r in range(3, 15, 2): A(f"v_max3_f32 v{T0}, v{T0}, v{S + r}, v{S + r + 1}")
    A(f"v_max_f32 v{T0}, v{T0}, v{S + 15}")
    A(f"v_mov_b32 v{T1}, v{T0}")
    A("s_nop 1")
    A(f"v_permlane32_swap_b32 v{T0}, v{T1}")
    A("s_nop 1")
    A(f"v_max3_f32 v{T0}, v{T0}, v{T1}, v{M}")
    A(f"v_sub_f32 v{T1}, v{M}, v{T0}")
    A(f"v_exp_f32 v{T1}, v{T1}")
    A(f"v_mov_b32 v{M}, v{T0}")
    for r in range(16): A(f"v_sub_f32 v{S + r}, v{S + r}, v{T0}")
    for r in range(16): A(f"v_exp_f32 v{S + r}, v{S + r}")
    A(f"v_mul_f32 v{L}, v{L}, v{T1}")
    for r in range(16): A(f"v_mul_f32 v{O + r}, v{O + r}, v{T1}")
    for r in range(16): A(f"v_add_f32 v{L}, v{L}, v{S + r}")
    for k in range(8): A(f"v_cvt_pk_bf16_f32 v{P + k}, v{S + 2 * k}, v{S + 2 * k + 1}")
    for kst in range(2):
        A(f"v_add_u32 v{vA}, {kst * 8192}, v{vVo}")
        A(f"v_add_u32 v{T0}, {kst * 8192 + 4096}, v{vVo}")
        for i in range(8):
            A(f"global_load_dword v{VX + i}, v{vA if i < 4 else T0}, s[28:29] offset:{(i & 3) * 512}")
        for i in range(8):
            ro = (16 * kst + 8 * (i >> 2) + (i & 3)) * 8
            A(f"global_load_ushort v{VS + i}, v{vVso}, s[30:31] offset:{ro}")
            A(f"global_load_ushort v{VZ + i}, v{vVso}, s[32:33] offset:{ro}")
        A("s_waitcnt vmcnt(0)")
        for i in range(8):
            A(f"v_cvt_f32_i32 v{VX + i}, v{VX + i}")
            A(f"v_lshlrev_b32 v{VS + i}, 16, v{VS + i}")
            A(f"v_lshlrev_b32 v{VZ + i}, 16, v{VZ + i}")
        for i in range(8): A(f"v_sub_f32 v{VX + i}, v{VX + i}, v{VZ + i}")
        for i in range(8): A(f"v_mul_f32 v{VX + i}, v{VX + i}, v{VS + i}")
        for k in range(4): A(f"v_cvt_pk_bf16_f32 v{VF + k}, v{VX + 2 * k}, v{VX + 2 * k + 1}")
        A("s_nop 1")
        A(f"v_mfma_f32_32x32x16_bf16 {vr(O, 16)}, {vr(VF, 4)}, {vr(P + 4 * kst, 4)}, {vr(O, 16)}")
        A("s_nop 15")
    add64(A, 22, 22, 16384); add64(A, 28, 28, 16384)
    add64(A, 24, 24, 256); add64(A, 26, 26, 256); add64(A, 30, 30, 256); add64(A, 32, 32, 256)
    A("s_add_u32 s48, s48, 1")
    A("s_cmp_lt_u32 s48, 64")
    A("s_cbranch_scc1 L_FB_TILE")
    A(f"v_mov_b32 v{T1}, v{L}")
    A("s_nop 1")
    A(f"v_permlane32_swap_b32 v{L}, v{T1}")
    A("s_nop 1")
    A(f"v_add_f32 v{L}, v{L}, v{T1}")
    A(f"v_rcp_f32 v{L}, v{L}")
    A("s_nop 0")
    for r in range(16): A(f"v_mul_f32 v{O + r}, v{O + r}, v{L}")
    A("s_branch L_STORE")

def kd(A, name, vgpr, sgpr, accum):
    A(f".amdhsa_kernel {name}")
    A(f"  .amdhsa_next_free_vgpr {vgpr}")
    A(f"  .amdhsa_next_free_sgpr {sgpr}")
    A(f"  .amdhsa_accum_offset {accum}")
    A("  .amdhsa_group_segment_fixed_size 0")
    A("  .amdhsa_kernarg_size 112")
    A("  .amdhsa_user_sgpr_count 2")
    A("  .amdhsa_user_sgpr_kernarg_segment_ptr 1")
    A("  .amdhsa_system_sgpr_workgroup_id_x 1")
    A(".end_amdhsa_kernel")

HEADER = open("cdna_kernels/" + NAME + ".s.ref").read().split("; Override launch geometry")[0]

def generate(opt):
    g = G(opt); A = g.A
    A(HEADER.rstrip("\n"))
    A(f"; @launch grid=(256,1,1) block=(256,1,1) lds={LDS_BYTES}")
    A('.amdgcn_target "amdgcn-amd-amdhsa--gfx950"')
    A(".text")
    A(f".globl {KNAME}\n.p2align 8\n.type {KNAME},@function")
    A.label(KNAME)
    n0 = len(A.lines)
    gen_prologue(g)
    if opt.get("force_fallback"): A("s_branch L_FALLBACK_EARLY")
    gen_main(g)
    n1 = len(A.lines)
    gen_fallback(g)
    n2 = len(A.lines)
    A('.section .rodata,"a"\n.p2align 6')
    kd(A, KNAME, NVGPR_ARCH + 256, 102 if opt.get("stamp") else 72, NVGPR_ARCH)
    L = A.lines
    errs = check(L[n0:n1], "main") + check(L[n1:n2], "fallback")
    return A.text(), errs

if __name__ == "__main__":
    opt = {}
    for a in sys.argv[2:]:
        k, v = a.split("=")
        try: v = int(v)
        except ValueError: pass
        opt[k] = v
    txt, errs = generate(opt)
    out = sys.argv[1]
    open(out, "w").write(txt)
    print("wrote", out, len(txt), "bytes;", len(errs), "check problems")
```

```python
import sys, math, struct
from asmlib import Asm, vr, ar, sr, check

NAME = "standalone__kv_cache_quant_pre_rope_vs_post_rope__prompt"
KNAME = NAME + "_kernel"

WS_KV = 0
WS_X  = 4 << 20
WS_L  = 6 << 20
WS_F  = 7 << 20
WS_SIZE = 8 << 20
WS_STAMP = 12 << 20

def f32bits(x): return struct.unpack("<I", struct.pack("<f", x))[0]
def F(x): return f"0x{f32bits(x):08x}"
QSCALE = math.log2(math.e) / math.sqrt(128.0)
TRIG_A = -math.log2(10000.0) / 64.0
TRIG_B = -math.log2(2 * math.pi)

LDS_Q = 0
RED_A = 16384
RED_BOFF = 49152
LRED = 114688
LFAIL = 116736
LDS_BYTES = 116736 + 64

S_W, S_H, S_SP, S_QT, S_G = 3, 4, 5, 6, 7
S_WS = 12
S_OUT = 16
S_ARG = 20
S_DBG = 36
S_OUTP = 40
S_TILE = 48
S_XCC = 64
ST0 = 66

V_LANE16 = 1
V_OFFV = 2
V_LA, V_LB = 6, 7
V_S = 16
V_P = 80
V_O0 = 112
V_RING = 144
A_O = 0
A_Q = 96
A_RING = 160
NVGPR_ARCH = 176

def Sreg(par, X): return V_S + (par * 2 + X) * 16
def Preg(par, X): return V_P + (par * 2 + X) * 8
def Oreg(X, j):
    if j == 0: return vr(V_O0 + 16 * X, 16)
    return ar(A_O + X * 48 + (j - 1) * 16, 16)
def Qreg(X, ks): return ar(A_Q + (X * 8 + ks) * 4, 4)
RINGSZ = 32
def ring(p):
    s = p % RINGSZ
    return ar(A_RING + s * 4, 4) if s < 24 else vr(V_RING + (s - 24) * 4, 4)

class G:
    def __init__(self, opt):
        self.opt = opt; self.A = Asm(); self.nst = 0
    def stamp(self, idx):
        o = self.opt
        if o.get("stamp"):
            self.A(f"{'s_memtime' if o['stamp'] == 2 else 's_memrealtime'} s[{ST0 + 2*idx}:{ST0 + 2*idx + 1}]")
    def stamp_wait(self):
        if self.opt.get("stamp"): self.A("s_waitcnt lgkmcnt(0)")

def srd(A, d, b, nbytes):
    A(f"s_mov_b32 s{d}, s{b}")
    A(f"s_and_b32 s{d+1}, s{b+1}, 0xffff")
    A(f"s_mov_b32 s{d+2}, {nbytes}")
    A(f"s_mov_b32 s{d+3}, 0x20000")

def add64(A, d, b, off):
    A(f"s_add_u32 s{d}, s{b}, {off}")
    A(f"s_addc_u32 s{d+1}, s{b+1}, 0")

def stream():
    seq = [("K", 0, i) for i in range(8)]
    for t in range(7):
        seq += [("K", t + 1, i) for i in range(8)]
        seq += [("V", t, i) for i in range(8)]
    seq += [("V", 7, i) for i in range(8)]
    return seq

def ring_load(seq, p, mod=""):
    kind, t, i = seq[p]
    dst = ring(p)
    if kind == "K":
        so = f"s{S_TILE + 2 * t + (i >> 2)}"
        return f"buffer_load_dwordx4 {dst}, v{V_LANE16}, s[{S_WS}:{S_WS+3}], {so} offen offset:{(i & 3) * 1024} {mod}".rstrip()
    j, ks = i & 3, i >> 2
    so = f"s{S_TILE + 2 * t}"
    return f"buffer_load_dwordx4 {dst}, v{V_OFFV + j}, s[{S_WS}:{S_WS+3}], {so} offen offset:{ks * 1024} {mod}".rstrip()

def gen_prologue(g):
    A, opt = g.A, g.opt
    ldmod = opt.get("raw_load_mod", "")
    kvmod = opt.get("kv_store_mod", "sc1")
    vC, vR0, vK0, vK1, vKs, vVd, vVs, vQd = 8, 9, 10, 11, 12, 13, 14, 15
    vKst, vQw, vSel, vX4 = 16, 17, 18, 19
    W = 20; CK, SK, CQ, SQ = 24, 32, 40, 56
    KD, KSC, KZ = 72, 88, 92
    VD, VSC, VZ = 96, 112, 120
    SENT = 128
    T = 132
    P0 = T + 4
    def trig(pos_s, extra, c0, s0, scale):
        A(f"v_add_u32 v{P0}, {pos_s}, v{vR0}")
        if extra: A(f"v_add_u32 v{P0}, {extra}, v{P0}")
        A(f"v_cvt_f32_u32 v{P0}, v{P0}")
        for j in range(4): A(f"v_mul_f32 v{P0+1+j}, v{P0}, v{W+j}")
        for j in range(4): A(f"v_fract_f32 v{P0+1+j}, v{P0+1+j}")
        for j in range(4):
            A(f"v_cos_f32 v{c0+j}, v{P0+1+j}")
            A(f"v_sin_f32 v{s0+j}, v{P0+1+j}")
        if scale:
            A("s_nop 0")
            for j in range(0, 4, 2):
                A(f"v_pk_mul_f32 {vr(c0+j, 2)}, {vr(c0+j, 2)}, s[{scale}:{scale+1}]")
                A(f"v_pk_mul_f32 {vr(s0+j, 2)}, {vr(s0+j, 2)}, s[{scale}:{scale+1}]")
    def rope(x, c0, s0, out):
        U = T + 8
        for j in range(0, 4, 2):
            A(f"v_pk_mul_f32 {vr(U+j, 2)}, {vr(x+4+j, 2)}, {vr(s0+j, 2)}")
            A(f"v_pk_mul_f32 {vr(U+4+j, 2)}, {vr(x+j, 2)}, {vr(s0+j, 2)}")
        for j in range(0, 4, 2):
            A(f"v_pk_fma_f32 {vr(U+j, 2)}, {vr(x+j, 2)}, {vr(c0+j, 2)}, {vr(U+j, 2)} neg_lo:[0,0,1] neg_hi:[0,0,1]")
            A(f"v_pk_fma_f32 {vr(U+4+j, 2)}, {vr(x+4+j, 2)}, {vr(c0+j, 2)}, {vr(U+4+j, 2)}")
        for k in range(4):
            A(f"v_cvt_pk_bf16_f32 v{out+k}, v{U+2*k}, v{U+2*k+1}")

    g.stamp(0)
    A("s_cmp_ge_u32 s2, 256")
    A("s_cbranch_scc1 L_END")
    A(f"s_load_dwordx16 s[{S_ARG}:{S_ARG+15}], s[0:1], 0")
    A(f"s_load_dwordx4 s[{S_DBG}:{S_DBG+3}], s[0:1], 96")
    A(f"s_load_dwordx2 s[{S_OUTP}:{S_OUTP+1}], s[0:1], 88")
    A("v_lshrrev_b32 v8, 6, v0")
    A("v_and_b32 v0, 63, v0")
    A(f"v_readfirstlane_b32 s{S_W}, v8")
    A(f"v_lshlrev_b32 v{V_LANE16}, 4, v0")
    A("s_and_b32 s8, s2, 7")
    A(f"s_lshr_b32 s{S_H}, s8, 1")
    A(f"s_and_b32 s{S_SP}, s8, 1")
    A(f"s_lshr_b32 s{S_QT}, s2, 3")
    A(f"s_lshl_b32 s8, s{S_H}, 6")
    A(f"s_lshl_b32 s9, s{S_SP}, 5")
    A("s_add_u32 s8, s8, s9")
    A(f"s_add_u32 s{S_G}, s8, s{S_QT}")
    A(f"v_and_b32 v{vC}, 15, v0")
    A(f"v_lshrrev_b32 v{vR0}, 4, v0")
    A(f"s_lshl_b32 s9, s{S_W}, 2")
    A(f"v_add_u32 v{vR0}, s9, v{vR0}")
    A(f"v_lshlrev_b32 v{vK0}, 9, v{vR0}")
    A(f"v_lshl_add_u32 v{vK0}, v{vC}, 4, v{vK0}")
    A(f"v_add_u32 v{vK1}, 8192, v{vK0}")
    A(f"v_lshlrev_b32 v{vKs}, 3, v{vR0}")
    A(f"v_and_b32 v{T}, 31, v0")
    A(f"v_lshrrev_b32 v{T+1}, 5, v0")
    A(f"v_bfe_u32 v{T+2}, v{T}, 2, 1")
    A(f"v_lshlrev_b32 v{T+2}, 4, v{T+2}")
    A(f"v_lshrrev_b32 v{T+3}, 3, v{T}")
    A(f"v_lshl_add_u32 v{T+2}, v{T+3}, 2, v{T+2}")
    A(f"v_and_b32 v{T+3}, 3, v{T}")
    A(f"v_add_u32 v{T+2}, v{T+2}, v{T+3}")
    A(f"s_and_b32 s10, s{S_W}, 1")
    A(f"s_lshr_b32 s11, s{S_W}, 1")
    A("s_lshl_b32 s9, s10, 4")
    A(f"v_lshlrev_b32 v{T+1}, 2, v{T+1}")
    A(f"v_add_u32 v{T+1}, s9, v{T+1}")
    A("s_lshl_b32 s9, s11, 8")
    A("s_add_u32 s9, s9, 2048")
    A(f"v_lshlrev_b32 v{vVd}, 9, v{T+1}")
    A(f"v_lshl_add_u32 v{vVd}, v{T+2}, 2, v{vVd}")
    A(f"v_add_u32 v{vVd}, s9, v{vVd}")
    A("s_lshl_b32 s9, s11, 2")
    A(f"v_lshlrev_b32 v{vVs}, 3, v{T+1}")
    A(f"v_add_u32 v{vVs}, s9, v{vVs}")
    A(f"s_lshl_b32 s42, s{S_G}, 14")
    A(f"s_lshl_b32 s43, s{S_G}, 8")
    A(f"s_lshl_b32 s9, s8, 3")
    A(f"s_add_u32 s65, s9, {WS_F}")
    A(f"v_mov_b32 v{T+3}, s65")
    A(f"v_lshlrev_b32 v{T}, 2, v{vC}")
    A(f"v_cvt_f32_u32 v{T}, v{T}")
    A(f"s_mov_b32 s9, {F(TRIG_A)}")
    for j in range(4): A(f"v_mov_b32 v{W+j}, {F(TRIG_B + j * TRIG_A)}")
    for j in range(4): A(f"v_fma_f32 v{W+j}, v{T}, s9, v{W+j}")
    for j in range(4): A(f"v_exp_f32 v{W+j}, v{W+j}")
    A(f"s_lshl_b32 s9, s{S_SP}, 5")
    A(f"s_add_u32 s9, s9, s{S_QT}")
    A("s_lshl_b32 s9, s9, 5")
    trig("s9", 0, CK, SK, None)
    A("s_waitcnt lgkmcnt(0)")
    g.stamp(1)
    add64(A, 22, 22, "s42")
    add64(A, 24, 24, "s43")
    add64(A, 26, 26, "s43")
    def kloads(it):
        vo = vK0 if it == 0 else vK1
        A(f"global_load_dwordx4 {vr(KD + 8*it, 4)}, v{vo}, s[22:23] {ldmod}")
        A(f"global_load_dwordx4 {vr(KD + 8*it + 4, 4)}, v{vo}, s[22:23] offset:256 {ldmod}")
        A(f"global_load_dwordx2 {vr(KSC + 2*it, 2)}, v{vKs}, s[24:25] offset:{it*128}")
        A(f"global_load_dwordx2 {vr(KZ + 2*it, 2)}, v{vKs}, s[26:27] offset:{it*128}")
    kloads(0); kloads(1)
    add64(A, 28, 28, "s42")
    add64(A, 30, 30, "s43")
    add64(A, 32, 32, "s43")
    for i in range(8):
        ro = (8 * (i >> 2) + (i & 3)) * 8
        A(f"global_load_dword v{VSC + i}, v{vVs}, s[30:31] offset:{ro}")
        A(f"global_load_dword v{VZ + i}, v{vVs}, s[32:33] offset:{ro}")
    for i in range(8):
        for dbl in range(2):
            off = (i >> 2) * 4096 + (i & 3) * 512 + dbl * 128 - 2048
            A(f"global_load_dword v{VD + 2*i + dbl}, v{vVd}, s[28:29] offset:{off} {ldmod}")
    A(f"global_load_dword v175, v{T+3}, s[38:39] sc1")
    A("s_or_b32 s10, s2, s3")
    A("s_cmp_lg_u32 s10, 0")
    A("s_cbranch_scc1 L_NONONCE")
    A("s_memrealtime s[10:11]")
    A(f"v_mov_b32 v{T+1}, 0")
    A("s_waitcnt lgkmcnt(0)")
    A("s_or_b32 s10, s10, 1")
    A(f"v_mov_b32 v{T+2}, s10")
    A("s_mov_b64 exec, 1")
    A(f"global_store_dword v{T+1}, v{T+2}, s[{S_DBG}:{S_DBG+1}] sc1")
    A("s_mov_b64 exec, -1")
    A.label("L_NONONCE")
    srd(A, S_WS, 38, WS_SIZE)
    A(f"v_lshlrev_b32 v{vX4}, 2, v0")
    A("s_lshl_b32 s44, s2, 13")
    A(f"s_lshl_b32 s10, s{S_W}, 11")
    A("s_add_u32 s44, s44, s10")
    A(f"s_add_u32 s44, s44, {WS_X}")
    A("s_lshl_b32 s45, s2, 10")
    A(f"s_lshl_b32 s10, s{S_W}, 8")
    A("s_add_u32 s45, s45, s10")
    A(f"s_add_u32 s45, s45, {WS_L}")
    NTAIL = 1
    NV = 40 + NTAIL
    trig("s9", 16, CK + 4, SK + 4, None)
    A(f"v_lshrrev_b32 v{T}, 1, v{vC}")
    A(f"v_lshlrev_b32 v{vKst}, 10, v{T}")
    A(f"v_and_b32 v{T+1}, 1, v{vC}")
    A(f"v_lshl_add_u32 v{vKst}, v{T+1}, 9, v{vKst}")
    A(f"v_lshl_add_u32 v{vKst}, v{vR0}, 4, v{vKst}")
    A(f"v_lshl_add_u32 v{T+1}, v{T+1}, 5, v{vR0}")
    A(f"v_and_b32 v{T+2}, 7, v{vC}")
    A(f"v_xor_b32 v{T+1}, v{T+1}, v{T+2}")
    A(f"v_lshlrev_b32 v{vQw}, 10, v{T}")
    A(f"v_lshl_add_u32 v{vQw}, v{T+1}, 4, v{vQw}")
    A(f"v_lshrrev_b32 v{vSel}, 3, v{vC}")
    A(f"v_lshlrev_b32 v{vSel}, 4, v{vSel}")
    A(f"v_sub_u32 v{vSel}, 16, v{vSel}")
    A(f"s_lshl_b32 s43, s{S_G}, 14")
    A(f"s_and_b32 s9, s{S_W}, 1")
    A("s_lshl_b32 s9, s9, 10")
    A(f"s_lshr_b32 s10, s{S_W}, 1")
    A("s_lshl_b32 s10, s10, 12")
    A("s_add_u32 s9, s9, s10")
    A("s_add_u32 s9, s9, s43")
    A("s_add_u32 s9, s9, 8192")
    nst = 0
    for it in range(2):
        A(f"s_waitcnt vmcnt({NV - 4 * (it + 1) + nst})")
        if it == 0: g.stamp(2)
        x = KD + 8 * it
        sc = T + 16
        for k, src in enumerate((KSC + 2*it, KSC + 2*it + 1, KZ + 2*it, KZ + 2*it + 1)):
            A(f"v_lshlrev_b32 v{sc+k}, v{vSel}, v{src}")
        for j in range(8): A(f"v_cvt_f32_i32 v{x+j}, v{x+j}")
        for k in range(4): A(f"v_and_b32 v{sc+k}, 0xffff0000, v{sc+k}")
        for j in range(0, 4, 2):
            A(f"v_pk_add_f32 {vr(x+j, 2)}, {vr(x+j, 2)}, {vr(sc+2, 2)} op_sel_hi:[1,0] neg_lo:[0,1] neg_hi:[0,1]")
            A(f"v_pk_add_f32 {vr(x+4+j, 2)}, {vr(x+4+j, 2)}, {vr(sc+2, 2)} op_sel:[0,1] op_sel_hi:[1,1] neg_lo:[0,1] neg_hi:[0,1]")
        for j in range(0, 4, 2):
            A(f"v_pk_mul_f32 {vr(x+j, 2)}, {vr(x+j, 2)}, {vr(sc, 2)} op_sel_hi:[1,0]")
            A(f"v_pk_mul_f32 {vr(x+4+j, 2)}, {vr(x+4+j, 2)}, {vr(sc, 2)} op_sel:[0,1] op_sel_hi:[1,1]")
        out = T + 20 + 4 * it
        rope(x, CK + 4*it, SK + 4*it, out)
        A(f"buffer_store_dwordx4 {vr(out, 4)}, v{vKst}, s[{S_WS}:{S_WS+3}], s43 offen offset:{it*256} {kvmod}")
        nst += 1
    A(f"s_waitcnt vmcnt({16 + NTAIL + nst})")
    SP_, ZP_ = 72, 24
    for i in range(8):
        A(f"v_lshlrev_b32 v{SP_+2*i}, 16, v{VSC+i}")
        A(f"v_and_b32 v{SP_+2*i+1}, 0xffff0000, v{VSC+i}")
        A(f"v_lshlrev_b32 v{ZP_+2*i}, 16, v{VZ+i}")
        A(f"v_and_b32 v{ZP_+2*i+1}, 0xffff0000, v{VZ+i}")
    A(f"s_waitcnt vmcnt({NTAIL + nst})")
    g.stamp(3)
    NON = SENT + 1
    A(f"v_mov_b32 v{T+1}, 0")
    A(f"global_load_dword v{NON}, v{T+1}, s[{S_DBG}:{S_DBG+1}] sc1")
    for i in range(16): A(f"v_cvt_f32_i32 v{VD+i}, v{VD+i}")
    for i in range(8): A(f"v_pk_add_f32 {vr(VD+2*i, 2)}, {vr(VD+2*i, 2)}, {vr(ZP_+2*i, 2)} neg_lo:[0,1] neg_hi:[0,1]")
    for i in range(8): A(f"v_pk_mul_f32 {vr(VD+2*i, 2)}, {vr(VD+2*i, 2)}, {vr(SP_+2*i, 2)}")
    for dbl in range(2):
        O = T + 28 + 4 * dbl
        for k in range(4):
            A(f"v_cvt_pk_bf16_f32 v{O+k}, v{VD+(2*k)*2+dbl}, v{VD+(2*k+1)*2+dbl}")
        A(f"buffer_store_dwordx4 {vr(O, 4)}, v{V_LANE16}, s[{S_WS}:{S_WS+3}], s9 offen offset:{dbl*2048} {kvmod}")
    A(f"v_lshlrev_b32 v{vQd}, 8, v{vR0}")
    A(f"v_lshl_add_u32 v{vQd}, v{vC}, 3, v{vQd}")
    A(f"v_add_u32 v{vQd}, 2048, v{vQd}")
    A(f"s_lshl_b32 s9, s{S_QT}, 1")
    A(f"s_add_u32 s46, s9, s{S_SP}")
    A(f"s_xor_b32 s47, s46, 1")
    A(f"s_lshl_b32 s10, s{S_H}, 6")
    A("s_add_u32 s11, s10, s47")
    A("s_lshl_b32 s11, s11, 13")
    add64(A, 34, 20, "s11")
    A("s_add_u32 s11, s10, s46")
    A("s_lshl_b32 s11, s11, 13")
    add64(A, 20, 20, "s11")
    QD = 72
    for X in range(2):
        base = "s[34:35]" if X == 0 else "s[20:21]"
        for it in range(2):
            r = QD + (X * 2 + it) * 4
            A(f"global_load_dwordx2 {vr(r, 2)}, v{vQd}, {base} offset:{it*4096 - 2048} {ldmod}")
            A(f"global_load_dwordx2 {vr(r + 2, 2)}, v{vQd}, {base} offset:{it*4096 - 2048 + 128} {ldmod}")
    A("s_lshl_b32 s10, s47, 5")
    A("s_lshl_b32 s11, s46, 5")
    A(f"s_mov_b32 s42, {F(QSCALE)}")
    A(f"s_mov_b32 s43, {F(QSCALE)}")
    trig("s10", 0, CQ, SQ, 42); trig("s10", 16, CQ + 4, SQ + 4, 42)
    for j in range(4):
        A(f"s_add_u32 s9, s{S_W}, {j}")
        A("s_and_b32 s9, s9, 3")
        A("s_lshl_b32 s9, s9, 11")
        A("s_add_u32 s9, s9, 8192")
        A(f"v_add_u32 v{V_OFFV + j}, s9, v{V_LANE16}")
    A(f"s_lshl_b32 s9, s{S_W}, 3")
    A("s_add_u32 s8, s8, s9")
    A(f"s_lshl_b32 s{S_TILE}, s8, 14")
    A(f"s_add_u32 s{S_TILE+1}, s{S_TILE}, 4096")
    for t in range(1, 8):
        A(f"s_add_u32 s{S_TILE + 2*t}, s{S_TILE}, {t * 16384}")
        A(f"s_add_u32 s{S_TILE + 2*t + 1}, s{S_TILE}, {t * 16384 + 4096}")
    A(f"s_lshl_b32 s9, s{S_QT}, 2")
    A("s_add_u32 s9, s9, s65")
    A(f"v_mov_b32 v{T}, s9")
    A(f"s_lshl_b32 s9, s{S_W}, 5")
    A("s_add_u32 s9, s9, s65")
    A(f"v_lshl_add_u32 v{T+2}, v0, 2, s9")
    A("s_mov_b32 s10, 0")
    A("s_mov_b32 s9, 0")
    A("s_waitcnt vmcnt(8)")
    g.stamp(4)
    A.label("L_NPOLL")
    A(f"v_readfirstlane_b32 s{S_XCC}, v{NON}")
    A("s_nop 1")
    A(f"s_cmp_lg_u32 s{S_XCC}, 0")
    A("s_cbranch_scc1 L_NOK")
    A("s_add_u32 s10, s10, 1")
    A(f"s_cmp_ge_u32 s10, {opt.get('maxpoll0', 200)}")
    A("s_cbranch_scc1 L_NTIMEOUT")
    A(f"v_mov_b32 v{T+1}, 0")
    A(f"global_load_dword v{NON}, v{T+1}, s[{S_DBG}:{S_DBG+1}] sc1")
    A("s_waitcnt vmcnt(0)")
    A("s_branch L_NPOLL")
    A.label("L_NTIMEOUT")
    A(f"s_mov_b32 s{S_XCC}, 1")
    A("s_mov_b32 s9, 1")
    A.label("L_NOK")
    A(f"v_mov_b32 v{T+1}, s{S_XCC}")
    A("s_barrier")
    A("s_mov_b64 exec, 1")
    A(f"global_store_dword v{T}, v{T+1}, s[38:39]")
    FL = SENT + 2
    A("s_mov_b64 exec, 0xff")
    A(f"global_load_dword v{FL}, v{T+2}, s[38:39] sc1")
    A("s_mov_b64 exec, -1")
    A("s_mov_b32 s65, s9")
    trig("s11", 0, CQ + 8, SQ + 8, 42); trig("s11", 16, CQ + 12, SQ + 12, 42)
    A("s_waitcnt vmcnt(2)")
    g.stamp(5)
    for pc in range(4):
        X, it = pc >> 1, pc & 1
        r = QD + pc * 4
        x = 96 + 8 * (pc & 1)
        for hh in range(2):
            for k in range(2):
                A(f"v_lshlrev_b32 v{x+4*hh+2*k}, 16, v{r+2*hh+k}")
                A(f"v_and_b32 v{x+4*hh+2*k+1}, 0xffff0000, v{r+2*hh+k}")
        out = T + 20 + 4 * (pc & 1)
        rope(x, CQ + 4*pc, SQ + 4*pc, out)
        A(f"ds_write_b128 v{vQw}, {vr(out, 4)} offset:{X*8192 + it*256}")
    A("s_mov_b32 s10, 0")
    A("s_mov_b32 s11, s65")
    A("s_mov_b64 exec, 0xff")
    A.label("L_FPOLL")
    A("s_waitcnt vmcnt(0)")
    A(f"v_cmp_ne_u32 vcc, s{S_XCC}, v{FL}")
    A("s_cbranch_vccz L_FOK")
    A("s_add_u32 s10, s10, 1")
    A(f"s_cmp_ge_u32 s10, {opt.get('maxpoll1', 400)}")
    A("s_cbranch_scc1 L_FTIMEOUT")
    A(f"global_load_dword v{FL}, v{T+2}, s[38:39] sc1")
    A("s_branch L_FPOLL")
    A.label("L_FTIMEOUT")
    A("s_mov_b32 s11, 1")
    A.label("L_FOK")
    A("s_mov_b64 exec, -1")
    g.stamp(6)
    if opt.get("stamp"): A(f"s_mov_b32 s{ST0 + 2*11}, s10")
    seq = stream()
    rmod = opt.get("ring_mod", "")
    DEPTH = opt.get("depth", 32)
    for p in range(DEPTH): A(ring_load(seq, p, rmod))
    SE = T + 4
    for j in range(4): A(f"v_mov_b32 v{SE + j}, -1")
    A(f"buffer_store_dwordx4 {vr(SE, 4)}, v{V_LANE16}, s[{S_WS}:{S_WS+3}], s44 offen sc1")
    A(f"buffer_store_dwordx4 {vr(SE, 4)}, v{V_LANE16}, s[{S_WS}:{S_WS+3}], s44 offen offset:1024 sc1")
    A(f"buffer_store_dword v{SE}, v{vX4}, s[{S_WS}:{S_WS+3}], s45 offen sc1")
    A(f"s_lshl_b32 s10, s{S_W}, 2")
    A(f"s_add_u32 s10, s10, {LFAIL}")
    A(f"v_mov_b32 v{T}, s10")
    A(f"v_mov_b32 v{T+1}, s11")
    A(f"ds_write_b32 v{T}, v{T+1}")
    A(f"v_lshrrev_b32 v{T+2}, 5, v0")
    for k in range(4):
        A(f"v_add_u32 v{8+k}, {2*k}, v{T+2}")
        A(f"v_xor_b32 v{8+k}, v{8+k}, v0")
        A(f"v_lshlrev_b32 v{8+k}, 4, v{8+k}")
    A(f"v_mov_b32 v{T}, {LFAIL}")
    A(f"v_mov_b32 v{V_LA}, 0")
    A(f"v_mov_b32 v{V_LB}, 0")
    A("s_waitcnt lgkmcnt(0)")
    A("s_barrier")
    A(f"ds_read_b128 {vr(T+8, 4)}, v{T}")
    for ks in range(4):
        for X in range(2):
            A(f"ds_read_b128 {Qreg(X, ks)}, v{8 + (ks & 3)} offset:{(X * 8 + ks) * 1024}")
    A("s_waitcnt lgkmcnt(8)")
    A(f"v_or3_b32 v{T+8}, v{T+8}, v{T+9}, v{T+10}")
    A(f"v_or_b32 v{T+8}, v{T+8}, v{T+11}")
    A("s_nop 0")
    A(f"v_readfirstlane_b32 s10, v{T+8}")
    A("s_nop 1")
    A("s_cmp_lg_u32 s10, 0")
    A("s_cbranch_scc1 L_FALLBACK_EARLY")
    g.stamp(7)
    g.stamp_wait()

def gen_main(g):
    A, opt = g.A, g.opt
    if opt.get("align64"): A(".p2align 6")
    for _ in range(opt.get("prenop", 0)): A("s_nop 0")
    seq = stream()
    rmod = opt.get("ring_mod", "")
    pos_of = {(k, t, i): p for p, (k, t, i) in enumerate(seq)}
    ops = []
    def phase(kind, t, Xs=(0, 1)):
        if len(Xs) == 2:
            for i in range(8):
                for X in (0, 1): ops.append((kind, t, i, X))
        else:
            for i in range(8): ops.append((kind, t, i, Xs[0]))
    phase("K", 0)
    for t in range(6):
        phase("K", t + 1); phase("V", t)
    phase("K", 7)
    phase("V", 6, (0,)); phase("V", 7, (0,))
    iB = len(ops)
    phase("V", 6, (1,)); phase("V", 7, (1,))
    NG = len(ops); assert NG == 256
    first, last = {}, {}
    for n, (k, t, i, X) in enumerate(ops):
        p = pos_of[(k, t, i)]
        first.setdefault(p, n); last[p] = n
    lastS = {}
    for n, (k, t, i, X) in enumerate(ops):
        if k == "K": lastS[(t, X)] = n
    firstP = {}
    for n, (k, t, i, X) in enumerate(ops):
        if k == "V": firstP.setdefault((t, X, i >> 2), n)
    tasks = []
    for t in range(8):
        if t < 7:
            order = [(0, 0), (1, 0), (0, 1), (1, 1)]
        else:
            order = [(0, 0), (0, 1), (1, 0), (1, 1)]
        if t == 6: order = [(0, 0), (0, 1), (1, 0), (1, 1)]
        for X, half in order:
            for j in range(8 * half, 8 * half + 8): tasks.append((t, X, j))
    def avail(t, X):
        lag = opt.get("lag0", 5) if t == 0 else opt.get("lag", 3)
        return lastS[(t, X)] + lag + (0 if X == 1 else 1)
    def deadline(t, X, j): return firstP[(t, X, j >> 3)]
    plan = [[] for _ in range(NG)]
    MARG = 3
    CAP = opt.get("cap", 2)
    LS = [0] * len(tasks); cnt = {}; nxt = 10 ** 9
    for k in range(len(tasks) - 1, -1, -1):
        t, X, j = tasks[k]
        gg = min(deadline(t, X, j) - MARG, nxt)
        while cnt.get(gg, 0) >= CAP: gg -= 1
        cnt[gg] = cnt.get(gg, 0) + 1
        LS[k] = gg; nxt = gg
    done = 0
    for gg in range(NG):
        n = 0
        while done < len(tasks) and avail(tasks[done][0], tasks[done][1]) <= gg and (n < 1 or LS[done] <= gg):
            plan[gg].append(tasks[done]); done += 1; n += 1
        if done < len(tasks): assert LS[done] > gg, ("deadline miss", gg, tasks[done], LS[done])
    assert done == len(tasks)
    if opt.get("show_plan"):
        print("elements per gap:", "".join(str(len(x)) for x in plan), file=sys.stderr)
    st = dict(add=[], cvt=[])
    E64 = "_e64" if opt.get("e64") else ""
    def fillers(gg):
        out = []
        adds, cvts = st["add"], st["cvt"]
        st["add"], st["cvt"] = [], []
        exps = []
        for (t, X, j) in plan[gg]:
            s = Sreg(t & 1, X) + j
            exps.append(f"v_exp_f32{E64} v{s}, v{s}")
            st["add"].append((t, X, j))
            if j & 1: st["cvt"].append((t, X, j))
        rest = []
        for (t, X, j) in adds:
            rest.append(f"v_add_f32{E64} v{V_LA + X}, v{V_LA + X}, v{Sreg(t & 1, X) + j}")
        for (t, X, j) in cvts:
            s = Sreg(t & 1, X) + j
            rest.append(f"v_cvt_pk_bf16_f32 v{Preg(t & 1, X) + (j >> 1)}, v{s - 1}, v{s}")
        while exps or rest:
            if exps: out.append(exps.pop(0))
            if rest: out.append(rest.pop(0))
            if rest and not exps: out += rest; rest = []
        return out
    extra = {n: [] for n in range(NG)}
    epi = Epi(g)
    pre = epi.address_setup()
    for k, ins in enumerate(pre):
        extra[200 + k // 2].append(ins)
    wa = epi.lwrite(0) + epi.owrite(0)
    lastA_add = max(n for n in range(NG) for (t, X, j) in plan[n] if X == 0) + 1
    startA = max(iB + 2, lastA_add + 1)
    for k, ins in enumerate(wa):
        extra[min(NG - 4, startA + k)].append(ins)
    DEPTH = opt.get("depth", 32)
    issued = DEPTH
    def younger(p):
        return (issued - 1 - p) + (3 if p < DEPTH else 0)
    for n, (k, t, i, X) in enumerate(ops):
        p = pos_of[(k, t, i)]
        if n in (0, 16, 32, 128, 240): A.c(f"---- mfma {n}: {k}{t} i{i} X{X}")
        if opt.get("stamp") and opt.get("loopstamp") and n in (32, 64, 96, 128, 160, 192, 224):
            g.stamp(n // 32)
        if first[p] == n:
            w = f"s_waitcnt vmcnt({younger(p)})"
            if k == "K" and t == 0:
                nq = min(7, i + 3) - i
                w += f" lgkmcnt({2 * nq})"
            A(w)
            if opt.get("e64"): A("s_nop 0")
        frag = ring(p)
        if k == "K":
            S = vr(Sreg(t & 1, X), 16)
            C = "0" if i == 0 else S
            A(f"v_mfma_f32_32x32x16_bf16 {S}, {frag}, {Qreg(X, i)}, {C}")
        else:
            j, ks = i & 3, i >> 2
            O = Oreg(X, j)
            C = "0" if (t == 0 and ks == 0) else O
            A(f"v_mfma_f32_32x32x16_bf16 {O}, {frag}, {vr(Preg(t & 1, X) + 4 * ks, 4)}, {C}")
        fl = fillers(n)
        if last[p] == n and issued < 128 and p + DEPTH == issued:
            fl.insert(min(1, len(fl)), ring_load(seq, issued, rmod)); issued += 1
        if k == "K" and t == 0 and X == 1 and i + 4 <= 7:
            for XX in range(2):
                fl.append(f"ds_read_b128 {Qreg(XX, i + 4)}, v{8 + ((i + 4) & 3)} offset:{(XX * 8 + i + 4) * 1024}")
        fl += extra[n]
        for l in fl: A(l)
    assert issued == 128
    assert not st["cvt"]
    for (t, X, j) in st["add"]:
        A(f"v_add_f32 v{V_LA + X}, v{V_LA + X}, v{Sreg(t & 1, X) + j}")
    epi.finish()

class Epi:
    vWr = [None, 8, 9, 10]; vRd = 11; vLw = 12; vLr = 13; vX = 14
    TA = V_S
    TL = 64
    PK = 72
    RX = 80
    def __init__(self, g): self.g = g; self.A = g.A; self.opt = g.opt
    def address_setup(self):
        L = []
        for j in range(1, 4):
            L += [f"s_add_u32 s9, s{S_W}, {j}", "s_and_b32 s9, s9, 3", "s_mul_i32 s9, s9, 12288",
                  f"s_add_u32 s9, s9, {RED_A + (j - 1) * 4096}", f"v_add_u32 v{self.vWr[j]}, s9, v{V_LANE16}"]
        L += [f"s_mul_i32 s9, s{S_W}, 12288", f"s_add_u32 s9, s9, {RED_A}", f"v_add_u32 v{self.vRd}, s9, v{V_LANE16}"]
        L += ["v_and_b32 v15, 31, v0", f"v_lshlrev_b32 v{self.vLr}, 5, v15", f"v_add_u32 v{self.vLr}, {LRED}, v{self.vLr}",
              "v_lshrrev_b32 v15, 5, v0", f"v_lshl_add_u32 v{self.vLw}, v15, 2, v{self.vLr}",
              f"s_lshl_b32 s9, s{S_W}, 3", f"v_add_u32 v{self.vLw}, s9, v{self.vLw}",
              f"v_lshlrev_b32 v{self.vX}, 2, v0"]
        L += ["s_xor_b32 s46, s44, 8192", "s_xor_b32 s47, s45, 1024"]
        L += [f"s_lshl_b32 s9, s{S_H}, 6", f"s_lshl_b32 s10, s{S_QT}, 1", "s_add_u32 s9, s9, s10", f"s_add_u32 s9, s9, s{S_SP}",
              "s_lshl_b32 s9, s9, 13", f"s_lshl_b32 s10, s{S_W}, 6", "s_add_u32 s42, s9, s10",
              "v_and_b32 v15, 31, v0", "v_lshlrev_b32 v15, 8, v15"]
        L += [f"s_mov_b32 s{S_OUT}, s{S_OUTP}", f"s_and_b32 s{S_OUT+1}, s{S_OUTP+1}, 0xffff", f"s_mov_b32 s{S_OUT+2}, {2 << 20}", f"s_mov_b32 s{S_OUT+3}, 0x20000"]
        return L
    def lwrite(self, X):
        return [f"ds_write_b32 v{self.vLw}, v{V_LA + X} offset:{X * 1024}"]
    def owrite(self, X):
        L = []
        for j in range(1, 4):
            for qd in range(4):
                a = A_O + X * 48 + (j - 1) * 16 + qd * 4
                L.append(f"ds_write_b128 v{self.vWr[j]}, {ar(a, 4)} offset:{X * RED_BOFF + qd * 1024}")
        return L
    def oread(self, X):
        L = [f"ds_read_b128 {vr(self.TL, 4)}, v{self.vLr} offset:{X * 1024}",
             f"ds_read_b128 {vr(self.TL + 4, 4)}, v{self.vLr} offset:{X * 1024 + 16}"]
        for j in range(1, 4):
            for qd in range(4):
                L.append(f"ds_read_b128 {vr(self.TA + (j - 1) * 16 + qd * 4, 4)}, v{self.vRd} offset:{X * RED_BOFF + (j - 1) * 4096 + qd * 1024}")
        return L
    def sums(self, X):
        A = self.A; TL = self.TL; O = V_O0 + 16 * X
        A(f"v_add_f32 v{TL}, v{TL}, v{TL + 1}")
        A(f"v_add_f32 v{TL + 2}, v{TL + 2}, v{TL + 3}")
        A(f"v_add_f32 v{TL + 4}, v{TL + 4}, v{TL + 5}")
        A(f"v_add_f32 v{TL + 6}, v{TL + 6}, v{TL + 7}")
        A(f"v_add_f32 v{TL}, v{TL}, v{TL + 2}")
        A(f"v_add_f32 v{TL + 4}, v{TL + 4}, v{TL + 6}")
        A(f"v_add_f32 v{V_LA + X}, v{TL}, v{TL + 4}")
        for j in range(3):
            for r in range(0, 16, 2):
                A(f"v_pk_add_f32 {vr(O + r, 2)}, {vr(O + r, 2)}, {vr(self.TA + j * 16 + r, 2)}")
    def finish(self):
        g, A, opt = self.g, self.A, self.opt
        PK, RX = self.PK, self.RX
        A.c("==== epilogue")
        g.stamp(8)
        ws = f"s[{S_WS}:{S_WS+3}]"
        A("s_waitcnt lgkmcnt(0)")
        A("s_barrier")
        for l in self.oread(0): A(l)
        for l in self.lwrite(1): A(l)
        A("s_waitcnt lgkmcnt(1)")
        self.sums(0)
        for k in range(8):
            A(f"v_cvt_pk_bf16_f32 v{PK + k}, v{V_O0 + 2 * k}, v{V_O0 + 2 * k + 1}")
        omod = opt.get("xchg_mod", "sc1")
        A(f"buffer_store_dwordx4 {vr(PK, 4)}, v{V_LANE16}, {ws}, s46 offen {omod}")
        A(f"buffer_store_dwordx4 {vr(PK + 4, 4)}, v{V_LANE16}, {ws}, s46 offen offset:1024 {omod}")
        A(f"buffer_store_dword v{V_LA}, v{self.vX}, {ws}, s47 offen {omod}")
        g.stamp(9)
        def poll():
            A(f"buffer_load_dwordx4 {vr(RX, 4)}, v{V_LANE16}, {ws}, s44 offen sc1")
            A(f"buffer_load_dwordx4 {vr(RX + 4, 4)}, v{V_LANE16}, {ws}, s44 offen offset:1024 sc1")
            A(f"buffer_load_dword v{RX + 8}, v{self.vX}, {ws}, s45 offen sc1")
        for l in self.owrite(1): A(l)
        poll()
        A("s_waitcnt lgkmcnt(0)")
        A("s_barrier")
        for l in self.oread(1): A(l)
        A("s_mov_b32 s10, 0")
        A("s_waitcnt lgkmcnt(0)")
        self.sums(1)
        A("s_branch L_POLLW")
        A.label("L_POLL")
        poll()
        A.label("L_POLLW")
        A("s_waitcnt vmcnt(0)")
        A(f"v_max3_u32 v90, v{RX}, v{RX + 1}, v{RX + 2}")
        A(f"v_max3_u32 v91, v{RX + 3}, v{RX + 4}, v{RX + 5}")
        A(f"v_max3_u32 v92, v{RX + 6}, v{RX + 7}, v{RX + 8}")
        A("v_max3_u32 v90, v90, v91, v92")
        A("s_add_u32 s10, s10, 1")
        A("v_cmp_eq_u32 vcc, -1, v90")
        A(f"s_cmp_ge_u32 s10, {opt.get('maxpoll2', 200)}")
        A("s_cbranch_scc1 L_FALLBACK")
        A("s_cbranch_vccnz L_POLL")
        g.stamp(10)
        if opt.get("stamp"): A(f"s_mov_b32 s{ST0 + 2*11 + 1}, s10")
        O = V_O0 + 16
        A(f"v_add_f32 v{V_LB}, v{V_LB}, v{RX + 8}")
        for k in range(8):
            A(f"v_lshlrev_b32 v{16 + 2 * k}, 16, v{RX + k}")
            A(f"v_and_b32 v{17 + 2 * k}, 0xffff0000, v{RX + k}")
        A(f"v_rcp_f32 v32, v{V_LB}")
        for r in range(0, 16, 2):
            A(f"v_pk_add_f32 {vr(O + r, 2)}, {vr(O + r, 2)}, {vr(16 + r, 2)}")
        A("v_pk_mul_f32 v[34:35], v[%d:%d], 0" % (O, O + 1))
        for r in range(2, 16, 2):
            A(f"v_pk_fma_f32 v[34:35], {vr(O + r, 2)}, 0, v[34:35]")
        A(f"s_mov_b32 s9, {F(2.0 ** -30)}")
        A(f"s_mov_b32 s10, {F(2.0 ** 30)}")
        A(f"v_cmp_le_f32 s[46:47], s9, v{V_LB}")
        A(f"v_cmp_ge_f32 s[8:9], s10, v{V_LB}")
        A("v_cmp_o_f32 vcc, v34, v35")
        A("v_mov_b32 v33, v32")
        A("s_and_b64 s[46:47], s[46:47], s[8:9]")
        A("s_and_b64 s[46:47], s[46:47], vcc")
        A("s_cmp_eq_u64 s[46:47], exec")
        A("s_cbranch_scc0 L_FALLBACK")
        for r in range(0, 16, 2):
            A(f"v_pk_mul_f32 {vr(O + r, 2)}, {vr(O + r, 2)}, v[32:33]")
        A.label("L_STORE")
        for k in range(8):
            A(f"v_cvt_pk_bf16_f32 v{PK + k}, v{O + 2 * k}, v{O + 2 * k + 1}")
        A("v_lshrrev_b32 v37, 5, v0")
        A("v_lshl_add_u32 v36, v37, 5, v15")
        om = opt.get("out_mod", "")
        A(f"buffer_store_dwordx4 {vr(PK, 4)}, v36, s[{S_OUT}:{S_OUT+3}], s42 offen {om}")
        A(f"buffer_store_dwordx4 {vr(PK + 4, 4)}, v36, s[{S_OUT}:{S_OUT+3}], s42 offen offset:16 {om}")
        if opt.get("stamp"):
            A("s_waitcnt vmcnt(0)")
            g.stamp(12)
            A("s_waitcnt lgkmcnt(0)")
            if opt.get("dbgstamp"):
                A("s_mov_b64 exec, 1")
                A("v_mov_b32 v174, 0")
                A(f"s_not_b32 s98, s{ST0}")
                A("v_mov_b32 v175, s98")
                A(f"global_atomic_umax v174, v175, s[{S_DBG}:{S_DBG+1}] offset:4 sc1")
                for k, idx in enumerate((1, 2, 3, 4, 6, 7, 8, 9, 10, 12)):
                    A(f"v_mov_b32 v175, s{ST0 + 2 * idx}")
                    A(f"global_atomic_umax v174, v175, s[{S_DBG}:{S_DBG+1}] offset:{8 + 4 * k} sc1")
                A("s_endpgm")
            A("s_lshl_b32 s98, s2, 2")
            A(f"s_add_u32 s98, s98, s{S_W}")
            A("s_lshl_b32 s98, s98, 7")
            A(f"s_add_u32 s98, s98, {WS_STAMP}")
            A("v_mov_b32 v174, s98")
            A("s_mov_b64 exec, 1")
            for i in range(13):
                A(f"v_mov_b32 v175, s{ST0 + 2 * i}")
                A(f"global_store_dword v174, v175, s[38:39] offset:{4 * i}")
            A(f"v_mov_b32 v175, s{ST0 + 2*11 + 1}")
            A(f"global_store_dword v174, v175, s[38:39] offset:{4 * 13}")
        A.label("L_END")
        A("s_endpgm")

def gen_fallback(g):
    A, opt = g.A, g.opt
    S = 16; P = 32; XL = 40; KS = 48; KZ = 50; CS = 52; SN = 56; U = 60; KF = 68; QF = 72; WV = 76
    VX = 80; VS = 88; VZ = 96; VF = 104
    M, L, T0, T1, POS, vM, vH, vA = 108, 109, 110, 111, 144, 145, 146, 147
    vKo, vSo, vVo, vVso = 148, 149, 150, 151
    O = V_O0 + 16
    A.label("L_FALLBACK_EARLY")
    for l in Epi(g).address_setup(): A(l)
    A.label("L_FALLBACK")
    A("s_waitcnt vmcnt(0) lgkmcnt(0)")
    A(f"s_load_dwordx16 s[{S_ARG}:{S_ARG+15}], s[0:1], 0")
    A(f"v_and_b32 v{vM}, 31, v0")
    A(f"v_lshrrev_b32 v{vH}, 5, v0")
    A(f"v_lshlrev_b32 v{vKo}, 9, v{vM}")
    A(f"v_lshl_add_u32 v{vKo}, v{vH}, 4, v{vKo}")
    A(f"v_lshlrev_b32 v{vSo}, 3, v{vM}")
    A(f"v_bfe_u32 v{T0}, v{vM}, 2, 1")
    A(f"v_lshlrev_b32 v{T0}, 4, v{T0}")
    A(f"v_lshrrev_b32 v{T1}, 3, v{vM}")
    A(f"v_lshl_add_u32 v{T0}, v{T1}, 2, v{T0}")
    A(f"v_and_b32 v{T1}, 3, v{vM}")
    A(f"v_add_u32 v{T0}, v{T0}, v{T1}")
    A(f"s_lshl_b32 s9, s{S_W}, 5")
    A(f"v_add_u32 v{T0}, s9, v{T0}")
    A(f"v_lshlrev_b32 v{T0}, 2, v{T0}")
    A(f"v_lshl_add_u32 v{vVo}, v{vH}, 11, v{T0}")
    A(f"s_lshl_b32 s9, s{S_W}, 1")
    A(f"v_lshlrev_b32 v{vVso}, 5, v{vH}")
    A(f"v_add_u32 v{vVso}, s9, v{vVso}")
    A(f"v_mov_b32 v{M}, 0xff800000")
    A(f"v_mov_b32 v{L}, 0")
    for r in range(16): A(f"v_mov_b32 v{O + r}, 0")
    A("s_waitcnt lgkmcnt(0)")
    A(f"s_lshl_b32 s8, s{S_H}, 20")
    A(f"s_lshl_b32 s9, s{S_H}, 14")
    add64(A, 22, 22, "s8"); add64(A, 28, 28, "s8")
    add64(A, 24, 24, "s9"); add64(A, 26, 26, "s9"); add64(A, 30, 30, "s9"); add64(A, 32, 32, "s9")
    A("s_mov_b32 s48, 0")
    A.label("L_FB_TILE")
    A(f"global_load_dwordx2 {vr(KS, 2)}, v{vSo}, s[24:25]")
    A(f"global_load_dwordx2 {vr(KZ, 2)}, v{vSo}, s[26:27]")
    A("s_lshl_b32 s49, s48, 5")
    A(f"v_add_u32 v{POS}, s49, v{vM}")
    A(f"v_cvt_f32_u32 v{POS}, v{POS}")
    for r in range(16): A(f"v_mov_b32 v{S + r}, 0")
    A("s_mov_b32 s50, 0")
    A.label("L_FB_KS")
    A("s_lshl_b32 s51, s50, 5")
    A(f"v_add_u32 v{vA}, s51, v{vKo}")
    A(f"global_load_dwordx4 {vr(XL, 4)}, v{vA}, s[22:23]")
    A(f"global_load_dwordx4 {vr(XL + 4, 4)}, v{vA}, s[22:23] offset:256")
    A("s_and_b32 s51, s50, 3")
    A("s_lshl_b32 s51, s51, 1")
    A(f"v_add_u32 v{vA}, s51, v{vH}")
    A(f"v_xor_b32 v{vA}, v{vA}, v0")
    A(f"v_lshlrev_b32 v{vA}, 4, v{vA}")
    A("s_lshl_b32 s51, s50, 10")
    A("s_add_u32 s51, s51, 8192")
    A(f"v_add_u32 v{vA}, s51, v{vA}")
    A(f"ds_read_b128 {vr(QF, 4)}, v{vA}")
    A("s_lshl_b32 s51, s50, 1")
    A(f"v_add_u32 v{T0}, s51, v{vH}")
    A(f"v_lshlrev_b32 v{T0}, 2, v{T0}")
    A(f"v_cvt_f32_u32 v{T0}, v{T0}")
    A(f"s_mov_b32 s51, {F(TRIG_A)}")
    for j in range(4): A(f"v_mov_b32 v{WV + j}, {F(TRIG_B + j * TRIG_A)}")
    for j in range(4): A(f"v_fma_f32 v{WV + j}, v{T0}, s51, v{WV + j}")
    for j in range(4): A(f"v_exp_f32 v{WV + j}, v{WV + j}")
    A("s_nop 0")
    for j in range(4): A(f"v_mul_f32 v{WV + j}, v{POS}, v{WV + j}")
    for j in range(4): A(f"v_fract_f32 v{WV + j}, v{WV + j}")
    for j in range(4):
        A(f"v_cos_f32 v{CS + j}, v{WV + j}")
        A(f"v_sin_f32 v{SN + j}, v{WV + j}")
    A("s_cmp_lt_u32 s50, 4")
    A("s_cselect_b32 s51, 16, 0")
    A("s_waitcnt vmcnt(0) lgkmcnt(0)")
    for k, src in enumerate((KS, KS + 1, KZ, KZ + 1)):
        A(f"v_lshlrev_b32 v{U + k}, s51, v{src}")
    for k in range(4): A(f"v_and_b32 v{WV + k}, 0xffff0000, v{U + k}")
    for j in range(8): A(f"v_cvt_f32_i32 v{XL + j}, v{XL + j}")
    for j in range(8): A(f"v_sub_f32 v{XL + j}, v{XL + j}, v{WV + 2 + (j >> 2)}")
    for j in range(8): A(f"v_mul_f32 v{XL + j}, v{XL + j}, v{WV + (j >> 2)}")
    for j in range(4):
        A(f"v_mul_f32 v{U + j}, v{XL + 4 + j}, v{SN + j}")
        A(f"v_mul_f32 v{U + 4 + j}, v{XL + j}, v{SN + j}")
    for j in range(4):
        A(f"v_fma_f32 v{U + j}, v{XL + j}, v{CS + j}, -v{U + j}")
        A(f"v_fma_f32 v{U + 4 + j}, v{XL + 4 + j}, v{CS + j}, v{U + 4 + j}")
    for k in range(4): A(f"v_cvt_pk_bf16_f32 v{KF + k}, v{U + 2 * k}, v{U + 2 * k + 1}")
    A("s_nop 1")
    A(f"v_mfma_f32_32x32x16_bf16 {vr(S, 16)}, {vr(KF, 4)}, {vr(QF, 4)}, {vr(S, 16)}")
    A("s_nop 15")
    A("s_add_u32 s50, s50, 1")
    A("s_cmp_lt_u32 s50, 8")
    A("s_cbranch_scc1 L_FB_KS")
    A(f"v_max3_f32 v{T0}, v{S}, v{S + 1}, v{S + 2}")
    for r in range(3, 15, 2): A(f"v_max3_f32 v{T0}, v{T0}, v{S + r}, v{S + r + 1}")
    A(f"v_max_f32 v{T0}, v{T0}, v{S + 15}")
    A(f"v_mov_b32 v{T1}, v{T0}")
    A("s_nop 1")
    A(f"v_permlane32_swap_b32 v{T0}, v{T1}")
    A("s_nop 1")
    A(f"v_max3_f32 v{T0}, v{T0}, v{T1}, v{M}")
    A(f"v_sub_f32 v{T1}, v{M}, v{T0}")
    A(f"v_exp_f32 v{T1}, v{T1}")
    A(f"v_mov_b32 v{M}, v{T0}")
    for r in range(16): A(f"v_sub_f32 v{S + r}, v{S + r}, v{T0}")
    for r in range(16): A(f"v_exp_f32 v{S + r}, v{S + r}")
    A(f"v_mul_f32 v{L}, v{L}, v{T1}")
    for r in range(16): A(f"v_mul_f32 v{O + r}, v{O + r}, v{T1}")
    for r in range(16): A(f"v_add_f32 v{L}, v{L}, v{S + r}")
    for k in range(8): A(f"v_cvt_pk_bf16_f32 v{P + k}, v{S + 2 * k}, v{S + 2 * k + 1}")
    for kst in range(2):
        A(f"v_add_u32 v{vA}, {kst * 8192}, v{vVo}")
        A(f"v_add_u32 v{T0}, {kst * 8192 + 4096}, v{vVo}")
        for i in range(8):
            A(f"global_load_dword v{VX + i}, v{vA if i < 4 else T0}, s[28:29] offset:{(i & 3) * 512}")
        for i in range(8):
            ro = (16 * kst + 8 * (i >> 2) + (i & 3)) * 8
            A(f"global_load_ushort v{VS + i}, v{vVso}, s[30:31] offset:{ro}")
            A(f"global_load_ushort v{VZ + i}, v{vVso}, s[32:33] offset:{ro}")
        A("s_waitcnt vmcnt(0)")
        for i in range(8):
            A(f"v_cvt_f32_i32 v{VX + i}, v{VX + i}")
            A(f"v_lshlrev_b32 v{VS + i}, 16, v{VS + i}")
            A(f"v_lshlrev_b32 v{VZ + i}, 16, v{VZ + i}")
        for i in range(8): A(f"v_sub_f32 v{VX + i}, v{VX + i}, v{VZ + i}")
        for i in range(8): A(f"v_mul_f32 v{VX + i}, v{VX + i}, v{VS + i}")
        for k in range(4): A(f"v_cvt_pk_bf16_f32 v{VF + k}, v{VX + 2 * k}, v{VX + 2 * k + 1}")
        A("s_nop 1")
        A(f"v_mfma_f32_32x32x16_bf16 {vr(O, 16)}, {vr(VF, 4)}, {vr(P + 4 * kst, 4)}, {vr(O, 16)}")
        A("s_nop 15")
    add64(A, 22, 22, 16384); add64(A, 28, 28, 16384)
    add64(A, 24, 24, 256); add64(A, 26, 26, 256); add64(A, 30, 30, 256); add64(A, 32, 32, 256)
    A("s_add_u32 s48, s48, 1")
    A("s_cmp_lt_u32 s48, 64")
    A("s_cbranch_scc1 L_FB_TILE")
    A(f"v_mov_b32 v{T1}, v{L}")
    A("s_nop 1")
    A(f"v_permlane32_swap_b32 v{L}, v{T1}")
    A("s_nop 1")
    A(f"v_add_f32 v{L}, v{L}, v{T1}")
    A(f"v_rcp_f32 v{L}, v{L}")
    A("s_nop 0")
    for r in range(16): A(f"v_mul_f32 v{O + r}, v{O + r}, v{L}")
    A("s_branch L_STORE")

def kd(A, name, vgpr, sgpr, accum):
    A(f".amdhsa_kernel {name}")
    A(f"  .amdhsa_next_free_vgpr {vgpr}")
    A(f"  .amdhsa_next_free_sgpr {sgpr}")
    A(f"  .amdhsa_accum_offset {accum}")
    A("  .amdhsa_group_segment_fixed_size 0")
    A("  .amdhsa_kernarg_size 112")
    A("  .amdhsa_user_sgpr_count 2")
    A("  .amdhsa_user_sgpr_kernarg_segment_ptr 1")
    A("  .amdhsa_system_sgpr_workgroup_id_x 1")
    A(".end_amdhsa_kernel")

HEADER = open("cdna_kernels/" + NAME + ".s.ref").read().split("; Override launch geometry")[0]

def generate(opt):
    g = G(opt); A = g.A
    A(HEADER.rstrip("\n"))
    A(f"; @launch grid=(256,1,1) block=(256,1,1) lds={LDS_BYTES}")
    A('.amdgcn_target "amdgcn-amd-amdhsa--gfx950"')
    A(".text")
    A(f".globl {KNAME}\n.p2align 8\n.type {KNAME},@function")
    A.label(KNAME)
    n0 = len(A.lines)
    gen_prologue(g)
    if opt.get("force_fallback"): A("s_branch L_FALLBACK_EARLY")
    gen_main(g)
    n1 = len(A.lines)
    gen_fallback(g)
    n2 = len(A.lines)
    A('.section .rodata,"a"\n.p2align 6')
    kd(A, KNAME, NVGPR_ARCH + 256, 102 if opt.get("stamp") else 72, NVGPR_ARCH)
    L = A.lines
    errs = check(L[n0:n1], "main") + check(L[n1:n2], "fallback")
    return A.text(), errs

if __name__ == "__main__":
    opt = {}
    for a in sys.argv[2:]:
        k, v = a.split("=")
        try: v = int(v)
        except ValueError: pass
        opt[k] = v
    txt, errs = generate(opt)
    out = sys.argv[1]
    open(out, "w").write(txt)
    print("wrote", out, len(txt), "bytes;", len(errs), "check problems")
```

```python
import sys, math, struct
from asmlib import Asm, vr, ar, sr, check

NAME = "standalone__kv_cache_quant_pre_rope_vs_post_rope__prompt"
KNAME = NAME + "_kernel"

WS_KV = 0
WS_X  = 4 << 20
WS_L  = 6 << 20
WS_F  = 7 << 20
WS_SIZE = 8 << 20
WS_STAMP = 12 << 20

def f32bits(x): return struct.unpack("<I", struct.pack("<f", x))[0]
def F(x): return f"0x{f32bits(x):08x}"
QSCALE = math.log2(math.e) / math.sqrt(128.0)
TRIG_A = -math.log2(10000.0) / 64.0
TRIG_B = -math.log2(2 * math.pi)

LDS_Q = 0
RED_A = 16384
RED_BOFF = 49152
LRED = 114688
LFAIL = 116736
LDS_BYTES = 116736 + 64

S_W, S_H, S_SP, S_QT, S_G = 3, 4, 5, 6, 7
S_WS = 12
S_OUT = 16
S_ARG = 20
S_DBG = 36
S_OUTP = 40
S_TILE = 48
S_XCC = 64
S_T0 = 92
ST0 = 66

V_LANE16 = 1
V_OFFV = 2
V_LA, V_LB = 6, 7
V_S = 16
V_P = 80
V_O0 = 112
V_RING = 144
A_O = 0
A_Q = 96
A_RING = 160
NVGPR_ARCH = 176

def Sreg(par, X): return V_S + (par * 2 + X) * 16
def Preg(par, X): return V_P + (par * 2 + X) * 8
def Oreg(X, j):
    if j == 0: return vr(V_O0 + 16 * X, 16)
    return ar(A_O + X * 48 + (j - 1) * 16, 16)
def Qreg(X, ks): return ar(A_Q + (X * 8 + ks) * 4, 4)
RINGSZ = 32
def ring(p):
    s = p % RINGSZ
    return ar(A_RING + s * 4, 4) if s < 24 else vr(V_RING + (s - 24) * 4, 4)

class G:
    def __init__(self, opt):
        self.opt = opt; self.A = Asm(); self.nst = 0
    def stamp(self, idx):
        o = self.opt
        if o.get("stamp"):
            self.A(f"{'s_memtime' if o['stamp'] == 2 else 's_memrealtime'} s[{ST0 + 2*idx}:{ST0 + 2*idx + 1}]")
    def stamp_wait(self):
        if self.opt.get("stamp"): self.A("s_waitcnt lgkmcnt(0)")

def srd(A, d, b, nbytes):
    A(f"s_mov_b32 s{d}, s{b}")
    A(f"s_and_b32 s{d+1}, s{b+1}, 0xffff")
    A(f"s_mov_b32 s{d+2}, {nbytes}")
    A(f"s_mov_b32 s{d+3}, 0x20000")

def add64(A, d, b, off):
    A(f"s_add_u32 s{d}, s{b}, {off}")
    A(f"s_addc_u32 s{d+1}, s{b+1}, 0")

def stream():
    seq = [("K", 0, i) for i in range(8)]
    for t in range(7):
        seq += [("K", t + 1, i) for i in range(8)]
        seq += [("V", t, i) for i in range(8)]
    seq += [("V", 7, i) for i in range(8)]
    return seq

def ring_load(seq, p, mod=""):
    kind, t, i = seq[p]
    dst = ring(p)
    if kind == "K":
        so = f"s{S_TILE + 2 * t + (i >> 2)}"
        return f"buffer_load_dwordx4 {dst}, v{V_LANE16}, s[{S_WS}:{S_WS+3}], {so} offen offset:{(i & 3) * 1024} {mod}".rstrip()
    j, ks = i & 3, i >> 2
    so = f"s{S_TILE + 2 * t}"
    return f"buffer_load_dwordx4 {dst}, v{V_OFFV + j}, s[{S_WS}:{S_WS+3}], {so} offen offset:{ks * 1024} {mod}".rstrip()

def gen_prologue(g):
    A, opt = g.A, g.opt
    ldmod = opt.get("raw_load_mod", "")
    kvmod = opt.get("kv_store_mod", "sc1")
    vC, vR0, vK0, vK1, vKs, vVd, vVs, vQd = 8, 9, 10, 11, 12, 13, 14, 15
    vKst, vQw, vSel, vX4 = 16, 17, 18, 19
    W = 20; CK, SK, CQ, SQ = 24, 32, 40, 56
    KD, KSC, KZ = 72, 88, 92
    VD, VSC, VZ = 96, 112, 120
    SENT = 128
    T = 132
    P0 = T + 4
    def trig(pos_s, extra, c0, s0, scale):
        A(f"v_add_u32 v{P0}, {pos_s}, v{vR0}")
        if extra: A(f"v_add_u32 v{P0}, {extra}, v{P0}")
        A(f"v_cvt_f32_u32 v{P0}, v{P0}")
        for j in range(4): A(f"v_mul_f32 v{P0+1+j}, v{P0}, v{W+j}")
        for j in range(4): A(f"v_fract_f32 v{P0+1+j}, v{P0+1+j}")
        for j in range(4):
            A(f"v_cos_f32 v{c0+j}, v{P0+1+j}")
            A(f"v_sin_f32 v{s0+j}, v{P0+1+j}")
        if scale:
            A("s_nop 0")
            for j in range(0, 4, 2):
                A(f"v_pk_mul_f32 {vr(c0+j, 2)}, {vr(c0+j, 2)}, s[{scale}:{scale+1}]")
                A(f"v_pk_mul_f32 {vr(s0+j, 2)}, {vr(s0+j, 2)}, s[{scale}:{scale+1}]")
    def rope(x, c0, s0, out):
        U = T + 8
        for j in range(0, 4, 2):
            A(f"v_pk_mul_f32 {vr(U+j, 2)}, {vr(x+4+j, 2)}, {vr(s0+j, 2)}")
            A(f"v_pk_mul_f32 {vr(U+4+j, 2)}, {vr(x+j, 2)}, {vr(s0+j, 2)}")
        for j in range(0, 4, 2):
            A(f"v_pk_fma_f32 {vr(U+j, 2)}, {vr(x+j, 2)}, {vr(c0+j, 2)}, {vr(U+j, 2)} neg_lo:[0,0,1] neg_hi:[0,0,1]")
            A(f"v_pk_fma_f32 {vr(U+4+j, 2)}, {vr(x+4+j, 2)}, {vr(c0+j, 2)}, {vr(U+4+j, 2)}")
        for k in range(4):
            A(f"v_cvt_pk_bf16_f32 v{out+k}, v{U+2*k}, v{U+2*k+1}")

    g.stamp(0)
    A("s_cmp_ge_u32 s2, 256")
    A("s_cbranch_scc1 L_END")
    A(f"s_load_dwordx16 s[{S_ARG}:{S_ARG+15}], s[0:1], 0")
    A(f"s_load_dwordx4 s[{S_DBG}:{S_DBG+3}], s[0:1], 96")
    A(f"s_load_dwordx2 s[{S_OUTP}:{S_OUTP+1}], s[0:1], 88")
    A(f"s_memrealtime s[{S_T0}:{S_T0+1}]")
    A("v_lshrrev_b32 v8, 6, v0")
    A("v_and_b32 v0, 63, v0")
    A(f"v_readfirstlane_b32 s{S_W}, v8")
    A(f"v_lshlrev_b32 v{V_LANE16}, 4, v0")
    A("s_and_b32 s8, s2, 7")
    A(f"s_lshr_b32 s{S_H}, s8, 1")
    A(f"s_and_b32 s{S_SP}, s8, 1")
    A(f"s_lshr_b32 s{S_QT}, s2, 3")
    A(f"s_lshl_b32 s8, s{S_H}, 6")
    A(f"s_lshl_b32 s9, s{S_SP}, 5")
    A("s_add_u32 s8, s8, s9")
    A(f"s_add_u32 s{S_G}, s8, s{S_QT}")
    A(f"v_and_b32 v{vC}, 15, v0")
    A(f"v_lshrrev_b32 v{vR0}, 4, v0")
    A(f"s_lshl_b32 s9, s{S_W}, 2")
    A(f"v_add_u32 v{vR0}, s9, v{vR0}")
    A(f"v_lshlrev_b32 v{vK0}, 9, v{vR0}")
    A(f"v_lshl_add_u32 v{vK0}, v{vC}, 4, v{vK0}")
    A(f"v_add_u32 v{vK1}, 8192, v{vK0}")
    A(f"v_lshlrev_b32 v{vKs}, 3, v{vR0}")
    A(f"v_and_b32 v{T}, 31, v0")
    A(f"v_lshrrev_b32 v{T+1}, 5, v0")
    A(f"v_bfe_u32 v{T+2}, v{T}, 2, 1")
    A(f"v_lshlrev_b32 v{T+2}, 4, v{T+2}")
    A(f"v_lshrrev_b32 v{T+3}, 3, v{T}")
    A(f"v_lshl_add_u32 v{T+2}, v{T+3}, 2, v{T+2}")
    A(f"v_and_b32 v{T+3}, 3, v{T}")
    A(f"v_add_u32 v{T+2}, v{T+2}, v{T+3}")
    A(f"s_and_b32 s10, s{S_W}, 1")
    A(f"s_lshr_b32 s11, s{S_W}, 1")
    A("s_lshl_b32 s9, s10, 4")
    A(f"v_lshlrev_b32 v{T+1}, 2, v{T+1}")
    A(f"v_add_u32 v{T+1}, s9, v{T+1}")
    A("s_lshl_b32 s9, s11, 8")
    A("s_add_u32 s9, s9, 2048")
    A(f"v_lshlrev_b32 v{vVd}, 9, v{T+1}")
    A(f"v_lshl_add_u32 v{vVd}, v{T+2}, 2, v{vVd}")
    A(f"v_add_u32 v{vVd}, s9, v{vVd}")
    A("s_lshl_b32 s9, s11, 2")
    A(f"v_lshlrev_b32 v{vVs}, 3, v{T+1}")
    A(f"v_add_u32 v{vVs}, s9, v{vVs}")
    A(f"s_lshl_b32 s42, s{S_G}, 14")
    A(f"s_lshl_b32 s43, s{S_G}, 8")
    A(f"s_lshl_b32 s9, s8, 3")
    A(f"s_add_u32 s65, s9, {WS_F}")
    A(f"v_mov_b32 v{T+3}, s65")
    A(f"v_lshlrev_b32 v{T}, 2, v{vC}")
    A(f"v_cvt_f32_u32 v{T}, v{T}")
    A(f"s_mov_b32 s9, {F(TRIG_A)}")
    for j in range(4): A(f"v_mov_b32 v{W+j}, {F(TRIG_B + j * TRIG_A)}")
    for j in range(4): A(f"v_fma_f32 v{W+j}, v{T}, s9, v{W+j}")
    for j in range(4): A(f"v_exp_f32 v{W+j}, v{W+j}")
    A(f"s_lshl_b32 s9, s{S_SP}, 5")
    A(f"s_add_u32 s9, s9, s{S_QT}")
    A("s_lshl_b32 s9, s9, 5")
    trig("s9", 0, CK, SK, None)
    EARLY = opt.get("early_trig", 0)
    if EARLY:
        trig("s9", 16, CK + 4, SK + 4, None)
        A(f"s_lshl_b32 s9, s{S_QT}, 1")
        A(f"s_add_u32 s46, s9, s{S_SP}")
        A(f"s_xor_b32 s47, s46, 1")
        A("s_lshl_b32 s10, s47, 5")
        A("s_lshl_b32 s11, s46, 5")
        A(f"s_mov_b32 s94, {F(QSCALE)}")
        A(f"s_mov_b32 s95, {F(QSCALE)}")
        trig("s10", 0, CQ, SQ, 94); trig("s10", 16, CQ + 4, SQ + 4, 94)
        if EARLY > 1:
            trig("s11", 0, CQ + 8, SQ + 8, 94); trig("s11", 16, CQ + 12, SQ + 12, 94)
    A("s_waitcnt lgkmcnt(0)")
    g.stamp(1)
    add64(A, 22, 22, "s42")
    add64(A, 24, 24, "s43")
    add64(A, 26, 26, "s43")
    def kloads(it):
        vo = vK0 if it == 0 else vK1
        A(f"global_load_dwordx4 {vr(KD + 8*it, 4)}, v{vo}, s[22:23] {ldmod}")
        A(f"global_load_dwordx4 {vr(KD + 8*it + 4, 4)}, v{vo}, s[22:23] offset:256 {ldmod}")
        A(f"global_load_dwordx2 {vr(KSC + 2*it, 2)}, v{vKs}, s[24:25] offset:{it*128}")
        A(f"global_load_dwordx2 {vr(KZ + 2*it, 2)}, v{vKs}, s[26:27] offset:{it*128}")
    kloads(0); kloads(1)
    add64(A, 28, 28, "s42")
    add64(A, 30, 30, "s43")
    add64(A, 32, 32, "s43")
    for i in range(8):
        ro = (8 * (i >> 2) + (i & 3)) * 8
        A(f"global_load_dword v{VSC + i}, v{vVs}, s[30:31] offset:{ro}")
        A(f"global_load_dword v{VZ + i}, v{vVs}, s[32:33] offset:{ro}")
    for i in range(8):
        for dbl in range(2):
            off = (i >> 2) * 4096 + (i & 3) * 512 + dbl * 128 - 2048
            A(f"global_load_dword v{VD + 2*i + dbl}, v{vVd}, s[28:29] offset:{off} {ldmod}")
    A(f"global_load_dword v175, v{T+3}, s[38:39] sc1")
    A("s_or_b32 s10, s2, s3")
    A("s_cmp_lg_u32 s10, 0")
    A("s_cbranch_scc1 L_NONONCE")
    A("s_memrealtime s[10:11]")
    A(f"v_mov_b32 v{T+1}, 0")
    A("s_waitcnt lgkmcnt(0)")
    A("s_or_b32 s10, s10, 1")
    A(f"v_mov_b32 v{T+2}, s10")
    A("s_mov_b64 exec, 1")
    A(f"global_store_dword v{T+1}, v{T+2}, s[{S_DBG}:{S_DBG+1}] sc1")
    A("s_mov_b64 exec, -1")
    A.label("L_NONONCE")
    srd(A, S_WS, 38, WS_SIZE)
    A(f"v_lshlrev_b32 v{vX4}, 2, v0")
    A("s_lshl_b32 s44, s2, 13")
    A(f"s_lshl_b32 s10, s{S_W}, 11")
    A("s_add_u32 s44, s44, s10")
    A(f"s_add_u32 s44, s44, {WS_X}")
    A("s_lshl_b32 s45, s2, 10")
    A(f"s_lshl_b32 s10, s{S_W}, 8")
    A("s_add_u32 s45, s45, s10")
    A(f"s_add_u32 s45, s45, {WS_L}")
    NTAIL = 1
    NV = 40 + NTAIL
    if not EARLY: trig("s9", 16, CK + 4, SK + 4, None)
    A(f"v_lshrrev_b32 v{T}, 1, v{vC}")
    A(f"v_lshlrev_b32 v{vKst}, 10, v{T}")
    A(f"v_and_b32 v{T+1}, 1, v{vC}")
    A(f"v_lshl_add_u32 v{vKst}, v{T+1}, 9, v{vKst}")
    A(f"v_lshl_add_u32 v{vKst}, v{vR0}, 4, v{vKst}")
    A(f"v_lshl_add_u32 v{T+1}, v{T+1}, 5, v{vR0}")
    A(f"v_and_b32 v{T+2}, 7, v{vC}")
    A(f"v_xor_b32 v{T+1}, v{T+1}, v{T+2}")
    A(f"v_lshlrev_b32 v{vQw}, 10, v{T}")
    A(f"v_lshl_add_u32 v{vQw}, v{T+1}, 4, v{vQw}")
    A(f"v_lshrrev_b32 v{vSel}, 3, v{vC}")
    A(f"v_lshlrev_b32 v{vSel}, 4, v{vSel}")
    A(f"v_sub_u32 v{vSel}, 16, v{vSel}")
    A(f"s_lshl_b32 s43, s{S_G}, 14")
    A(f"s_and_b32 s9, s{S_W}, 1")
    A("s_lshl_b32 s9, s9, 10")
    A(f"s_lshr_b32 s10, s{S_W}, 1")
    A("s_lshl_b32 s10, s10, 12")
    A("s_add_u32 s9, s9, s10")
    A("s_add_u32 s9, s9, s43")
    A("s_add_u32 s9, s9, 8192")
    nst = 0
    for it in range(2):
        A(f"s_waitcnt vmcnt({NV - 4 * (it + 1) + nst})")
        if it == 0: g.stamp(2)
        x = KD + 8 * it
        sc = T + 16
        for k, src in enumerate((KSC + 2*it, KSC + 2*it + 1, KZ + 2*it, KZ + 2*it + 1)):
            A(f"v_lshlrev_b32 v{sc+k}, v{vSel}, v{src}")
        for j in range(8): A(f"v_cvt_f32_i32 v{x+j}, v{x+j}")
        for k in range(4): A(f"v_and_b32 v{sc+k}, 0xffff0000, v{sc+k}")
        for j in range(0, 4, 2):
            A(f"v_pk_add_f32 {vr(x+j, 2)}, {vr(x+j, 2)}, {vr(sc+2, 2)} op_sel_hi:[1,0] neg_lo:[0,1] neg_hi:[0,1]")
            A(f"v_pk_add_f32 {vr(x+4+j, 2)}, {vr(x+4+j, 2)}, {vr(sc+2, 2)} op_sel:[0,1] op_sel_hi:[1,1] neg_lo:[0,1] neg_hi:[0,1]")
        for j in range(0, 4, 2):
            A(f"v_pk_mul_f32 {vr(x+j, 2)}, {vr(x+j, 2)}, {vr(sc, 2)} op_sel_hi:[1,0]")
            A(f"v_pk_mul_f32 {vr(x+4+j, 2)}, {vr(x+4+j, 2)}, {vr(sc, 2)} op_sel:[0,1] op_sel_hi:[1,1]")
        out = T + 20 + 4 * it
        rope(x, CK + 4*it, SK + 4*it, out)
        A(f"buffer_store_dwordx4 {vr(out, 4)}, v{vKst}, s[{S_WS}:{S_WS+3}], s43 offen offset:{it*256} {kvmod}")
        nst += 1
    A(f"s_waitcnt vmcnt({16 + NTAIL + nst})")
    SP_, ZP_ = 72, 24
    for i in range(8):
        A(f"v_lshlrev_b32 v{SP_+2*i}, 16, v{VSC+i}")
        A(f"v_and_b32 v{SP_+2*i+1}, 0xffff0000, v{VSC+i}")
        A(f"v_lshlrev_b32 v{ZP_+2*i}, 16, v{VZ+i}")
        A(f"v_and_b32 v{ZP_+2*i+1}, 0xffff0000, v{VZ+i}")
    A(f"s_waitcnt vmcnt({NTAIL + nst})")
    g.stamp(3)
    NON = SENT + 1
    A(f"v_mov_b32 v{T+1}, 0")
    A(f"global_load_dword v{NON}, v{T+1}, s[{S_DBG}:{S_DBG+1}] sc1")
    for i in range(16): A(f"v_cvt_f32_i32 v{VD+i}, v{VD+i}")
    for i in range(8): A(f"v_pk_add_f32 {vr(VD+2*i, 2)}, {vr(VD+2*i, 2)}, {vr(ZP_+2*i, 2)} neg_lo:[0,1] neg_hi:[0,1]")
    for i in range(8): A(f"v_pk_mul_f32 {vr(VD+2*i, 2)}, {vr(VD+2*i, 2)}, {vr(SP_+2*i, 2)}")
    for dbl in range(2):
        O = T + 28 + 4 * dbl
        for k in range(4):
            A(f"v_cvt_pk_bf16_f32 v{O+k}, v{VD+(2*k)*2+dbl}, v{VD+(2*k+1)*2+dbl}")
        A(f"buffer_store_dwordx4 {vr(O, 4)}, v{V_LANE16}, s[{S_WS}:{S_WS+3}], s9 offen offset:{dbl*2048} {kvmod}")
    A(f"v_lshlrev_b32 v{vQd}, 8, v{vR0}")
    A(f"v_lshl_add_u32 v{vQd}, v{vC}, 3, v{vQd}")
    A(f"v_add_u32 v{vQd}, 2048, v{vQd}")
    A(f"s_lshl_b32 s9, s{S_QT}, 1")
    A(f"s_add_u32 s46, s9, s{S_SP}")
    A(f"s_xor_b32 s47, s46, 1")
    A(f"s_lshl_b32 s10, s{S_H}, 6")
    A("s_add_u32 s11, s10, s47")
    A("s_lshl_b32 s11, s11, 13")
    add64(A, 34, 20, "s11")
    A("s_add_u32 s11, s10, s46")
    A("s_lshl_b32 s11, s11, 13")
    add64(A, 20, 20, "s11")
    QD = 72
    for X in range(2):
        base = "s[34:35]" if X == 0 else "s[20:21]"
        for it in range(2):
            r = QD + (X * 2 + it) * 4
            A(f"global_load_dwordx2 {vr(r, 2)}, v{vQd}, {base} offset:{it*4096 - 2048} {ldmod}")
            A(f"global_load_dwordx2 {vr(r + 2, 2)}, v{vQd}, {base} offset:{it*4096 - 2048 + 128} {ldmod}")
    A("s_lshl_b32 s10, s47, 5")
    A("s_lshl_b32 s11, s46, 5")
    A(f"s_mov_b32 s42, {F(QSCALE)}")
    A(f"s_mov_b32 s43, {F(QSCALE)}")
    if not EARLY:
        trig("s10", 0, CQ, SQ, 42); trig("s10", 16, CQ + 4, SQ + 4, 42)
    for j in range(4):
        A(f"s_add_u32 s9, s{S_W}, {j}")
        A("s_and_b32 s9, s9, 3")
        A("s_lshl_b32 s9, s9, 11")
        A("s_add_u32 s9, s9, 8192")
        A(f"v_add_u32 v{V_OFFV + j}, s9, v{V_LANE16}")
    A(f"s_lshl_b32 s9, s{S_W}, 3")
    A("s_add_u32 s8, s8, s9")
    A(f"s_lshl_b32 s{S_TILE}, s8, 14")
    A(f"s_add_u32 s{S_TILE+1}, s{S_TILE}, 4096")
    for t in range(1, 8):
        A(f"s_add_u32 s{S_TILE + 2*t}, s{S_TILE}, {t * 16384}")
        A(f"s_add_u32 s{S_TILE + 2*t + 1}, s{S_TILE}, {t * 16384 + 4096}")
    A(f"s_lshl_b32 s9, s{S_QT}, 2")
    A("s_add_u32 s9, s9, s65")
    A(f"v_mov_b32 v{T}, s9")
    A(f"s_lshl_b32 s9, s{S_W}, 5")
    A("s_add_u32 s9, s9, s65")
    A(f"v_lshl_add_u32 v{T+2}, v0, 2, s9")
    A("s_mov_b32 s10, 0")
    A("s_mov_b32 s9, 0")
    A("s_waitcnt vmcnt(8)")
    g.stamp(4)
    A.label("L_NPOLL")
    A(f"v_readfirstlane_b32 s{S_XCC}, v{NON}")
    A("s_nop 1")
    A(f"s_sub_u32 s94, s{S_XCC}, s{S_T0}")
    A("s_add_u32 s94, s94, 300")
    A("s_cmp_lt_u32 s94, 2300")
    A(f"s_cselect_b32 s94, s{S_XCC}, 0")
    A("s_cmp_lg_u32 s94, 0")
    A("s_cbranch_scc1 L_NOK")
    A("s_add_u32 s10, s10, 1")
    A(f"s_cmp_ge_u32 s10, {opt.get('maxpoll0', 200)}")
    A("s_cbranch_scc1 L_NTIMEOUT")
    A(f"v_mov_b32 v{T+1}, 0")
    A(f"global_load_dword v{NON}, v{T+1}, s[{S_DBG}:{S_DBG+1}] sc1")
    A("s_waitcnt vmcnt(0)")
    A("s_branch L_NPOLL")
    A.label("L_NTIMEOUT")
    A(f"s_mov_b32 s{S_XCC}, 1")
    A("s_mov_b32 s9, 1")
    A.label("L_NOK")
    A(f"v_mov_b32 v{T+1}, s{S_XCC}")
    A("s_barrier")
    A("s_mov_b64 exec, 1")
    A(f"global_store_dword v{T}, v{T+1}, s[38:39]")
    FL = SENT + 2
    A("s_mov_b64 exec, 0xff")
    A(f"global_load_dword v{FL}, v{T+2}, s[38:39] sc1")
    A("s_mov_b64 exec, -1")
    A("s_mov_b32 s65, s9")
    if EARLY < 2:
        trig("s11", 0, CQ + 8, SQ + 8, 42); trig("s11", 16, CQ + 12, SQ + 12, 42)
    A("s_waitcnt vmcnt(2)")
    g.stamp(5)
    for pc in range(4):
        X, it = pc >> 1, pc & 1
        r = QD + pc * 4
        x = 96 + 8 * (pc & 1)
        for hh in range(2):
            for k in range(2):
                A(f"v_lshlrev_b32 v{x+4*hh+2*k}, 16, v{r+2*hh+k}")
                A(f"v_and_b32 v{x+4*hh+2*k+1}, 0xffff0000, v{r+2*hh+k}")
        out = T + 20 + 4 * (pc & 1)
        rope(x, CQ + 4*pc, SQ + 4*pc, out)
        A(f"ds_write_b128 v{vQw}, {vr(out, 4)} offset:{X*8192 + it*256}")
    A("s_mov_b32 s10, 0")
    A("s_mov_b32 s11, s65")
    A("s_mov_b64 exec, 0xff")
    A.label("L_FPOLL")
    A("s_waitcnt vmcnt(0)")
    A(f"v_cmp_ne_u32 vcc, s{S_XCC}, v{FL}")
    A("s_cbranch_vccz L_FOK")
    A("s_add_u32 s10, s10, 1")
    A(f"s_cmp_ge_u32 s10, {opt.get('maxpoll1', 400)}")
    A("s_cbranch_scc1 L_FTIMEOUT")
    A(f"global_load_dword v{FL}, v{T+2}, s[38:39] sc1")
    A("s_branch L_FPOLL")
    A.label("L_FTIMEOUT")
    A("s_mov_b32 s11, 1")
    A.label("L_FOK")
    A("s_mov_b64 exec, -1")
    g.stamp(6)
    if opt.get("stamp"): A(f"s_mov_b32 s{ST0 + 2*11}, s10")
    seq = stream()
    rmod = opt.get("ring_mod", "")
    DEPTH = opt.get("depth", 32)
    for p in range(DEPTH): A(ring_load(seq, p, rmod))
    SE = T + 4
    for j in range(4): A(f"v_mov_b32 v{SE + j}, -1")
    A(f"buffer_store_dwordx4 {vr(SE, 4)}, v{V_LANE16}, s[{S_WS}:{S_WS+3}], s44 offen sc1")
    A(f"buffer_store_dwordx4 {vr(SE, 4)}, v{V_LANE16}, s[{S_WS}:{S_WS+3}], s44 offen offset:1024 sc1")
    A(f"buffer_store_dword v{SE}, v{vX4}, s[{S_WS}:{S_WS+3}], s45 offen sc1")
    A(f"s_lshl_b32 s10, s{S_W}, 2")
    A(f"s_add_u32 s10, s10, {LFAIL}")
    A(f"v_mov_b32 v{T}, s10")
    A(f"v_mov_b32 v{T+1}, s11")
    A(f"ds_write_b32 v{T}, v{T+1}")
    A(f"v_lshrrev_b32 v{T+2}, 5, v0")
    for k in range(4):
        A(f"v_add_u32 v{8+k}, {2*k}, v{T+2}")
        A(f"v_xor_b32 v{8+k}, v{8+k}, v0")
        A(f"v_lshlrev_b32 v{8+k}, 4, v{8+k}")
    A(f"v_mov_b32 v{T}, {LFAIL}")
    A(f"v_mov_b32 v{V_LA}, 0")
    A(f"v_mov_b32 v{V_LB}, 0")
    A("s_waitcnt lgkmcnt(0)")
    A("s_barrier")
    A(f"ds_read_b128 {vr(T+8, 4)}, v{T}")
    for ks in range(4):
        for X in range(2):
            A(f"ds_read_b128 {Qreg(X, ks)}, v{8 + (ks & 3)} offset:{(X * 8 + ks) * 1024}")
    A("s_waitcnt lgkmcnt(8)")
    A(f"v_or3_b32 v{T+8}, v{T+8}, v{T+9}, v{T+10}")
    A(f"v_or_b32 v{T+8}, v{T+8}, v{T+11}")
    A("s_nop 0")
    A(f"v_readfirstlane_b32 s10, v{T+8}")
    A("s_nop 1")
    A("s_cmp_lg_u32 s10, 0")
    A("s_cbranch_scc1 L_FALLBACK_EARLY")
    g.stamp(7)
    g.stamp_wait()

def gen_main(g):
    A, opt = g.A, g.opt
    if opt.get("align64"): A(".p2align 6")
    for _ in range(opt.get("prenop", 0)): A("s_nop 0")
    seq = stream()
    rmod = opt.get("ring_mod", "")
    pos_of = {(k, t, i): p for p, (k, t, i) in enumerate(seq)}
    ops = []
    def phase(kind, t, Xs=(0, 1)):
        if len(Xs) == 2:
            for i in range(8):
                for X in (0, 1): ops.append((kind, t, i, X))
        else:
            for i in range(8): ops.append((kind, t, i, Xs[0]))
    phase("K", 0)
    for t in range(6):
        phase("K", t + 1); phase("V", t)
    phase("K", 7)
    phase("V", 6, (0,)); phase("V", 7, (0,))
    iB = len(ops)
    phase("V", 6, (1,)); phase("V", 7, (1,))
    NG = len(ops); assert NG == 256
    first, last = {}, {}
    for n, (k, t, i, X) in enumerate(ops):
        p = pos_of[(k, t, i)]
        first.setdefault(p, n); last[p] = n
    lastS = {}
    for n, (k, t, i, X) in enumerate(ops):
        if k == "K": lastS[(t, X)] = n
    firstP = {}
    for n, (k, t, i, X) in enumerate(ops):
        if k == "V": firstP.setdefault((t, X, i >> 2), n)
    tasks = []
    for t in range(8):
        if t < 7:
            order = [(0, 0), (1, 0), (0, 1), (1, 1)]
        else:
            order = [(0, 0), (0, 1), (1, 0), (1, 1)]
        if t == 6: order = [(0, 0), (0, 1), (1, 0), (1, 1)]
        for X, half in order:
            for j in range(8 * half, 8 * half + 8): tasks.append((t, X, j))
    def avail(t, X):
        lag = opt.get("lag0", 5) if t == 0 else opt.get("lag", 3)
        return lastS[(t, X)] + lag + (0 if X == 1 else 1)
    def deadline(t, X, j): return firstP[(t, X, j >> 3)]
    plan = [[] for _ in range(NG)]
    MARG = 3
    CAP = opt.get("cap", 2)
    LS = [0] * len(tasks); cnt = {}; nxt = 10 ** 9
    for k in range(len(tasks) - 1, -1, -1):
        t, X, j = tasks[k]
        gg = min(deadline(t, X, j) - MARG, nxt)
        while cnt.get(gg, 0) >= CAP: gg -= 1
        cnt[gg] = cnt.get(gg, 0) + 1
        LS[k] = gg; nxt = gg
    done = 0
    for gg in range(NG):
        n = 0
        while done < len(tasks) and avail(tasks[done][0], tasks[done][1]) <= gg and (n < 1 or LS[done] <= gg):
            plan[gg].append(tasks[done]); done += 1; n += 1
        if done < len(tasks): assert LS[done] > gg, ("deadline miss", gg, tasks[done], LS[done])
    assert done == len(tasks)
    if opt.get("show_plan"):
        print("elements per gap:", "".join(str(len(x)) for x in plan), file=sys.stderr)
    st = dict(add=[], cvt=[])
    E64 = "_e64" if opt.get("e64") else ""
    def fillers(gg):
        out = []
        adds, cvts = st["add"], st["cvt"]
        st["add"], st["cvt"] = [], []
        exps = []
        for (t, X, j) in plan[gg]:
            s = Sreg(t & 1, X) + j
            exps.append(f"v_exp_f32{E64} v{s}, v{s}")
            st["add"].append((t, X, j))
            if j & 1: st["cvt"].append((t, X, j))
        rest = []
        for (t, X, j) in adds:
            rest.append(f"v_add_f32{E64} v{V_LA + X}, v{V_LA + X}, v{Sreg(t & 1, X) + j}")
        for (t, X, j) in cvts:
            s = Sreg(t & 1, X) + j
            rest.append(f"v_cvt_pk_bf16_f32 v{Preg(t & 1, X) + (j >> 1)}, v{s - 1}, v{s}")
        while exps or rest:
            if exps: out.append(exps.pop(0))
            if rest: out.append(rest.pop(0))
            if rest and not exps: out += rest; rest = []
        return out
    extra = {n: [] for n in range(NG)}
    epi = Epi(g)
    pre = epi.address_setup()
    for k, ins in enumerate(pre):
        extra[200 + k // 2].append(ins)
    wa = epi.lwrite(0) + epi.owrite(0)
    lastA_add = max(n for n in range(NG) for (t, X, j) in plan[n] if X == 0) + 1
    startA = max(iB + 2, lastA_add + 1)
    for k, ins in enumerate(wa):
        extra[min(NG - 4, startA + k)].append(ins)
    DEPTH = opt.get("depth", 32)
    issued = DEPTH
    def younger(p):
        return (issued - 1 - p) + (3 if p < DEPTH else 0)
    for n, (k, t, i, X) in enumerate(ops):
        p = pos_of[(k, t, i)]
        if n in (0, 16, 32, 128, 240): A.c(f"---- mfma {n}: {k}{t} i{i} X{X}")
        if opt.get("stamp") and opt.get("loopstamp") and n in (32, 64, 96, 128, 160, 192, 224):
            g.stamp(n // 32)
        if first[p] == n:
            w = f"s_waitcnt vmcnt({younger(p)})"
            if k == "K" and t == 0:
                nq = min(7, i + 3) - i
                w += f" lgkmcnt({2 * nq})"
            A(w)
            if opt.get("e64"): A("s_nop 0")
        frag = ring(p)
        if k == "K":
            S = vr(Sreg(t & 1, X), 16)
            C = "0" if i == 0 else S
            A(f"v_mfma_f32_32x32x16_bf16 {S}, {frag}, {Qreg(X, i)}, {C}")
        else:
            j, ks = i & 3, i >> 2
            O = Oreg(X, j)
            C = "0" if (t == 0 and ks == 0) else O
            A(f"v_mfma_f32_32x32x16_bf16 {O}, {frag}, {vr(Preg(t & 1, X) + 4 * ks, 4)}, {C}")
        fl = fillers(n)
        if last[p] == n and issued < 128 and p + DEPTH == issued:
            fl.insert(min(1, len(fl)), ring_load(seq, issued, rmod)); issued += 1
        if k == "K" and t == 0 and X == 1 and i + 4 <= 7:
            for XX in range(2):
                fl.append(f"ds_read_b128 {Qreg(XX, i + 4)}, v{8 + ((i + 4) & 3)} offset:{(XX * 8 + i + 4) * 1024}")
        fl += extra[n]
        for l in fl: A(l)
    assert issued == 128
    assert not st["cvt"]
    for (t, X, j) in st["add"]:
        A(f"v_add_f32 v{V_LA + X}, v{V_LA + X}, v{Sreg(t & 1, X) + j}")
    epi.finish()

class Epi:
    vWr = [None, 8, 9, 10]; vRd = 11; vLw = 12; vLr = 13; vX = 14
    TA = V_S
    TL = 64
    PK = 72
    RX = 80
    def __init__(self, g): self.g = g; self.A = g.A; self.opt = g.opt
    def address_setup(self):
        L = []
        for j in range(1, 4):
            L += [f"s_add_u32 s9, s{S_W}, {j}", "s_and_b32 s9, s9, 3", "s_mul_i32 s9, s9, 12288",
                  f"s_add_u32 s9, s9, {RED_A + (j - 1) * 4096}", f"v_add_u32 v{self.vWr[j]}, s9, v{V_LANE16}"]
        L += [f"s_mul_i32 s9, s{S_W}, 12288", f"s_add_u32 s9, s9, {RED_A}", f"v_add_u32 v{self.vRd}, s9, v{V_LANE16}"]
        L += ["v_and_b32 v15, 31, v0", f"v_lshlrev_b32 v{self.vLr}, 5, v15", f"v_add_u32 v{self.vLr}, {LRED}, v{self.vLr}",
              "v_lshrrev_b32 v15, 5, v0", f"v_lshl_add_u32 v{self.vLw}, v15, 2, v{self.vLr}",
              f"s_lshl_b32 s9, s{S_W}, 3", f"v_add_u32 v{self.vLw}, s9, v{self.vLw}",
              f"v_lshlrev_b32 v{self.vX}, 2, v0"]
        L += ["s_xor_b32 s46, s44, 8192", "s_xor_b32 s47, s45, 1024"]
        L += [f"s_lshl_b32 s9, s{S_H}, 6", f"s_lshl_b32 s10, s{S_QT}, 1", "s_add_u32 s9, s9, s10", f"s_add_u32 s9, s9, s{S_SP}",
              "s_lshl_b32 s9, s9, 13", f"s_lshl_b32 s10, s{S_W}, 6", "s_add_u32 s42, s9, s10",
              "v_and_b32 v15, 31, v0", "v_lshlrev_b32 v15, 8, v15"]
        L += [f"s_mov_b32 s{S_OUT}, s{S_OUTP}", f"s_and_b32 s{S_OUT+1}, s{S_OUTP+1}, 0xffff", f"s_mov_b32 s{S_OUT+2}, {2 << 20}", f"s_mov_b32 s{S_OUT+3}, 0x20000"]
        return L
    def lwrite(self, X):
        return [f"ds_write_b32 v{self.vLw}, v{V_LA + X} offset:{X * 1024}"]
    def owrite(self, X):
        L = []
        for j in range(1, 4):
            for qd in range(4):
                a = A_O + X * 48 + (j - 1) * 16 + qd * 4
                L.append(f"ds_write_b128 v{self.vWr[j]}, {ar(a, 4)} offset:{X * RED_BOFF + qd * 1024}")
        return L
    def oread(self, X):
        L = [f"ds_read_b128 {vr(self.TL, 4)}, v{self.vLr} offset:{X * 1024}",
             f"ds_read_b128 {vr(self.TL + 4, 4)}, v{self.vLr} offset:{X * 1024 + 16}"]
        for j in range(1, 4):
            for qd in range(4):
                L.append(f"ds_read_b128 {vr(self.TA + (j - 1) * 16 + qd * 4, 4)}, v{self.vRd} offset:{X * RED_BOFF + (j - 1) * 4096 + qd * 1024}")
        return L
    def sums(self, X):
        A = self.A; TL = self.TL; O = V_O0 + 16 * X
        A(f"v_add_f32 v{TL}, v{TL}, v{TL + 1}")
        A(f"v_add_f32 v{TL + 2}, v{TL + 2}, v{TL + 3}")
        A(f"v_add_f32 v{TL + 4}, v{TL + 4}, v{TL + 5}")
        A(f"v_add_f32 v{TL + 6}, v{TL + 6}, v{TL + 7}")
        A(f"v_add_f32 v{TL}, v{TL}, v{TL + 2}")
        A(f"v_add_f32 v{TL + 4}, v{TL + 4}, v{TL + 6}")
        A(f"v_add_f32 v{V_LA + X}, v{TL}, v{TL + 4}")
        for j in range(3):
            for r in range(0, 16, 2):
                A(f"v_pk_add_f32 {vr(O + r, 2)}, {vr(O + r, 2)}, {vr(self.TA + j * 16 + r, 2)}")
    def finish(self):
        g, A, opt = self.g, self.A, self.opt
        PK, RX = self.PK, self.RX
        A.c("==== epilogue")
        g.stamp(8)
        ws = f"s[{S_WS}:{S_WS+3}]"
        A("s_waitcnt lgkmcnt(0)")
        A("s_barrier")
        for l in self.oread(0): A(l)
        for l in self.lwrite(1): A(l)
        A("s_waitcnt lgkmcnt(1)")
        self.sums(0)
        for k in range(8):
            A(f"v_cvt_pk_bf16_f32 v{PK + k}, v{V_O0 + 2 * k}, v{V_O0 + 2 * k + 1}")
        omod = opt.get("xchg_mod", "sc1")
        A(f"buffer_store_dwordx4 {vr(PK, 4)}, v{V_LANE16}, {ws}, s46 offen {omod}")
        A(f"buffer_store_dwordx4 {vr(PK + 4, 4)}, v{V_LANE16}, {ws}, s46 offen offset:1024 {omod}")
        A(f"buffer_store_dword v{V_LA}, v{self.vX}, {ws}, s47 offen {omod}")
        g.stamp(9)
        def poll():
            A(f"buffer_load_dwordx4 {vr(RX, 4)}, v{V_LANE16}, {ws}, s44 offen sc1")
            A(f"buffer_load_dwordx4 {vr(RX + 4, 4)}, v{V_LANE16}, {ws}, s44 offen offset:1024 sc1")
            A(f"buffer_load_dword v{RX + 8}, v{self.vX}, {ws}, s45 offen sc1")
        for l in self.owrite(1): A(l)
        poll()
        A("s_waitcnt lgkmcnt(0)")
        A("s_barrier")
        for l in self.oread(1): A(l)
        A("s_mov_b32 s10, 0")
        A("s_waitcnt lgkmcnt(0)")
        self.sums(1)
        A("s_branch L_POLLW")
        A.label("L_POLL")
        poll()
        A.label("L_POLLW")
        A("s_waitcnt vmcnt(0)")
        A(f"v_max3_u32 v90, v{RX}, v{RX + 1}, v{RX + 2}")
        A(f"v_max3_u32 v91, v{RX + 3}, v{RX + 4}, v{RX + 5}")
        A(f"v_max3_u32 v92, v{RX + 6}, v{RX + 7}, v{RX + 8}")
        A("v_max3_u32 v90, v90, v91, v92")
        A("s_add_u32 s10, s10, 1")
        A("v_cmp_eq_u32 vcc, -1, v90")
        A(f"s_cmp_ge_u32 s10, {opt.get('maxpoll2', 200)}")
        A("s_cbranch_scc1 L_FALLBACK")
        A("s_cbranch_vccnz L_POLL")
        g.stamp(10)
        if opt.get("stamp"): A(f"s_mov_b32 s{ST0 + 2*11 + 1}, s10")
        O = V_O0 + 16
        A(f"v_add_f32 v{V_LB}, v{V_LB}, v{RX + 8}")
        for k in range(8):
            A(f"v_lshlrev_b32 v{16 + 2 * k}, 16, v{RX + k}")
            A(f"v_and_b32 v{17 + 2 * k}, 0xffff0000, v{RX + k}")
        A(f"v_rcp_f32 v32, v{V_LB}")
        for r in range(0, 16, 2):
            A(f"v_pk_add_f32 {vr(O + r, 2)}, {vr(O + r, 2)}, {vr(16 + r, 2)}")
        A("v_pk_mul_f32 v[34:35], v[%d:%d], 0" % (O, O + 1))
        for r in range(2, 16, 2):
            A(f"v_pk_fma_f32 v[34:35], {vr(O + r, 2)}, 0, v[34:35]")
        A(f"s_mov_b32 s9, {F(2.0 ** -30)}")
        A(f"s_mov_b32 s10, {F(2.0 ** 30)}")
        A(f"v_cmp_le_f32 s[46:47], s9, v{V_LB}")
        A(f"v_cmp_ge_f32 s[8:9], s10, v{V_LB}")
        A("v_cmp_o_f32 vcc, v34, v35")
        A("v_mov_b32 v33, v32")
        A("s_and_b64 s[46:47], s[46:47], s[8:9]")
        A("s_and_b64 s[46:47], s[46:47], vcc")
        A("s_cmp_eq_u64 s[46:47], exec")
        A("s_cbranch_scc0 L_FALLBACK")
        for r in range(0, 16, 2):
            A(f"v_pk_mul_f32 {vr(O + r, 2)}, {vr(O + r, 2)}, v[32:33]")
        A.label("L_STORE")
        for k in range(8):
            A(f"v_cvt_pk_bf16_f32 v{PK + k}, v{O + 2 * k}, v{O + 2 * k + 1}")
        A("v_lshrrev_b32 v37, 5, v0")
        A("v_lshl_add_u32 v36, v37, 5, v15")
        om = opt.get("out_mod", "")
        A(f"buffer_store_dwordx4 {vr(PK, 4)}, v36, s[{S_OUT}:{S_OUT+3}], s42 offen {om}")
        A(f"buffer_store_dwordx4 {vr(PK + 4, 4)}, v36, s[{S_OUT}:{S_OUT+3}], s42 offen offset:16 {om}")
        if opt.get("stamp"):
            A("s_waitcnt vmcnt(0)")
            g.stamp(12)
            A("s_waitcnt lgkmcnt(0)")
            if opt.get("dbgstamp"):
                A("s_mov_b64 exec, 1")
                A("v_mov_b32 v174, 0")
                A(f"s_not_b32 s98, s{ST0}")
                A("v_mov_b32 v175, s98")
                A(f"global_atomic_umax v174, v175, s[{S_DBG}:{S_DBG+1}] offset:4 sc1")
                for k, idx in enumerate((1, 2, 3, 4, 6, 7, 8, 9, 10, 12)):
                    A(f"v_mov_b32 v175, s{ST0 + 2 * idx}")
                    A(f"global_atomic_umax v174, v175, s[{S_DBG}:{S_DBG+1}] offset:{8 + 4 * k} sc1")
                A("s_endpgm")
            A("s_lshl_b32 s98, s2, 2")
            A(f"s_add_u32 s98, s98, s{S_W}")
            A("s_lshl_b32 s98, s98, 7")
            A(f"s_add_u32 s98, s98, {WS_STAMP}")
            A("v_mov_b32 v174, s98")
            A("s_mov_b64 exec, 1")
            for i in range(13):
                A(f"v_mov_b32 v175, s{ST0 + 2 * i}")
                A(f"global_store_dword v174, v175, s[38:39] offset:{4 * i}")
            A(f"v_mov_b32 v175, s{ST0 + 2*11 + 1}")
            A(f"global_store_dword v174, v175, s[38:39] offset:{4 * 13}")
        A.label("L_END")
        A("s_endpgm")

def gen_fallback(g):
    A, opt = g.A, g.opt
    S = 16; P = 32; XL = 40; KS = 48; KZ = 50; CS = 52; SN = 56; U = 60; KF = 68; QF = 72; WV = 76
    VX = 80; VS = 88; VZ = 96; VF = 104
    M, L, T0, T1, POS, vM, vH, vA = 108, 109, 110, 111, 144, 145, 146, 147
    vKo, vSo, vVo, vVso = 148, 149, 150, 151
    O = V_O0 + 16
    A.label("L_FALLBACK_EARLY")
    for l in Epi(g).address_setup(): A(l)
    A.label("L_FALLBACK")
    A("s_waitcnt vmcnt(0) lgkmcnt(0)")
    A(f"s_load_dwordx16 s[{S_ARG}:{S_ARG+15}], s[0:1], 0")
    A(f"v_and_b32 v{vM}, 31, v0")
    A(f"v_lshrrev_b32 v{vH}, 5, v0")
    A(f"v_lshlrev_b32 v{vKo}, 9, v{vM}")
    A(f"v_lshl_add_u32 v{vKo}, v{vH}, 4, v{vKo}")
    A(f"v_lshlrev_b32 v{vSo}, 3, v{vM}")
    A(f"v_bfe_u32 v{T0}, v{vM}, 2, 1")
    A(f"v_lshlrev_b32 v{T0}, 4, v{T0}")
    A(f"v_lshrrev_b32 v{T1}, 3, v{vM}")
    A(f"v_lshl_add_u32 v{T0}, v{T1}, 2, v{T0}")
    A(f"v_and_b32 v{T1}, 3, v{vM}")
    A(f"v_add_u32 v{T0}, v{T0}, v{T1}")
    A(f"s_lshl_b32 s9, s{S_W}, 5")
    A(f"v_add_u32 v{T0}, s9, v{T0}")
    A(f"v_lshlrev_b32 v{T0}, 2, v{T0}")
    A(f"v_lshl_add_u32 v{vVo}, v{vH}, 11, v{T0}")
    A(f"s_lshl_b32 s9, s{S_W}, 1")
    A(f"v_lshlrev_b32 v{vVso}, 5, v{vH}")
    A(f"v_add_u32 v{vVso}, s9, v{vVso}")
    A(f"v_mov_b32 v{M}, 0xff800000")
    A(f"v_mov_b32 v{L}, 0")
    for r in range(16): A(f"v_mov_b32 v{O + r}, 0")
    A("s_waitcnt lgkmcnt(0)")
    A(f"s_lshl_b32 s8, s{S_H}, 20")
    A(f"s_lshl_b32 s9, s{S_H}, 14")
    add64(A, 22, 22, "s8"); add64(A, 28, 28, "s8")
    add64(A, 24, 24, "s9"); add64(A, 26, 26, "s9"); add64(A, 30, 30, "s9"); add64(A, 32, 32, "s9")
    A("s_mov_b32 s48, 0")
    A.label("L_FB_TILE")
    A(f"global_load_dwordx2 {vr(KS, 2)}, v{vSo}, s[24:25]")
    A(f"global_load_dwordx2 {vr(KZ, 2)}, v{vSo}, s[26:27]")
    A("s_lshl_b32 s49, s48, 5")
    A(f"v_add_u32 v{POS}, s49, v{vM}")
    A(f"v_cvt_f32_u32 v{POS}, v{POS}")
    for r in range(16): A(f"v_mov_b32 v{S + r}, 0")
    A("s_mov_b32 s50, 0")
    A.label("L_FB_KS")
    A("s_lshl_b32 s51, s50, 5")
    A(f"v_add_u32 v{vA}, s51, v{vKo}")
    A(f"global_load_dwordx4 {vr(XL, 4)}, v{vA}, s[22:23]")
    A(f"global_load_dwordx4 {vr(XL + 4, 4)}, v{vA}, s[22:23] offset:256")
    A("s_and_b32 s51, s50, 3")
    A("s_lshl_b32 s51, s51, 1")
    A(f"v_add_u32 v{vA}, s51, v{vH}")
    A(f"v_xor_b32 v{vA}, v{vA}, v0")
    A(f"v_lshlrev_b32 v{vA}, 4, v{vA}")
    A("s_lshl_b32 s51, s50, 10")
    A("s_add_u32 s51, s51, 8192")
    A(f"v_add_u32 v{vA}, s51, v{vA}")
    A(f"ds_read_b128 {vr(QF, 4)}, v{vA}")
    A("s_lshl_b32 s51, s50, 1")
    A(f"v_add_u32 v{T0}, s51, v{vH}")
    A(f"v_lshlrev_b32 v{T0}, 2, v{T0}")
    A(f"v_cvt_f32_u32 v{T0}, v{T0}")
    A(f"s_mov_b32 s51, {F(TRIG_A)}")
    for j in range(4): A(f"v_mov_b32 v{WV + j}, {F(TRIG_B + j * TRIG_A)}")
    for j in range(4): A(f"v_fma_f32 v{WV + j}, v{T0}, s51, v{WV + j}")
    for j in range(4): A(f"v_exp_f32 v{WV + j}, v{WV + j}")
    A("s_nop 0")
    for j in range(4): A(f"v_mul_f32 v{WV + j}, v{POS}, v{WV + j}")
    for j in range(4): A(f"v_fract_f32 v{WV + j}, v{WV + j}")
    for j in range(4):
        A(f"v_cos_f32 v{CS + j}, v{WV + j}")
        A(f"v_sin_f32 v{SN + j}, v{WV + j}")
    A("s_cmp_lt_u32 s50, 4")
    A("s_cselect_b32 s51, 16, 0")
    A("s_waitcnt vmcnt(0) lgkmcnt(0)")
    for k, src in enumerate((KS, KS + 1, KZ, KZ + 1)):
        A(f"v_lshlrev_b32 v{U + k}, s51, v{src}")
    for k in range(4): A(f"v_and_b32 v{WV + k}, 0xffff0000, v{U + k}")
    for j in range(8): A(f"v_cvt_f32_i32 v{XL + j}, v{XL + j}")
    for j in range(8): A(f"v_sub_f32 v{XL + j}, v{XL + j}, v{WV + 2 + (j >> 2)}")
    for j in range(8): A(f"v_mul_f32 v{XL + j}, v{XL + j}, v{WV + (j >> 2)}")
    for j in range(4):
        A(f"v_mul_f32 v{U + j}, v{XL + 4 + j}, v{SN + j}")
        A(f"v_mul_f32 v{U + 4 + j}, v{XL + j}, v{SN + j}")
    for j in range(4):
        A(f"v_fma_f32 v{U + j}, v{XL + j}, v{CS + j}, -v{U + j}")
        A(f"v_fma_f32 v{U + 4 + j}, v{XL + 4 + j}, v{CS + j}, v{U + 4 + j}")
    for k in range(4): A(f"v_cvt_pk_bf16_f32 v{KF + k}, v{U + 2 * k}, v{U + 2 * k + 1}")
    A("s_nop 1")
    A(f"v_mfma_f32_32x32x16_bf16 {vr(S, 16)}, {vr(KF, 4)}, {vr(QF, 4)}, {vr(S, 16)}")
    A("s_nop 15")
    A("s_add_u32 s50, s50, 1")
    A("s_cmp_lt_u32 s50, 8")
    A("s_cbranch_scc1 L_FB_KS")
    A(f"v_max3_f32 v{T0}, v{S}, v{S + 1}, v{S + 2}")
    for r in range(3, 15, 2): A(f"v_max3_f32 v{T0}, v{T0}, v{S + r}, v{S + r + 1}")
    A(f"v_max_f32 v{T0}, v{T0}, v{S + 15}")
    A(f"v_mov_b32 v{T1}, v{T0}")
    A("s_nop 1")
    A(f"v_permlane32_swap_b32 v{T0}, v{T1}")
    A("s_nop 1")
    A(f"v_max3_f32 v{T0}, v{T0}, v{T1}, v{M}")
    A(f"v_sub_f32 v{T1}, v{M}, v{T0}")
    A(f"v_exp_f32 v{T1}, v{T1}")
    A(f"v_mov_b32 v{M}, v{T0}")
    for r in range(16): A(f"v_sub_f32 v{S + r}, v{S + r}, v{T0}")
    for r in range(16): A(f"v_exp_f32 v{S + r}, v{S + r}")
    A(f"v_mul_f32 v{L}, v{L}, v{T1}")
    for r in range(16): A(f"v_mul_f32 v{O + r}, v{O + r}, v{T1}")
    for r in range(16): A(f"v_add_f32 v{L}, v{L}, v{S + r}")
    for k in range(8): A(f"v_cvt_pk_bf16_f32 v{P + k}, v{S + 2 * k}, v{S + 2 * k + 1}")
    for kst in range(2):
        A(f"v_add_u32 v{vA}, {kst * 8192}, v{vVo}")
        A(f"v_add_u32 v{T0}, {kst * 8192 + 4096}, v{vVo}")
        for i in range(8):
            A(f"global_load_dword v{VX + i}, v{vA if i < 4 else T0}, s[28:29] offset:{(i & 3) * 512}")
        for i in range(8):
            ro = (16 * kst + 8 * (i >> 2) + (i & 3)) * 8
            A(f"global_load_ushort v{VS + i}, v{vVso}, s[30:31] offset:{ro}")
            A(f"global_load_ushort v{VZ + i}, v{vVso}, s[32:33] offset:{ro}")
        A("s_waitcnt vmcnt(0)")
        for i in range(8):
            A(f"v_cvt_f32_i32 v{VX + i}, v{VX + i}")
            A(f"v_lshlrev_b32 v{VS + i}, 16, v{VS + i}")
            A(f"v_lshlrev_b32 v{VZ + i}, 16, v{VZ + i}")
        for i in range(8): A(f"v_sub_f32 v{VX + i}, v{VX + i}, v{VZ + i}")
        for i in range(8): A(f"v_mul_f32 v{VX + i}, v{VX + i}, v{VS + i}")
        for k in range(4): A(f"v_cvt_pk_bf16_f32 v{VF + k}, v{VX + 2 * k}, v{VX + 2 * k + 1}")
        A("s_nop 1")
        A(f"v_mfma_f32_32x32x16_bf16 {vr(O, 16)}, {vr(VF, 4)}, {vr(P + 4 * kst, 4)}, {vr(O, 16)}")
        A("s_nop 15")
    add64(A, 22, 22, 16384); add64(A, 28, 28, 16384)
    add64(A, 24, 24, 256); add64(A, 26, 26, 256); add64(A, 30, 30, 256); add64(A, 32, 32, 256)
    A("s_add_u32 s48, s48, 1")
    A("s_cmp_lt_u32 s48, 64")
    A("s_cbranch_scc1 L_FB_TILE")
    A(f"v_mov_b32 v{T1}, v{L}")
    A("s_nop 1")
    A(f"v_permlane32_swap_b32 v{L}, v{T1}")
    A("s_nop 1")
    A(f"v_add_f32 v{L}, v{L}, v{T1}")
    A(f"v_rcp_f32 v{L}, v{L}")
    A("s_nop 0")
    for r in range(16): A(f"v_mul_f32 v{O + r}, v{O + r}, v{L}")
    A("s_branch L_STORE")

def kd(A, name, vgpr, sgpr, accum):
    A(f".amdhsa_kernel {name}")
    A(f"  .amdhsa_next_free_vgpr {vgpr}")
    A(f"  .amdhsa_next_free_sgpr {sgpr}")
    A(f"  .amdhsa_accum_offset {accum}")
    A("  .amdhsa_group_segment_fixed_size 0")
    A("  .amdhsa_kernarg_size 112")
    A("  .amdhsa_user_sgpr_count 2")
    A("  .amdhsa_user_sgpr_kernarg_segment_ptr 1")
    A("  .amdhsa_system_sgpr_workgroup_id_x 1")
    A(".end_amdhsa_kernel")

HEADER = open("cdna_kernels/" + NAME + ".s.ref").read().split("; Override launch geometry")[0]

def generate(opt):
    g = G(opt); A = g.A
    A(HEADER.rstrip("\n"))
    A(f"; @launch grid=(256,1,1) block=(256,1,1) lds={LDS_BYTES}")
    A('.amdgcn_target "amdgcn-amd-amdhsa--gfx950"')
    A(".text")
    A(f".globl {KNAME}\n.p2align 8\n.type {KNAME},@function")
    A.label(KNAME)
    n0 = len(A.lines)
    gen_prologue(g)
    if opt.get("force_fallback"): A("s_branch L_FALLBACK_EARLY")
    gen_main(g)
    n1 = len(A.lines)
    gen_fallback(g)
    n2 = len(A.lines)
    A('.section .rodata,"a"\n.p2align 6')
    kd(A, KNAME, NVGPR_ARCH + 256, 102 if opt.get("stamp") else 96, NVGPR_ARCH)
    L = A.lines
    errs = check(L[n0:n1], "main") + check(L[n1:n2], "fallback")
    return A.text(), errs

if __name__ == "__main__":
    opt = {}
    for a in sys.argv[2:]:
        k, v = a.split("=")
        try: v = int(v)
        except ValueError: pass
        opt[k] = v
    txt, errs = generate(opt)
    out = sys.argv[1]
    open(out, "w").write(txt)
    print("wrote", out, len(txt), "bytes;", len(errs), "check problems")
```

```python
import sys, math, struct
from asmlib import Asm, vr, ar, sr, check

NAME = "standalone__kv_cache_quant_pre_rope_vs_post_rope__prompt"
KNAME = NAME + "_kernel"

WS_KV = 0
WS_X  = 4 << 20
WS_L  = 6 << 20
WS_F  = 7 << 20
WS_SIZE = 8 << 20
WS_STAMP = 12 << 20

def f32bits(x): return struct.unpack("<I", struct.pack("<f", x))[0]
def F(x): return f"0x{f32bits(x):08x}"
QSCALE = math.log2(math.e) / math.sqrt(128.0)
TRIG_A = -math.log2(10000.0) / 64.0
TRIG_B = -math.log2(2 * math.pi)

LDS_Q = 0
RED_A = 16384
RED_BOFF = 49152
LRED = 114688
LFAIL = 116736
LDS_BYTES = 116736 + 64

S_W, S_H, S_SP, S_QT, S_G = 3, 4, 5, 6, 7
S_WS = 12
S_OUT = 16
S_ARG = 20
S_DBG = 36
S_OUTP = 40
S_TILE = 48
S_XCC = 64
S_T0 = 92
ST0 = 66

V_LANE16 = 1
V_OFFV = 2
V_LA, V_LB = 6, 7
V_S = 16
V_P = 80
V_O0 = 112
V_RING = 144
A_O = 0
A_Q = 96
A_RING = 160
NVGPR_ARCH = 192

def Sreg(par, X): return V_S + (par * 2 + X) * 16
def Preg(par, X): return V_P + (par * 2 + X) * 8
def Oreg(X, j):
    if j == 0: return vr(V_O0 + 16 * X, 16)
    return ar(A_O + X * 48 + (j - 1) * 16, 16)
def Qreg(X, ks): return ar(A_Q + (X * 8 + ks) * 4, 4)
RINGSZ = 32
def ring(p):
    s = p % RINGSZ
    return ar(A_RING + s * 4, 4) if s < 24 else vr(V_RING + (s - 24) * 4, 4)

class G:
    def __init__(self, opt):
        self.opt = opt; self.A = Asm(); self.nst = 0
    def stamp(self, idx):
        o = self.opt
        if o.get("stamp"):
            self.A(f"{'s_memtime' if o['stamp'] == 2 else 's_memrealtime'} s[{ST0 + 2*idx}:{ST0 + 2*idx + 1}]")
    def stamp_wait(self):
        if self.opt.get("stamp"): self.A("s_waitcnt lgkmcnt(0)")

def srd(A, d, b, nbytes):
    A(f"s_mov_b32 s{d}, s{b}")
    A(f"s_and_b32 s{d+1}, s{b+1}, 0xffff")
    A(f"s_mov_b32 s{d+2}, {nbytes}")
    A(f"s_mov_b32 s{d+3}, 0x20000")

def add64(A, d, b, off):
    A(f"s_add_u32 s{d}, s{b}, {off}")
    A(f"s_addc_u32 s{d+1}, s{b+1}, 0")

def stream():
    seq = [("K", 0, i) for i in range(8)]
    for t in range(7):
        seq += [("K", t + 1, i) for i in range(8)]
        seq += [("V", t, i) for i in range(8)]
    seq += [("V", 7, i) for i in range(8)]
    return seq

def ring_load(seq, p, mod=""):
    kind, t, i = seq[p]
    dst = ring(p)
    if kind == "K":
        so = f"s{S_TILE + 2 * t + (i >> 2)}"
        return f"buffer_load_dwordx4 {dst}, v{V_LANE16}, s[{S_WS}:{S_WS+3}], {so} offen offset:{(i & 3) * 1024} {mod}".rstrip()
    j, ks = i & 3, i >> 2
    so = f"s{S_TILE + 2 * t}"
    return f"buffer_load_dwordx4 {dst}, v{V_OFFV + j}, s[{S_WS}:{S_WS+3}], {so} offen offset:{ks * 1024} {mod}".rstrip()

def gen_prologue(g):
    A, opt = g.A, g.opt
    ldmod = opt.get("raw_load_mod", "")
    kvmod = opt.get("kv_store_mod", "sc1")
    vC, vR0, vK0, vK1, vKs, vVd, vVs, vQd = 8, 9, 10, 11, 12, 13, 14, 15
    vKst, vQw, vSel, vX4 = 16, 17, 18, 19
    W = 20; CK, SK, CQ, SQ = 24, 32, 40, 56
    KD, KSC, KZ = 72, 88, 92
    VD, VSC, VZ = 96, 112, 120
    SENT = 128
    T = 132
    P0 = T + 4
    def trig(pos_s, extra, c0, s0, scale):
        A(f"v_add_u32 v{P0}, {pos_s}, v{vR0}")
        if extra: A(f"v_add_u32 v{P0}, {extra}, v{P0}")
        A(f"v_cvt_f32_u32 v{P0}, v{P0}")
        for j in range(4): A(f"v_mul_f32 v{P0+1+j}, v{P0}, v{W+j}")
        for j in range(4): A(f"v_fract_f32 v{P0+1+j}, v{P0+1+j}")
        for j in range(4):
            A(f"v_cos_f32 v{c0+j}, v{P0+1+j}")
            A(f"v_sin_f32 v{s0+j}, v{P0+1+j}")
        if scale:
            A("s_nop 0")
            for j in range(0, 4, 2):
                A(f"v_pk_mul_f32 {vr(c0+j, 2)}, {vr(c0+j, 2)}, s[{scale}:{scale+1}]")
                A(f"v_pk_mul_f32 {vr(s0+j, 2)}, {vr(s0+j, 2)}, s[{scale}:{scale+1}]")
    def rope(x, c0, s0, out):
        U = T + 8
        for j in range(0, 4, 2):
            A(f"v_pk_mul_f32 {vr(U+j, 2)}, {vr(x+4+j, 2)}, {vr(s0+j, 2)}")
            A(f"v_pk_mul_f32 {vr(U+4+j, 2)}, {vr(x+j, 2)}, {vr(s0+j, 2)}")
        for j in range(0, 4, 2):
            A(f"v_pk_fma_f32 {vr(U+j, 2)}, {vr(x+j, 2)}, {vr(c0+j, 2)}, {vr(U+j, 2)} neg_lo:[0,0,1] neg_hi:[0,0,1]")
            A(f"v_pk_fma_f32 {vr(U+4+j, 2)}, {vr(x+4+j, 2)}, {vr(c0+j, 2)}, {vr(U+4+j, 2)}")
        for k in range(4):
            A(f"v_cvt_pk_bf16_f32 v{out+k}, v{U+2*k}, v{U+2*k+1}")

    g.stamp(0)
    A("s_cmp_ge_u32 s2, 256")
    A("s_cbranch_scc1 L_END")
    A(f"s_load_dwordx16 s[{S_ARG}:{S_ARG+15}], s[0:1], 0")
    A(f"s_load_dwordx4 s[{S_DBG}:{S_DBG+3}], s[0:1], 96")
    A(f"s_load_dwordx2 s[{S_OUTP}:{S_OUTP+1}], s[0:1], 88")
    A(f"s_memrealtime s[{S_T0}:{S_T0+1}]")
    A("v_lshrrev_b32 v8, 6, v0")
    A("v_and_b32 v0, 63, v0")
    A(f"v_readfirstlane_b32 s{S_W}, v8")
    A(f"v_lshlrev_b32 v{V_LANE16}, 4, v0")
    A("s_and_b32 s8, s2, 7")
    A(f"s_lshr_b32 s{S_H}, s8, 1")
    A(f"s_and_b32 s{S_SP}, s8, 1")
    A(f"s_lshr_b32 s{S_QT}, s2, 3")
    A(f"s_lshl_b32 s8, s{S_H}, 6")
    A(f"s_lshl_b32 s9, s{S_SP}, 5")
    A("s_add_u32 s8, s8, s9")
    A(f"s_add_u32 s{S_G}, s8, s{S_QT}")
    A(f"v_and_b32 v{vC}, 15, v0")
    A(f"v_lshrrev_b32 v{vR0}, 4, v0")
    A(f"s_lshl_b32 s9, s{S_W}, 2")
    A(f"v_add_u32 v{vR0}, s9, v{vR0}")
    A(f"v_lshlrev_b32 v{vK0}, 9, v{vR0}")
    A(f"v_lshl_add_u32 v{vK0}, v{vC}, 4, v{vK0}")
    A(f"v_add_u32 v{vK1}, 8192, v{vK0}")
    A(f"v_lshlrev_b32 v{vKs}, 3, v{vR0}")
    A(f"v_and_b32 v{T}, 31, v0")
    A(f"v_lshrrev_b32 v{T+1}, 5, v0")
    A(f"v_bfe_u32 v{T+2}, v{T}, 2, 1")
    A(f"v_lshlrev_b32 v{T+2}, 4, v{T+2}")
    A(f"v_lshrrev_b32 v{T+3}, 3, v{T}")
    A(f"v_lshl_add_u32 v{T+2}, v{T+3}, 2, v{T+2}")
    A(f"v_and_b32 v{T+3}, 3, v{T}")
    A(f"v_add_u32 v{T+2}, v{T+2}, v{T+3}")
    A(f"s_and_b32 s10, s{S_W}, 1")
    A(f"s_lshr_b32 s11, s{S_W}, 1")
    A("s_lshl_b32 s9, s10, 4")
    A(f"v_lshlrev_b32 v{T+1}, 2, v{T+1}")
    A(f"v_add_u32 v{T+1}, s9, v{T+1}")
    A("s_lshl_b32 s9, s11, 8")
    A("s_add_u32 s9, s9, 2048")
    A(f"v_lshlrev_b32 v{vVd}, 9, v{T+1}")
    A(f"v_lshl_add_u32 v{vVd}, v{T+2}, 2, v{vVd}")
    A(f"v_add_u32 v{vVd}, s9, v{vVd}")
    A("s_lshl_b32 s9, s11, 2")
    A(f"v_lshlrev_b32 v{vVs}, 3, v{T+1}")
    A(f"v_add_u32 v{vVs}, s9, v{vVs}")
    A(f"s_lshl_b32 s42, s{S_G}, 14")
    A(f"s_lshl_b32 s43, s{S_G}, 8")
    A(f"s_lshl_b32 s9, s8, 3")
    A(f"s_add_u32 s65, s9, {WS_F}")
    A(f"v_mov_b32 v{T+3}, s65")
    A(f"v_lshlrev_b32 v{T}, 2, v{vC}")
    A(f"v_cvt_f32_u32 v{T}, v{T}")
    A(f"s_mov_b32 s9, {F(TRIG_A)}")
    for j in range(4): A(f"v_mov_b32 v{W+j}, {F(TRIG_B + j * TRIG_A)}")
    for j in range(4): A(f"v_fma_f32 v{W+j}, v{T}, s9, v{W+j}")
    for j in range(4): A(f"v_exp_f32 v{W+j}, v{W+j}")
    A(f"s_lshl_b32 s9, s{S_SP}, 5")
    A(f"s_add_u32 s9, s9, s{S_QT}")
    A("s_lshl_b32 s9, s9, 5")
    trig("s9", 0, CK, SK, None)
    EARLY = opt.get("early_trig", 0)
    if EARLY:
        trig("s9", 16, CK + 4, SK + 4, None)
        A(f"s_lshl_b32 s9, s{S_QT}, 1")
        A(f"s_add_u32 s46, s9, s{S_SP}")
        A(f"s_xor_b32 s47, s46, 1")
        A("s_lshl_b32 s10, s47, 5")
        A("s_lshl_b32 s11, s46, 5")
        A(f"s_mov_b32 s94, {F(QSCALE)}")
        A(f"s_mov_b32 s95, {F(QSCALE)}")
        trig("s10", 0, CQ, SQ, 94); trig("s10", 16, CQ + 4, SQ + 4, 94)
        if EARLY > 1:
            trig("s11", 0, CQ + 8, SQ + 8, 94); trig("s11", 16, CQ + 12, SQ + 12, 94)
    A("s_waitcnt lgkmcnt(0)")
    g.stamp(1)
    add64(A, 22, 22, "s42")
    add64(A, 24, 24, "s43")
    add64(A, 26, 26, "s43")
    def kloads(it):
        vo = vK0 if it == 0 else vK1
        A(f"global_load_dwordx4 {vr(KD + 8*it, 4)}, v{vo}, s[22:23] {ldmod}")
        A(f"global_load_dwordx4 {vr(KD + 8*it + 4, 4)}, v{vo}, s[22:23] offset:256 {ldmod}")
        A(f"global_load_dwordx2 {vr(KSC + 2*it, 2)}, v{vKs}, s[24:25] offset:{it*128}")
        A(f"global_load_dwordx2 {vr(KZ + 2*it, 2)}, v{vKs}, s[26:27] offset:{it*128}")
    kloads(0); kloads(1)
    add64(A, 28, 28, "s42")
    add64(A, 30, 30, "s43")
    add64(A, 32, 32, "s43")
    for i in range(8):
        ro = (8 * (i >> 2) + (i & 3)) * 8
        A(f"global_load_dword v{VSC + i}, v{vVs}, s[30:31] offset:{ro}")
        A(f"global_load_dword v{VZ + i}, v{vVs}, s[32:33] offset:{ro}")
    for i in range(8):
        for dbl in range(2):
            off = (i >> 2) * 4096 + (i & 3) * 512 + dbl * 128 - 2048
            A(f"global_load_dword v{VD + 2*i + dbl}, v{vVd}, s[28:29] offset:{off} {ldmod}")
    QEARLY = opt.get("q_early", 0)
    QD = 72 if not QEARLY else 176
    def qloads():
        A(f"v_lshlrev_b32 v{vQd}, 8, v{vR0}")
        A(f"v_lshl_add_u32 v{vQd}, v{vC}, 3, v{vQd}")
        A(f"v_add_u32 v{vQd}, 2048, v{vQd}")
        A(f"s_lshl_b32 s9, s{S_QT}, 1")
        A(f"s_add_u32 s46, s9, s{S_SP}")
        A(f"s_xor_b32 s47, s46, 1")
        A(f"s_lshl_b32 s10, s{S_H}, 6")
        A("s_add_u32 s11, s10, s47")
        A("s_lshl_b32 s11, s11, 13")
        add64(A, 34, 20, "s11")
        A("s_add_u32 s11, s10, s46")
        A("s_lshl_b32 s11, s11, 13")
        add64(A, 20, 20, "s11")
        for X in range(2):
            base = "s[34:35]" if X == 0 else "s[20:21]"
            for it in range(2):
                r = QD + (X * 2 + it) * 4
                A(f"global_load_dwordx2 {vr(r, 2)}, v{vQd}, {base} offset:{it*4096 - 2048} {ldmod}")
                A(f"global_load_dwordx2 {vr(r + 2, 2)}, v{vQd}, {base} offset:{it*4096 - 2048 + 128} {ldmod}")
    if QEARLY:
        A(f"s_lshl_b32 s95, s{S_SP}, 5")
        A(f"s_add_u32 s95, s95, s{S_QT}")
        A("s_lshl_b32 s95, s95, 5")
        qloads()
        A("s_mov_b32 s9, s95")
    A(f"global_load_dword v175, v{T+3}, s[38:39] sc1")
    A("s_or_b32 s10, s2, s3")
    A("s_cmp_lg_u32 s10, 0")
    A("s_cbranch_scc1 L_NONONCE")
    A("s_memrealtime s[10:11]")
    A(f"v_mov_b32 v{T+1}, 0")
    A("s_waitcnt lgkmcnt(0)")
    A("s_or_b32 s10, s10, 1")
    A(f"v_mov_b32 v{T+2}, s10")
    A("s_mov_b64 exec, 1")
    A(f"global_store_dword v{T+1}, v{T+2}, s[{S_DBG}:{S_DBG+1}] sc1")
    A("s_mov_b64 exec, -1")
    A.label("L_NONONCE")
    srd(A, S_WS, 38, WS_SIZE)
    A(f"v_lshlrev_b32 v{vX4}, 2, v0")
    A("s_lshl_b32 s44, s2, 13")
    A(f"s_lshl_b32 s10, s{S_W}, 11")
    A("s_add_u32 s44, s44, s10")
    A(f"s_add_u32 s44, s44, {WS_X}")
    A("s_lshl_b32 s45, s2, 10")
    A(f"s_lshl_b32 s10, s{S_W}, 8")
    A("s_add_u32 s45, s45, s10")
    A(f"s_add_u32 s45, s45, {WS_L}")
    NTAIL = 1 + (8 if QEARLY else 0)
    NV = 40 + NTAIL
    if not EARLY: trig("s9", 16, CK + 4, SK + 4, None)
    A(f"v_lshrrev_b32 v{T}, 1, v{vC}")
    A(f"v_lshlrev_b32 v{vKst}, 10, v{T}")
    A(f"v_and_b32 v{T+1}, 1, v{vC}")
    A(f"v_lshl_add_u32 v{vKst}, v{T+1}, 9, v{vKst}")
    A(f"v_lshl_add_u32 v{vKst}, v{vR0}, 4, v{vKst}")
    A(f"v_lshl_add_u32 v{T+1}, v{T+1}, 5, v{vR0}")
    A(f"v_and_b32 v{T+2}, 7, v{vC}")
    A(f"v_xor_b32 v{T+1}, v{T+1}, v{T+2}")
    A(f"v_lshlrev_b32 v{vQw}, 10, v{T}")
    A(f"v_lshl_add_u32 v{vQw}, v{T+1}, 4, v{vQw}")
    A(f"v_lshrrev_b32 v{vSel}, 3, v{vC}")
    A(f"v_lshlrev_b32 v{vSel}, 4, v{vSel}")
    A(f"v_sub_u32 v{vSel}, 16, v{vSel}")
    A(f"s_lshl_b32 s43, s{S_G}, 14")
    A(f"s_and_b32 s9, s{S_W}, 1")
    A("s_lshl_b32 s9, s9, 10")
    A(f"s_lshr_b32 s10, s{S_W}, 1")
    A("s_lshl_b32 s10, s10, 12")
    A("s_add_u32 s9, s9, s10")
    A("s_add_u32 s9, s9, s43")
    A("s_add_u32 s9, s9, 8192")
    nst = 0
    for it in range(2):
        A(f"s_waitcnt vmcnt({NV - 4 * (it + 1) + nst})")
        if it == 0: g.stamp(2)
        x = KD + 8 * it
        sc = T + 16
        for k, src in enumerate((KSC + 2*it, KSC + 2*it + 1, KZ + 2*it, KZ + 2*it + 1)):
            A(f"v_lshlrev_b32 v{sc+k}, v{vSel}, v{src}")
        for j in range(8): A(f"v_cvt_f32_i32 v{x+j}, v{x+j}")
        for k in range(4): A(f"v_and_b32 v{sc+k}, 0xffff0000, v{sc+k}")
        for j in range(0, 4, 2):
            A(f"v_pk_add_f32 {vr(x+j, 2)}, {vr(x+j, 2)}, {vr(sc+2, 2)} op_sel_hi:[1,0] neg_lo:[0,1] neg_hi:[0,1]")
            A(f"v_pk_add_f32 {vr(x+4+j, 2)}, {vr(x+4+j, 2)}, {vr(sc+2, 2)} op_sel:[0,1] op_sel_hi:[1,1] neg_lo:[0,1] neg_hi:[0,1]")
        for j in range(0, 4, 2):
            A(f"v_pk_mul_f32 {vr(x+j, 2)}, {vr(x+j, 2)}, {vr(sc, 2)} op_sel_hi:[1,0]")
            A(f"v_pk_mul_f32 {vr(x+4+j, 2)}, {vr(x+4+j, 2)}, {vr(sc, 2)} op_sel:[0,1] op_sel_hi:[1,1]")
        out = T + 20 + 4 * it
        rope(x, CK + 4*it, SK + 4*it, out)
        A(f"buffer_store_dwordx4 {vr(out, 4)}, v{vKst}, s[{S_WS}:{S_WS+3}], s43 offen offset:{it*256} {kvmod}")
        nst += 1
    A(f"s_waitcnt vmcnt({16 + NTAIL + nst})")
    SP_, ZP_ = 72, 24
    for i in range(8):
        A(f"v_lshlrev_b32 v{SP_+2*i}, 16, v{VSC+i}")
        A(f"v_and_b32 v{SP_+2*i+1}, 0xffff0000, v{VSC+i}")
        A(f"v_lshlrev_b32 v{ZP_+2*i}, 16, v{VZ+i}")
        A(f"v_and_b32 v{ZP_+2*i+1}, 0xffff0000, v{VZ+i}")
    A(f"s_waitcnt vmcnt({NTAIL + nst})")
    g.stamp(3)
    NON = SENT + 1
    A(f"v_mov_b32 v{T+1}, 0")
    A(f"global_load_dword v{NON}, v{T+1}, s[{S_DBG}:{S_DBG+1}] sc1")
    for i in range(16): A(f"v_cvt_f32_i32 v{VD+i}, v{VD+i}")
    for i in range(8): A(f"v_pk_add_f32 {vr(VD+2*i, 2)}, {vr(VD+2*i, 2)}, {vr(ZP_+2*i, 2)} neg_lo:[0,1] neg_hi:[0,1]")
    for i in range(8): A(f"v_pk_mul_f32 {vr(VD+2*i, 2)}, {vr(VD+2*i, 2)}, {vr(SP_+2*i, 2)}")
    for dbl in range(2):
        O = T + 28 + 4 * dbl
        for k in range(4):
            A(f"v_cvt_pk_bf16_f32 v{O+k}, v{VD+(2*k)*2+dbl}, v{VD+(2*k+1)*2+dbl}")
        A(f"buffer_store_dwordx4 {vr(O, 4)}, v{V_LANE16}, s[{S_WS}:{S_WS+3}], s9 offen offset:{dbl*2048} {kvmod}")
    if not QEARLY: qloads()
    else:
        A(f"s_lshl_b32 s9, s{S_QT}, 1")
        A(f"s_add_u32 s46, s9, s{S_SP}")
        A(f"s_xor_b32 s47, s46, 1")
    A("s_lshl_b32 s10, s47, 5")
    A("s_lshl_b32 s11, s46, 5")
    A(f"s_mov_b32 s42, {F(QSCALE)}")
    A(f"s_mov_b32 s43, {F(QSCALE)}")
    if not EARLY:
        trig("s10", 0, CQ, SQ, 42); trig("s10", 16, CQ + 4, SQ + 4, 42)
    for j in range(4):
        A(f"s_add_u32 s9, s{S_W}, {j}")
        A("s_and_b32 s9, s9, 3")
        A("s_lshl_b32 s9, s9, 11")
        A("s_add_u32 s9, s9, 8192")
        A(f"v_add_u32 v{V_OFFV + j}, s9, v{V_LANE16}")
    A(f"s_lshl_b32 s9, s{S_W}, 3")
    A("s_add_u32 s8, s8, s9")
    A(f"s_lshl_b32 s{S_TILE}, s8, 14")
    A(f"s_add_u32 s{S_TILE+1}, s{S_TILE}, 4096")
    for t in range(1, 8):
        A(f"s_add_u32 s{S_TILE + 2*t}, s{S_TILE}, {t * 16384}")
        A(f"s_add_u32 s{S_TILE + 2*t + 1}, s{S_TILE}, {t * 16384 + 4096}")
    A(f"s_lshl_b32 s9, s{S_QT}, 2")
    A("s_add_u32 s9, s9, s65")
    A(f"v_mov_b32 v{T}, s9")
    A(f"s_lshl_b32 s9, s{S_W}, 5")
    A("s_add_u32 s9, s9, s65")
    A(f"v_lshl_add_u32 v{T+2}, v0, 2, s9")
    A("s_mov_b32 s10, 0")
    A("s_mov_b32 s9, 0")
    A(f"s_waitcnt vmcnt({0 if QEARLY else 8})")
    g.stamp(4)
    A.label("L_NPOLL")
    A(f"v_readfirstlane_b32 s{S_XCC}, v{NON}")
    A("s_nop 1")
    A(f"s_sub_u32 s94, s{S_XCC}, s{S_T0}")
    A("s_add_u32 s94, s94, 300")
    A("s_cmp_lt_u32 s94, 2300")
    A(f"s_cselect_b32 s94, s{S_XCC}, 0")
    A("s_cmp_lg_u32 s94, 0")
    A("s_cbranch_scc1 L_NOK")
    A("s_add_u32 s10, s10, 1")
    A(f"s_cmp_ge_u32 s10, {opt.get('maxpoll0', 200)}")
    A("s_cbranch_scc1 L_NTIMEOUT")
    A(f"v_mov_b32 v{T+1}, 0")
    A(f"global_load_dword v{NON}, v{T+1}, s[{S_DBG}:{S_DBG+1}] sc1")
    A("s_waitcnt vmcnt(0)")
    A("s_branch L_NPOLL")
    A.label("L_NTIMEOUT")
    A(f"s_mov_b32 s{S_XCC}, 1")
    A("s_mov_b32 s9, 1")
    A.label("L_NOK")
    A(f"v_mov_b32 v{T+1}, s{S_XCC}")
    A("s_barrier")
    A("s_mov_b64 exec, 1")
    A(f"global_store_dword v{T}, v{T+1}, s[38:39]")
    FL = SENT + 2
    A("s_mov_b64 exec, 0xff")
    A(f"global_load_dword v{FL}, v{T+2}, s[38:39] sc1")
    A("s_mov_b64 exec, -1")
    A("s_mov_b32 s65, s9")
    if EARLY < 2:
        trig("s11", 0, CQ + 8, SQ + 8, 42); trig("s11", 16, CQ + 12, SQ + 12, 42)
    A("s_waitcnt vmcnt(2)")
    g.stamp(5)
    for pc in range(4):
        X, it = pc >> 1, pc & 1
        r = QD + pc * 4
        x = 96 + 8 * (pc & 1)
        for hh in range(2):
            for k in range(2):
                A(f"v_lshlrev_b32 v{x+4*hh+2*k}, 16, v{r+2*hh+k}")
                A(f"v_and_b32 v{x+4*hh+2*k+1}, 0xffff0000, v{r+2*hh+k}")
        out = T + 20 + 4 * (pc & 1)
        rope(x, CQ + 4*pc, SQ + 4*pc, out)
        A(f"ds_write_b128 v{vQw}, {vr(out, 4)} offset:{X*8192 + it*256}")
    A(f"v_lshrrev_b32 v{T+3}, 5, v0")
    for k in range(4):
        A(f"v_add_u32 v{8+k}, {2*k}, v{T+3}")
        A(f"v_xor_b32 v{8+k}, v{8+k}, v0")
        A(f"v_lshlrev_b32 v{8+k}, 4, v{8+k}")
    A(f"v_mov_b32 v{V_LA}, 0")
    A(f"v_mov_b32 v{V_LB}, 0")
    A("s_waitcnt lgkmcnt(0)")
    A("s_barrier")
    for ks in range(4):
        for X in range(2):
            A(f"ds_read_b128 {Qreg(X, ks)}, v{8 + (ks & 3)} offset:{(X * 8 + ks) * 1024}")
    A("s_cmp_lg_u32 s65, 0")
    A("s_cbranch_scc1 L_WAVEFAIL")
    A("s_mov_b32 s10, 0")
    A("s_mov_b64 exec, 0xff")
    A.label("L_FPOLL")
    A("s_waitcnt vmcnt(0)")
    A(f"v_cmp_ne_u32 vcc, s{S_XCC}, v{FL}")
    A("s_cbranch_vccz L_FOK")
    A("s_add_u32 s10, s10, 1")
    A(f"s_cmp_ge_u32 s10, {opt.get('maxpoll1', 400)}")
    A("s_cbranch_scc1 L_WAVEFAIL")
    A(f"global_load_dword v{FL}, v{T+2}, s[38:39] sc1")
    A("s_branch L_FPOLL")
    A.label("L_FOK")
    A("s_mov_b64 exec, -1")
    g.stamp(6)
    if opt.get("stamp"): A(f"s_mov_b32 s{ST0 + 2*11}, s10")
    seq = stream()
    rmod = opt.get("ring_mod", "")
    DEPTH = opt.get("depth", 32)
    for p in range(DEPTH): A(ring_load(seq, p, rmod))
    SE = T + 4
    for j in range(4): A(f"v_mov_b32 v{SE + j}, -1")
    A(f"buffer_store_dwordx4 {vr(SE, 4)}, v{V_LANE16}, s[{S_WS}:{S_WS+3}], s44 offen sc1")
    A(f"buffer_store_dwordx4 {vr(SE, 4)}, v{V_LANE16}, s[{S_WS}:{S_WS+3}], s44 offen offset:1024 sc1")
    A(f"buffer_store_dword v{SE}, v{vX4}, s[{S_WS}:{S_WS+3}], s45 offen sc1")
    g.stamp(7)
    g.stamp_wait()

def gen_wavefail(g):
    A = g.A
    A.label("L_WAVEFAIL")
    A("s_mov_b64 exec, -1")
    A("s_waitcnt vmcnt(0) lgkmcnt(0)")
    A(f"v_lshlrev_b32 v19, 2, v0")
    for j in range(4): A(f"v_mov_b32 v{136 + j}, -1")
    A(f"buffer_store_dwordx4 v[136:139], v{V_LANE16}, s[{S_WS}:{S_WS+3}], s44 offen sc1")
    A(f"buffer_store_dwordx4 v[136:139], v{V_LANE16}, s[{S_WS}:{S_WS+3}], s44 offen offset:1024 sc1")
    A(f"buffer_store_dword v136, v19, s[{S_WS}:{S_WS+3}], s45 offen sc1")
    e = Epi(g)
    for l in e.address_setup(): A(l)
    A(f"v_mov_b32 v{V_LA}, 0x7fc00000")
    A(f"v_mov_b32 v{V_LB}, 0x7fc00000")
    for l in e.lwrite(0): A(l)
    A("s_waitcnt vmcnt(0)")
    A("s_branch L_EPI")

def gen_main(g):
    A, opt = g.A, g.opt
    if opt.get("align64"): A(".p2align 6")
    for _ in range(opt.get("prenop", 0)): A("s_nop 0")
    seq = stream()
    rmod = opt.get("ring_mod", "")
    pos_of = {(k, t, i): p for p, (k, t, i) in enumerate(seq)}
    ops = []
    def phase(kind, t, Xs=(0, 1)):
        if len(Xs) == 2:
            for i in range(8):
                for X in (0, 1): ops.append((kind, t, i, X))
        else:
            for i in range(8): ops.append((kind, t, i, Xs[0]))
    phase("K", 0)
    for t in range(6):
        phase("K", t + 1); phase("V", t)
    phase("K", 7)
    phase("V", 6, (0,)); phase("V", 7, (0,))
    iB = len(ops)
    phase("V", 6, (1,)); phase("V", 7, (1,))
    NG = len(ops); assert NG == 256
    first, last = {}, {}
    for n, (k, t, i, X) in enumerate(ops):
        p = pos_of[(k, t, i)]
        first.setdefault(p, n); last[p] = n
    lastS = {}
    for n, (k, t, i, X) in enumerate(ops):
        if k == "K": lastS[(t, X)] = n
    firstP = {}
    for n, (k, t, i, X) in enumerate(ops):
        if k == "V": firstP.setdefault((t, X, i >> 2), n)
    tasks = []
    for t in range(8):
        if t < 7:
            order = [(0, 0), (1, 0), (0, 1), (1, 1)]
        else:
            order = [(0, 0), (0, 1), (1, 0), (1, 1)]
        if t == 6: order = [(0, 0), (0, 1), (1, 0), (1, 1)]
        for X, half in order:
            for j in range(8 * half, 8 * half + 8): tasks.append((t, X, j))
    def avail(t, X):
        lag = opt.get("lag0", 5) if t == 0 else opt.get("lag", 3)
        return lastS[(t, X)] + lag + (0 if X == 1 else 1)
    def deadline(t, X, j): return firstP[(t, X, j >> 3)]
    plan = [[] for _ in range(NG)]
    MARG = 3
    CAP = opt.get("cap", 2)
    LS = [0] * len(tasks); cnt = {}; nxt = 10 ** 9
    for k in range(len(tasks) - 1, -1, -1):
        t, X, j = tasks[k]
        gg = min(deadline(t, X, j) - MARG, nxt)
        while cnt.get(gg, 0) >= CAP: gg -= 1
        cnt[gg] = cnt.get(gg, 0) + 1
        LS[k] = gg; nxt = gg
    done = 0
    for gg in range(NG):
        n = 0
        while done < len(tasks) and avail(tasks[done][0], tasks[done][1]) <= gg and (n < 1 or LS[done] <= gg):
            plan[gg].append(tasks[done]); done += 1; n += 1
        if done < len(tasks): assert LS[done] > gg, ("deadline miss", gg, tasks[done], LS[done])
    assert done == len(tasks)
    if opt.get("show_plan"):
        print("elements per gap:", "".join(str(len(x)) for x in plan), file=sys.stderr)
    st = dict(add=[], cvt=[])
    E64 = "_e64" if opt.get("e64") else ""
    def fillers(gg):
        out = []
        adds, cvts = st["add"], st["cvt"]
        st["add"], st["cvt"] = [], []
        exps = []
        for (t, X, j) in plan[gg]:
            s = Sreg(t & 1, X) + j
            exps.append(f"v_exp_f32{E64} v{s}, v{s}")
            st["add"].append((t, X, j))
            if j & 1: st["cvt"].append((t, X, j))
        rest = []
        for (t, X, j) in adds:
            rest.append(f"v_add_f32{E64} v{V_LA + X}, v{V_LA + X}, v{Sreg(t & 1, X) + j}")
        for (t, X, j) in cvts:
            s = Sreg(t & 1, X) + j
            rest.append(f"v_cvt_pk_bf16_f32 v{Preg(t & 1, X) + (j >> 1)}, v{s - 1}, v{s}")
        while exps or rest:
            if exps: out.append(exps.pop(0))
            if rest: out.append(rest.pop(0))
            if rest and not exps: out += rest; rest = []
        return out
    extra = {n: [] for n in range(NG)}
    epi = Epi(g)
    pre = epi.address_setup()
    for k, ins in enumerate(pre):
        extra[200 + k // 2].append(ins)
    wa = epi.lwrite(0) + epi.owrite(0)
    lastA_add = max(n for n in range(NG) for (t, X, j) in plan[n] if X == 0) + 1
    startA = max(iB + 2, lastA_add + 1)
    for k, ins in enumerate(wa):
        extra[min(NG - 4, startA + k)].append(ins)
    DEPTH = opt.get("depth", 32)
    issued = DEPTH
    def younger(p):
        return (issued - 1 - p) + (3 if p < DEPTH else 0)
    for n, (k, t, i, X) in enumerate(ops):
        p = pos_of[(k, t, i)]
        if n in (0, 16, 32, 128, 240): A.c(f"---- mfma {n}: {k}{t} i{i} X{X}")
        if opt.get("stamp") and opt.get("loopstamp") and n in (32, 64, 96, 128, 160, 192, 224):
            g.stamp(n // 32)
        if first[p] == n:
            w = f"s_waitcnt vmcnt({younger(p)})"
            if k == "K" and t == 0:
                nq = min(7, i + 3) - i
                w += f" lgkmcnt({2 * nq})"
            A(w)
            if opt.get("e64"): A("s_nop 0")
        frag = ring(p)
        if k == "K":
            S = vr(Sreg(t & 1, X), 16)
            C = "0" if i == 0 else S
            A(f"v_mfma_f32_32x32x16_bf16 {S}, {frag}, {Qreg(X, i)}, {C}")
        else:
            j, ks = i & 3, i >> 2
            O = Oreg(X, j)
            C = "0" if (t == 0 and ks == 0) else O
            A(f"v_mfma_f32_32x32x16_bf16 {O}, {frag}, {vr(Preg(t & 1, X) + 4 * ks, 4)}, {C}")
        fl = fillers(n)
        bal = opt.get("bal", 0)
        if bal == 0 or DEPTH + 1 > RINGSZ - 8:
            do_load = last[p] == n and issued < 128 and p + DEPTH == issued
        else:
            do_load = first[p] == n and issued < 128 and p + DEPTH == issued
            if do_load: assert last.get(issued - RINGSZ, -1) < n
        if do_load:
            fl.insert(min(opt.get("ldpos", 1), len(fl)), ring_load(seq, issued, rmod)); issued += 1
        if k == "K" and t == 0 and X == 1 and i + 4 <= 7:
            for XX in range(2):
                fl.append(f"ds_read_b128 {Qreg(XX, i + 4)}, v{8 + ((i + 4) & 3)} offset:{(XX * 8 + i + 4) * 1024}")
        fl += extra[n]
        for l in fl: A(l)
    assert issued == 128
    assert not st["cvt"]
    for (t, X, j) in st["add"]:
        A(f"v_add_f32 v{V_LA + X}, v{V_LA + X}, v{Sreg(t & 1, X) + j}")
    epi.finish()

class Epi:
    vWr = [None, 8, 9, 10]; vRd = 11; vLw = 12; vLr = 13; vX = 14
    TA = V_S
    TL = 64
    PK = 72
    RX = 80
    def __init__(self, g): self.g = g; self.A = g.A; self.opt = g.opt
    def address_setup(self):
        L = []
        for j in range(1, 4):
            L += [f"s_add_u32 s9, s{S_W}, {j}", "s_and_b32 s9, s9, 3", "s_mul_i32 s9, s9, 12288",
                  f"s_add_u32 s9, s9, {RED_A + (j - 1) * 4096}", f"v_add_u32 v{self.vWr[j]}, s9, v{V_LANE16}"]
        L += [f"s_mul_i32 s9, s{S_W}, 12288", f"s_add_u32 s9, s9, {RED_A}", f"v_add_u32 v{self.vRd}, s9, v{V_LANE16}"]
        L += ["v_and_b32 v15, 31, v0", f"v_lshlrev_b32 v{self.vLr}, 5, v15", f"v_add_u32 v{self.vLr}, {LRED}, v{self.vLr}",
              "v_lshrrev_b32 v15, 5, v0", f"v_lshl_add_u32 v{self.vLw}, v15, 2, v{self.vLr}",
              f"s_lshl_b32 s9, s{S_W}, 3", f"v_add_u32 v{self.vLw}, s9, v{self.vLw}",
              f"v_lshlrev_b32 v{self.vX}, 2, v0"]
        L += ["s_xor_b32 s46, s44, 8192", "s_xor_b32 s47, s45, 1024"]
        L += [f"s_lshl_b32 s9, s{S_H}, 6", f"s_lshl_b32 s10, s{S_QT}, 1", "s_add_u32 s9, s9, s10", f"s_add_u32 s9, s9, s{S_SP}",
              "s_lshl_b32 s9, s9, 13", f"s_lshl_b32 s10, s{S_W}, 6", "s_add_u32 s42, s9, s10",
              "v_and_b32 v15, 31, v0", "v_lshlrev_b32 v15, 8, v15"]
        L += [f"s_mov_b32 s{S_OUT}, s{S_OUTP}", f"s_and_b32 s{S_OUT+1}, s{S_OUTP+1}, 0xffff", f"s_mov_b32 s{S_OUT+2}, {2 << 20}", f"s_mov_b32 s{S_OUT+3}, 0x20000"]
        return L
    def lwrite(self, X):
        return [f"ds_write_b32 v{self.vLw}, v{V_LA + X} offset:{X * 1024}"]
    def owrite(self, X):
        L = []
        for j in range(1, 4):
            for qd in range(4):
                a = A_O + X * 48 + (j - 1) * 16 + qd * 4
                L.append(f"ds_write_b128 v{self.vWr[j]}, {ar(a, 4)} offset:{X * RED_BOFF + qd * 1024}")
        return L
    def oread(self, X):
        L = [f"ds_read_b128 {vr(self.TL, 4)}, v{self.vLr} offset:{X * 1024}",
             f"ds_read_b128 {vr(self.TL + 4, 4)}, v{self.vLr} offset:{X * 1024 + 16}"]
        for j in range(1, 4):
            for qd in range(4):
                L.append(f"ds_read_b128 {vr(self.TA + (j - 1) * 16 + qd * 4, 4)}, v{self.vRd} offset:{X * RED_BOFF + (j - 1) * 4096 + qd * 1024}")
        return L
    def sums(self, X):
        A = self.A; TL = self.TL; O = V_O0 + 16 * X
        A(f"v_add_f32 v{TL}, v{TL}, v{TL + 1}")
        A(f"v_add_f32 v{TL + 2}, v{TL + 2}, v{TL + 3}")
        A(f"v_add_f32 v{TL + 4}, v{TL + 4}, v{TL + 5}")
        A(f"v_add_f32 v{TL + 6}, v{TL + 6}, v{TL + 7}")
        A(f"v_add_f32 v{TL}, v{TL}, v{TL + 2}")
        A(f"v_add_f32 v{TL + 4}, v{TL + 4}, v{TL + 6}")
        A(f"v_add_f32 v{V_LA + X}, v{TL}, v{TL + 4}")
        for j in range(3):
            for r in range(0, 16, 2):
                A(f"v_pk_add_f32 {vr(O + r, 2)}, {vr(O + r, 2)}, {vr(self.TA + j * 16 + r, 2)}")
    def finish(self):
        g, A, opt = self.g, self.A, self.opt
        PK, RX = self.PK, self.RX
        A.c("==== epilogue")
        A.label("L_EPI")
        g.stamp(8)
        ws = f"s[{S_WS}:{S_WS+3}]"
        A("s_waitcnt lgkmcnt(0)")
        A("s_barrier")
        for l in self.oread(0): A(l)
        for l in self.lwrite(1): A(l)
        A("s_waitcnt lgkmcnt(1)")
        self.sums(0)
        for k in range(8):
            A(f"v_cvt_pk_bf16_f32 v{PK + k}, v{V_O0 + 2 * k}, v{V_O0 + 2 * k + 1}")
        omod = opt.get("xchg_mod", "sc1")
        A(f"buffer_store_dwordx4 {vr(PK, 4)}, v{V_LANE16}, {ws}, s46 offen {omod}")
        A(f"buffer_store_dwordx4 {vr(PK + 4, 4)}, v{V_LANE16}, {ws}, s46 offen offset:1024 {omod}")
        A(f"buffer_store_dword v{V_LA}, v{self.vX}, {ws}, s47 offen {omod}")
        g.stamp(9)
        def poll():
            A(f"buffer_load_dwordx4 {vr(RX, 4)}, v{V_LANE16}, {ws}, s44 offen sc1")
            A(f"buffer_load_dwordx4 {vr(RX + 4, 4)}, v{V_LANE16}, {ws}, s44 offen offset:1024 sc1")
            A(f"buffer_load_dword v{RX + 8}, v{self.vX}, {ws}, s45 offen sc1")
        for l in self.owrite(1): A(l)
        poll()
        A("s_waitcnt lgkmcnt(0)")
        A("s_barrier")
        for l in self.oread(1): A(l)
        A("s_mov_b32 s10, 0")
        A("s_waitcnt lgkmcnt(0)")
        self.sums(1)
        A("s_branch L_POLLW")
        A.label("L_POLL")
        poll()
        A.label("L_POLLW")
        A("s_waitcnt vmcnt(0)")
        A(f"v_max3_u32 v90, v{RX}, v{RX + 1}, v{RX + 2}")
        A(f"v_max3_u32 v91, v{RX + 3}, v{RX + 4}, v{RX + 5}")
        A(f"v_max3_u32 v92, v{RX + 6}, v{RX + 7}, v{RX + 8}")
        A("v_max3_u32 v90, v90, v91, v92")
        A("s_add_u32 s10, s10, 1")
        A("v_cmp_eq_u32 vcc, -1, v90")
        A(f"s_cmp_ge_u32 s10, {opt.get('maxpoll2', 200)}")
        A("s_cbranch_scc1 L_FALLBACK")
        A("s_cbranch_vccnz L_POLL")
        g.stamp(10)
        if opt.get("stamp"): A(f"s_mov_b32 s{ST0 + 2*11 + 1}, s10")
        O = V_O0 + 16
        A(f"v_add_f32 v{V_LB}, v{V_LB}, v{RX + 8}")
        for k in range(8):
            A(f"v_lshlrev_b32 v{16 + 2 * k}, 16, v{RX + k}")
            A(f"v_and_b32 v{17 + 2 * k}, 0xffff0000, v{RX + k}")
        A(f"v_rcp_f32 v32, v{V_LB}")
        for r in range(0, 16, 2):
            A(f"v_pk_add_f32 {vr(O + r, 2)}, {vr(O + r, 2)}, {vr(16 + r, 2)}")
        A("v_pk_mul_f32 v[34:35], v[%d:%d], 0" % (O, O + 1))
        for r in range(2, 16, 2):
            A(f"v_pk_fma_f32 v[34:35], {vr(O + r, 2)}, 0, v[34:35]")
        A(f"s_mov_b32 s9, {F(2.0 ** -30)}")
        A(f"s_mov_b32 s10, {F(2.0 ** 30)}")
        A(f"v_cmp_le_f32 s[46:47], s9, v{V_LB}")
        A(f"v_cmp_ge_f32 s[8:9], s10, v{V_LB}")
        A("v_cmp_o_f32 vcc, v34, v35")
        A("v_mov_b32 v33, v32")
        A("s_and_b64 s[46:47], s[46:47], s[8:9]")
        A("s_and_b64 s[46:47], s[46:47], vcc")
        A("s_cmp_eq_u64 s[46:47], exec")
        A("s_cbranch_scc0 L_FALLBACK")
        for r in range(0, 16, 2):
            A(f"v_pk_mul_f32 {vr(O + r, 2)}, {vr(O + r, 2)}, v[32:33]")
        A.label("L_STORE")
        for k in range(8):
            A(f"v_cvt_pk_bf16_f32 v{PK + k}, v{O + 2 * k}, v{O + 2 * k + 1}")
        A("v_lshrrev_b32 v37, 5, v0")
        A("v_lshl_add_u32 v36, v37, 5, v15")
        om = opt.get("out_mod", "")
        A(f"buffer_store_dwordx4 {vr(PK, 4)}, v36, s[{S_OUT}:{S_OUT+3}], s42 offen {om}")
        A(f"buffer_store_dwordx4 {vr(PK + 4, 4)}, v36, s[{S_OUT}:{S_OUT+3}], s42 offen offset:16 {om}")
        if opt.get("stamp"):
            A("s_waitcnt vmcnt(0)")
            g.stamp(12)
            A("s_waitcnt lgkmcnt(0)")
            if opt.get("dbgstamp"):
                A("s_mov_b64 exec, 1")
                A("v_mov_b32 v174, 0")
                A(f"s_not_b32 s98, s{ST0}")
                A("v_mov_b32 v175, s98")
                A(f"global_atomic_umax v174, v175, s[{S_DBG}:{S_DBG+1}] offset:4 sc1")
                for k, idx in enumerate((1, 2, 3, 4, 6, 7, 8, 9, 10, 12)):
                    A(f"v_mov_b32 v175, s{ST0 + 2 * idx}")
                    A(f"global_atomic_umax v174, v175, s[{S_DBG}:{S_DBG+1}] offset:{8 + 4 * k} sc1")
                A("s_endpgm")
            A("s_lshl_b32 s98, s2, 2")
            A(f"s_add_u32 s98, s98, s{S_W}")
            A("s_lshl_b32 s98, s98, 7")
            A(f"s_add_u32 s98, s98, {WS_STAMP}")
            A("v_mov_b32 v174, s98")
            A("s_mov_b64 exec, 1")
            for i in range(13):
                A(f"v_mov_b32 v175, s{ST0 + 2 * i}")
                A(f"global_store_dword v174, v175, s[38:39] offset:{4 * i}")
            A(f"v_mov_b32 v175, s{ST0 + 2*11 + 1}")
            A(f"global_store_dword v174, v175, s[38:39] offset:{4 * 13}")
        A.label("L_END")
        A("s_endpgm")

def gen_fallback(g):
    A, opt = g.A, g.opt
    S = 16; P = 32; XL = 40; KS = 48; KZ = 50; CS = 52; SN = 56; U = 60; KF = 68; QF = 72; WV = 76
    VX = 80; VS = 88; VZ = 96; VF = 104
    M, L, T0, T1, POS, vM, vH, vA = 108, 109, 110, 111, 144, 145, 146, 147
    vKo, vSo, vVo, vVso = 148, 149, 150, 151
    O = V_O0 + 16
    A.label("L_FALLBACK")
    A("s_waitcnt vmcnt(0) lgkmcnt(0)")
    A(f"s_load_dwordx16 s[{S_ARG}:{S_ARG+15}], s[0:1], 0")
    A(f"v_and_b32 v{vM}, 31, v0")
    A(f"v_lshrrev_b32 v{vH}, 5, v0")
    A(f"v_lshlrev_b32 v{vKo}, 9, v{vM}")
    A(f"v_lshl_add_u32 v{vKo}, v{vH}, 4, v{vKo}")
    A(f"v_lshlrev_b32 v{vSo}, 3, v{vM}")
    A(f"v_bfe_u32 v{T0}, v{vM}, 2, 1")
    A(f"v_lshlrev_b32 v{T0}, 4, v{T0}")
    A(f"v_lshrrev_b32 v{T1}, 3, v{vM}")
    A(f"v_lshl_add_u32 v{T0}, v{T1}, 2, v{T0}")
    A(f"v_and_b32 v{T1}, 3, v{vM}")
    A(f"v_add_u32 v{T0}, v{T0}, v{T1}")
    A(f"s_lshl_b32 s9, s{S_W}, 5")
    A(f"v_add_u32 v{T0}, s9, v{T0}")
    A(f"v_lshlrev_b32 v{T0}, 2, v{T0}")
    A(f"v_lshl_add_u32 v{vVo}, v{vH}, 11, v{T0}")
    A(f"s_lshl_b32 s9, s{S_W}, 1")
    A(f"v_lshlrev_b32 v{vVso}, 5, v{vH}")
    A(f"v_add_u32 v{vVso}, s9, v{vVso}")
    A(f"v_mov_b32 v{M}, 0xff800000")
    A(f"v_mov_b32 v{L}, 0")
    for r in range(16): A(f"v_mov_b32 v{O + r}, 0")
    A("s_waitcnt lgkmcnt(0)")
    A(f"s_lshl_b32 s8, s{S_H}, 20")
    A(f"s_lshl_b32 s9, s{S_H}, 14")
    add64(A, 22, 22, "s8"); add64(A, 28, 28, "s8")
    add64(A, 24, 24, "s9"); add64(A, 26, 26, "s9"); add64(A, 30, 30, "s9"); add64(A, 32, 32, "s9")
    A("s_mov_b32 s48, 0")
    A.label("L_FB_TILE")
    A(f"global_load_dwordx2 {vr(KS, 2)}, v{vSo}, s[24:25]")
    A(f"global_load_dwordx2 {vr(KZ, 2)}, v{vSo}, s[26:27]")
    A("s_lshl_b32 s49, s48, 5")
    A(f"v_add_u32 v{POS}, s49, v{vM}")
    A(f"v_cvt_f32_u32 v{POS}, v{POS}")
    for r in range(16): A(f"v_mov_b32 v{S + r}, 0")
    A("s_mov_b32 s50, 0")
    A.label("L_FB_KS")
    A("s_lshl_b32 s51, s50, 5")
    A(f"v_add_u32 v{vA}, s51, v{vKo}")
    A(f"global_load_dwordx4 {vr(XL, 4)}, v{vA}, s[22:23]")
    A(f"global_load_dwordx4 {vr(XL + 4, 4)}, v{vA}, s[22:23] offset:256")
    A("s_and_b32 s51, s50, 3")
    A("s_lshl_b32 s51, s51, 1")
    A(f"v_add_u32 v{vA}, s51, v{vH}")
    A(f"v_xor_b32 v{vA}, v{vA}, v0")
    A(f"v_lshlrev_b32 v{vA}, 4, v{vA}")
    A("s_lshl_b32 s51, s50, 10")
    A("s_add_u32 s51, s51, 8192")
    A(f"v_add_u32 v{vA}, s51, v{vA}")
    A(f"ds_read_b128 {vr(QF, 4)}, v{vA}")
    A("s_lshl_b32 s51, s50, 1")
    A(f"v_add_u32 v{T0}, s51, v{vH}")
    A(f"v_lshlrev_b32 v{T0}, 2, v{T0}")
    A(f"v_cvt_f32_u32 v{T0}, v{T0}")
    A(f"s_mov_b32 s51, {F(TRIG_A)}")
    for j in range(4): A(f"v_mov_b32 v{WV + j}, {F(TRIG_B + j * TRIG_A)}")
    for j in range(4): A(f"v_fma_f32 v{WV + j}, v{T0}, s51, v{WV + j}")
    for j in range(4): A(f"v_exp_f32 v{WV + j}, v{WV + j}")
    A("s_nop 0")
    for j in range(4): A(f"v_mul_f32 v{WV + j}, v{POS}, v{WV + j}")
    for j in range(4): A(f"v_fract_f32 v{WV + j}, v{WV + j}")
    for j in range(4):
        A(f"v_cos_f32 v{CS + j}, v{WV + j}")
        A(f"v_sin_f32 v{SN + j}, v{WV + j}")
    A("s_cmp_lt_u32 s50, 4")
    A("s_cselect_b32 s51, 16, 0")
    A("s_waitcnt vmcnt(0) lgkmcnt(0)")
    for k, src in enumerate((KS, KS + 1, KZ, KZ + 1)):
        A(f"v_lshlrev_b32 v{U + k}, s51, v{src}")
    for k in range(4): A(f"v_and_b32 v{WV + k}, 0xffff0000, v{U + k}")
    for j in range(8): A(f"v_cvt_f32_i32 v{XL + j}, v{XL + j}")
    for j in range(8): A(f"v_sub_f32 v{XL + j}, v{XL + j}, v{WV + 2 + (j >> 2)}")
    for j in range(8): A(f"v_mul_f32 v{XL + j}, v{XL + j}, v{WV + (j >> 2)}")
    for j in range(4):
        A(f"v_mul_f32 v{U + j}, v{XL + 4 + j}, v{SN + j}")
        A(f"v_mul_f32 v{U + 4 + j}, v{XL + j}, v{SN + j}")
    for j in range(4):
        A(f"v_fma_f32 v{U + j}, v{XL + j}, v{CS + j}, -v{U + j}")
        A(f"v_fma_f32 v{U + 4 + j}, v{XL + 4 + j}, v{CS + j}, v{U + 4 + j}")
    for k in range(4): A(f"v_cvt_pk_bf16_f32 v{KF + k}, v{U + 2 * k}, v{U + 2 * k + 1}")
    A("s_nop 1")
    A(f"v_mfma_f32_32x32x16_bf16 {vr(S, 16)}, {vr(KF, 4)}, {vr(QF, 4)}, {vr(S, 16)}")
    A("s_nop 15")
    A("s_add_u32 s50, s50, 1")
    A("s_cmp_lt_u32 s50, 8")
    A("s_cbranch_scc1 L_FB_KS")
    A(f"v_max3_f32 v{T0}, v{S}, v{S + 1}, v{S + 2}")
    for r in range(3, 15, 2): A(f"v_max3_f32 v{T0}, v{T0}, v{S + r}, v{S + r + 1}")
    A(f"v_max_f32 v{T0}, v{T0}, v{S + 15}")
    A(f"v_mov_b32 v{T1}, v{T0}")
    A("s_nop 1")
    A(f"v_permlane32_swap_b32 v{T0}, v{T1}")
    A("s_nop 1")
    A(f"v_max3_f32 v{T0}, v{T0}, v{T1}, v{M}")
    A(f"v_sub_f32 v{T1}, v{M}, v{T0}")
    A(f"v_exp_f32 v{T1}, v{T1}")
    A(f"v_mov_b32 v{M}, v{T0}")
    for r in range(16): A(f"v_sub_f32 v{S + r}, v{S + r}, v{T0}")
    for r in range(16): A(f"v_exp_f32 v{S + r}, v{S + r}")
    A(f"v_mul_f32 v{L}, v{L}, v{T1}")
    for r in range(16): A(f"v_mul_f32 v{O + r}, v{O + r}, v{T1}")
    for r in range(16): A(f"v_add_f32 v{L}, v{L}, v{S + r}")
    for k in range(8): A(f"v_cvt_pk_bf16_f32 v{P + k}, v{S + 2 * k}, v{S + 2 * k + 1}")
    for kst in range(2):
        A(f"v_add_u32 v{vA}, {kst * 8192}, v{vVo}")
        A(f"v_add_u32 v{T0}, {kst * 8192 + 4096}, v{vVo}")
        for i in range(8):
            A(f"global_load_dword v{VX + i}, v{vA if i < 4 else T0}, s[28:29] offset:{(i & 3) * 512}")
        for i in range(8):
            ro = (16 * kst + 8 * (i >> 2) + (i & 3)) * 8
            A(f"global_load_ushort v{VS + i}, v{vVso}, s[30:31] offset:{ro}")
            A(f"global_load_ushort v{VZ + i}, v{vVso}, s[32:33] offset:{ro}")
        A("s_waitcnt vmcnt(0)")
        for i in range(8):
            A(f"v_cvt_f32_i32 v{VX + i}, v{VX + i}")
            A(f"v_lshlrev_b32 v{VS + i}, 16, v{VS + i}")
            A(f"v_lshlrev_b32 v{VZ + i}, 16, v{VZ + i}")
        for i in range(8): A(f"v_sub_f32 v{VX + i}, v{VX + i}, v{VZ + i}")
        for i in range(8): A(f"v_mul_f32 v{VX + i}, v{VX + i}, v{VS + i}")
        for k in range(4): A(f"v_cvt_pk_bf16_f32 v{VF + k}, v{VX + 2 * k}, v{VX + 2 * k + 1}")
        A("s_nop 1")
        A(f"v_mfma_f32_32x32x16_bf16 {vr(O, 16)}, {vr(VF, 4)}, {vr(P + 4 * kst, 4)}, {vr(O, 16)}")
        A("s_nop 15")
    add64(A, 22, 22, 16384); add64(A, 28, 28, 16384)
    add64(A, 24, 24, 256); add64(A, 26, 26, 256); add64(A, 30, 30, 256); add64(A, 32, 32, 256)
    A("s_add_u32 s48, s48, 1")
    A("s_cmp_lt_u32 s48, 64")
    A("s_cbranch_scc1 L_FB_TILE")
    A(f"v_mov_b32 v{T1}, v{L}")
    A("s_nop 1")
    A(f"v_permlane32_swap_b32 v{L}, v{T1}")
    A("s_nop 1")
    A(f"v_add_f32 v{L}, v{L}, v{T1}")
    A(f"v_rcp_f32 v{L}, v{L}")
    A("s_nop 0")
    for r in range(16): A(f"v_mul_f32 v{O + r}, v{O + r}, v{L}")
    A("s_branch L_STORE")

def kd(A, name, vgpr, sgpr, accum):
    A(f".amdhsa_kernel {name}")
    A(f"  .amdhsa_next_free_vgpr {vgpr}")
    A(f"  .amdhsa_next_free_sgpr {sgpr}")
    A(f"  .amdhsa_accum_offset {accum}")
    A("  .amdhsa_group_segment_fixed_size 0")
    A("  .amdhsa_kernarg_size 112")
    A("  .amdhsa_user_sgpr_count 2")
    A("  .amdhsa_user_sgpr_kernarg_segment_ptr 1")
    A("  .amdhsa_system_sgpr_workgroup_id_x 1")
    A(".end_amdhsa_kernel")

HEADER = open("cdna_kernels/" + NAME + ".s.ref").read().split("; Override launch geometry")[0]

def generate(opt):
    g = G(opt); A = g.A
    A(HEADER.rstrip("\n"))
    A(f"; @launch grid=(256,1,1) block=(256,1,1) lds={LDS_BYTES}")
    A('.amdgcn_target "amdgcn-amd-amdhsa--gfx950"')
    A(".text")
    A(f".globl {KNAME}\n.p2align 8\n.type {KNAME},@function")
    A.label(KNAME)
    n0 = len(A.lines)
    gen_prologue(g)
    if opt.get("force_fallback"): A("s_branch L_WAVEFAIL")
    gen_main(g)
    n1 = len(A.lines)
    gen_wavefail(g)
    gen_fallback(g)
    n2 = len(A.lines)
    A('.section .rodata,"a"\n.p2align 6')
    kd(A, KNAME, NVGPR_ARCH + 256, 102 if opt.get("stamp") else 96, NVGPR_ARCH)
    L = A.lines
    errs = check(L[n0:n1], "main") + check(L[n1:n2], "fallback")
    return A.text(), errs

if __name__ == "__main__":
    opt = {}
    for a in sys.argv[2:]:
        k, v = a.split("=")
        try: v = int(v)
        except ValueError: pass
        opt[k] = v
    txt, errs = generate(opt)
    out = sys.argv[1]
    open(out, "w").write(txt)
    print("wrote", out, len(txt), "bytes;", len(errs), "check problems")
```

```python
import sys, math, struct
from asmlib import Asm, vr, ar, sr, check

NAME = "standalone__kv_cache_quant_pre_rope_vs_post_rope__prompt"
KNAME = NAME + "_kernel"

WS_KV = 0
WS_X  = 4 << 20
WS_L  = 6 << 20
WS_F  = 7 << 20
WS_SIZE = 8 << 20
WS_STAMP = 12 << 20

def f32bits(x): return struct.unpack("<I", struct.pack("<f", x))[0]
def F(x): return f"0x{f32bits(x):08x}"
QSCALE = math.log2(math.e) / math.sqrt(128.0)
TRIG_A = -math.log2(10000.0) / 64.0
TRIG_B = -math.log2(2 * math.pi)

LDS_Q = 0
RED_A = 16384
RED_BOFF = 49152
LRED = 114688
LFAIL = 116736
LDS_BYTES = 116736 + 64

S_W, S_H, S_SP, S_QT, S_G = 3, 4, 5, 6, 7
S_WS = 12
S_OUT = 16
S_ARG = 20
S_DBG = 36
S_OUTP = 40
S_TILE = 48
S_XCC = 64
S_T0 = 92
ST0 = 66

V_LANE16 = 1
V_OFFV = 2
V_LA, V_LB = 6, 7
V_S = 16
V_P = 80
V_O0 = 112
V_RING = 144
A_O = 0
A_Q = 96
A_RING = 160
NVGPR_ARCH = 192

def Sreg(par, X): return V_S + (par * 2 + X) * 16
def Preg(par, X): return V_P + (par * 2 + X) * 8
def Oreg(X, j):
    if j == 0: return vr(V_O0 + 16 * X, 16)
    return ar(A_O + X * 48 + (j - 1) * 16, 16)
def Qreg(X, ks): return ar(A_Q + (X * 8 + ks) * 4, 4)
RINGSZ = 32
def ring(p):
    s = p % RINGSZ
    return ar(A_RING + s * 4, 4) if s < 24 else vr(V_RING + (s - 24) * 4, 4)

class G:
    def __init__(self, opt):
        self.opt = opt; self.A = Asm(); self.nst = 0
    def stamp(self, idx):
        o = self.opt
        if o.get("stamp"):
            self.A(f"{'s_memtime' if o['stamp'] == 2 else 's_memrealtime'} s[{ST0 + 2*idx}:{ST0 + 2*idx + 1}]")
    def stamp_wait(self):
        if self.opt.get("stamp"): self.A("s_waitcnt lgkmcnt(0)")

def srd(A, d, b, nbytes):
    A(f"s_mov_b32 s{d}, s{b}")
    A(f"s_and_b32 s{d+1}, s{b+1}, 0xffff")
    A(f"s_mov_b32 s{d+2}, {nbytes}")
    A(f"s_mov_b32 s{d+3}, 0x20000")

def add64(A, d, b, off):
    A(f"s_add_u32 s{d}, s{b}, {off}")
    A(f"s_addc_u32 s{d+1}, s{b+1}, 0")

def stream():
    seq = [("K", 0, i) for i in range(8)]
    for t in range(7):
        seq += [("K", t + 1, i) for i in range(8)]
        seq += [("V", t, i) for i in range(8)]
    seq += [("V", 7, i) for i in range(8)]
    return seq

def ring_load(seq, p, mod=""):
    kind, t, i = seq[p]
    dst = ring(p)
    if kind == "K":
        so = f"s{S_TILE + 2 * t + (i >> 2)}"
        return f"buffer_load_dwordx4 {dst}, v{V_LANE16}, s[{S_WS}:{S_WS+3}], {so} offen offset:{(i & 3) * 1024} {mod}".rstrip()
    j, ks = i & 3, i >> 2
    so = f"s{S_TILE + 2 * t}"
    return f"buffer_load_dwordx4 {dst}, v{V_OFFV + j}, s[{S_WS}:{S_WS+3}], {so} offen offset:{ks * 1024} {mod}".rstrip()

def gen_prologue(g):
    A, opt = g.A, g.opt
    ldmod = opt.get("raw_load_mod", "")
    kvmod = opt.get("kv_store_mod", "sc1")
    vC, vR0, vK0, vK1, vKs, vVd, vVs, vQd = 8, 9, 10, 11, 12, 13, 14, 15
    vKst, vQw, vSel, vX4 = 16, 17, 18, 19
    W = 20; CK, SK, CQ, SQ = 24, 32, 40, 56
    KD, KSC, KZ = 72, 88, 92
    VD, VSC, VZ = 96, 112, 120
    SENT = 128
    T = 132
    P0 = T + 4
    def trig(pos_s, extra, c0, s0, scale):
        A(f"v_add_u32 v{P0}, {pos_s}, v{vR0}")
        if extra: A(f"v_add_u32 v{P0}, {extra}, v{P0}")
        A(f"v_cvt_f32_u32 v{P0}, v{P0}")
        for j in range(4): A(f"v_mul_f32 v{P0+1+j}, v{P0}, v{W+j}")
        for j in range(4): A(f"v_fract_f32 v{P0+1+j}, v{P0+1+j}")
        for j in range(4):
            A(f"v_cos_f32 v{c0+j}, v{P0+1+j}")
            A(f"v_sin_f32 v{s0+j}, v{P0+1+j}")
        if scale:
            A("s_nop 0")
            for j in range(0, 4, 2):
                A(f"v_pk_mul_f32 {vr(c0+j, 2)}, {vr(c0+j, 2)}, s[{scale}:{scale+1}]")
                A(f"v_pk_mul_f32 {vr(s0+j, 2)}, {vr(s0+j, 2)}, s[{scale}:{scale+1}]")
    def rope(x, c0, s0, out):
        U = T + 8
        for j in range(0, 4, 2):
            A(f"v_pk_mul_f32 {vr(U+j, 2)}, {vr(x+4+j, 2)}, {vr(s0+j, 2)}")
            A(f"v_pk_mul_f32 {vr(U+4+j, 2)}, {vr(x+j, 2)}, {vr(s0+j, 2)}")
        for j in range(0, 4, 2):
            A(f"v_pk_fma_f32 {vr(U+j, 2)}, {vr(x+j, 2)}, {vr(c0+j, 2)}, {vr(U+j, 2)} neg_lo:[0,0,1] neg_hi:[0,0,1]")
            A(f"v_pk_fma_f32 {vr(U+4+j, 2)}, {vr(x+4+j, 2)}, {vr(c0+j, 2)}, {vr(U+4+j, 2)}")
        for k in range(4):
            A(f"v_cvt_pk_bf16_f32 v{out+k}, v{U+2*k}, v{U+2*k+1}")

    g.stamp(0)
    A("s_cmp_ge_u32 s2, 256")
    A("s_cbranch_scc1 L_END")
    A(f"s_load_dwordx16 s[{S_ARG}:{S_ARG+15}], s[0:1], 0")
    A(f"s_load_dwordx4 s[{S_DBG}:{S_DBG+3}], s[0:1], 96")
    A(f"s_load_dwordx2 s[{S_OUTP}:{S_OUTP+1}], s[0:1], 88")
    A(f"s_memrealtime s[{S_T0}:{S_T0+1}]")
    A("v_lshrrev_b32 v8, 6, v0")
    A("v_and_b32 v0, 63, v0")
    A(f"v_readfirstlane_b32 s{S_W}, v8")
    A(f"v_lshlrev_b32 v{V_LANE16}, 4, v0")
    A("s_and_b32 s8, s2, 7")
    A(f"s_lshr_b32 s{S_H}, s8, 1")
    A(f"s_and_b32 s{S_SP}, s8, 1")
    A(f"s_lshr_b32 s{S_QT}, s2, 3")
    A(f"s_lshl_b32 s8, s{S_H}, 6")
    A(f"s_lshl_b32 s9, s{S_SP}, 5")
    A("s_add_u32 s8, s8, s9")
    A(f"s_add_u32 s{S_G}, s8, s{S_QT}")
    A(f"v_and_b32 v{vC}, 15, v0")
    A(f"v_lshrrev_b32 v{vR0}, 4, v0")
    A(f"s_lshl_b32 s9, s{S_W}, 2")
    A(f"v_add_u32 v{vR0}, s9, v{vR0}")
    A(f"v_lshlrev_b32 v{vK0}, 9, v{vR0}")
    A(f"v_lshl_add_u32 v{vK0}, v{vC}, 4, v{vK0}")
    A(f"v_add_u32 v{vK1}, 8192, v{vK0}")
    A(f"v_lshlrev_b32 v{vKs}, 3, v{vR0}")
    A(f"v_and_b32 v{T}, 31, v0")
    A(f"v_lshrrev_b32 v{T+1}, 5, v0")
    A(f"v_bfe_u32 v{T+2}, v{T}, 2, 1")
    A(f"v_lshlrev_b32 v{T+2}, 4, v{T+2}")
    A(f"v_lshrrev_b32 v{T+3}, 3, v{T}")
    A(f"v_lshl_add_u32 v{T+2}, v{T+3}, 2, v{T+2}")
    A(f"v_and_b32 v{T+3}, 3, v{T}")
    A(f"v_add_u32 v{T+2}, v{T+2}, v{T+3}")
    A(f"s_and_b32 s10, s{S_W}, 1")
    A(f"s_lshr_b32 s11, s{S_W}, 1")
    A("s_lshl_b32 s9, s10, 4")
    A(f"v_lshlrev_b32 v{T+1}, 2, v{T+1}")
    A(f"v_add_u32 v{T+1}, s9, v{T+1}")
    A("s_lshl_b32 s9, s11, 8")
    A("s_add_u32 s9, s9, 2048")
    A(f"v_lshlrev_b32 v{vVd}, 9, v{T+1}")
    A(f"v_lshl_add_u32 v{vVd}, v{T+2}, 2, v{vVd}")
    A(f"v_add_u32 v{vVd}, s9, v{vVd}")
    A("s_lshl_b32 s9, s11, 2")
    A(f"v_lshlrev_b32 v{vVs}, 3, v{T+1}")
    A(f"v_add_u32 v{vVs}, s9, v{vVs}")
    A(f"s_lshl_b32 s42, s{S_G}, 14")
    A(f"s_lshl_b32 s43, s{S_G}, 8")
    A(f"s_lshl_b32 s9, s8, 3")
    A(f"s_add_u32 s65, s9, {WS_F}")
    A(f"v_mov_b32 v{T+3}, s65")
    A(f"v_lshlrev_b32 v{T}, 2, v{vC}")
    A(f"v_cvt_f32_u32 v{T}, v{T}")
    A(f"s_mov_b32 s9, {F(TRIG_A)}")
    for j in range(4): A(f"v_mov_b32 v{W+j}, {F(TRIG_B + j * TRIG_A)}")
    for j in range(4): A(f"v_fma_f32 v{W+j}, v{T}, s9, v{W+j}")
    for j in range(4): A(f"v_exp_f32 v{W+j}, v{W+j}")
    A(f"s_lshl_b32 s9, s{S_SP}, 5")
    A(f"s_add_u32 s9, s9, s{S_QT}")
    A("s_lshl_b32 s9, s9, 5")
    trig("s9", 0, CK, SK, None)
    EARLY = opt.get("early_trig", 0)
    if EARLY:
        trig("s9", 16, CK + 4, SK + 4, None)
        A(f"s_lshl_b32 s9, s{S_QT}, 1")
        A(f"s_add_u32 s46, s9, s{S_SP}")
        A(f"s_xor_b32 s47, s46, 1")
        A("s_lshl_b32 s10, s47, 5")
        A("s_lshl_b32 s11, s46, 5")
        A(f"s_mov_b32 s94, {F(QSCALE)}")
        A(f"s_mov_b32 s95, {F(QSCALE)}")
        trig("s10", 0, CQ, SQ, 94); trig("s10", 16, CQ + 4, SQ + 4, 94)
        if EARLY > 1:
            trig("s11", 0, CQ + 8, SQ + 8, 94); trig("s11", 16, CQ + 12, SQ + 12, 94)
    A("s_waitcnt lgkmcnt(0)")
    g.stamp(1)
    add64(A, 22, 22, "s42")
    add64(A, 24, 24, "s43")
    add64(A, 26, 26, "s43")
    def kloads(it):
        vo = vK0 if it == 0 else vK1
        A(f"global_load_dwordx4 {vr(KD + 8*it, 4)}, v{vo}, s[22:23] {ldmod}")
        A(f"global_load_dwordx4 {vr(KD + 8*it + 4, 4)}, v{vo}, s[22:23] offset:256 {ldmod}")
        A(f"global_load_dwordx2 {vr(KSC + 2*it, 2)}, v{vKs}, s[24:25] offset:{it*128}")
        A(f"global_load_dwordx2 {vr(KZ + 2*it, 2)}, v{vKs}, s[26:27] offset:{it*128}")
    kloads(0); kloads(1)
    add64(A, 28, 28, "s42")
    add64(A, 30, 30, "s43")
    add64(A, 32, 32, "s43")
    for i in range(8):
        ro = (8 * (i >> 2) + (i & 3)) * 8
        A(f"global_load_dword v{VSC + i}, v{vVs}, s[30:31] offset:{ro}")
        A(f"global_load_dword v{VZ + i}, v{vVs}, s[32:33] offset:{ro}")
    for i in range(8):
        for dbl in range(2):
            off = (i >> 2) * 4096 + (i & 3) * 512 + dbl * 128 - 2048
            A(f"global_load_dword v{VD + 2*i + dbl}, v{vVd}, s[28:29] offset:{off} {ldmod}")
    QEARLY = opt.get("q_early", 0)
    QD = 72 if not QEARLY else 172
    def qloads():
        A(f"v_lshlrev_b32 v{vQd}, 8, v{vR0}")
        A(f"v_lshl_add_u32 v{vQd}, v{vC}, 3, v{vQd}")
        A(f"v_add_u32 v{vQd}, 2048, v{vQd}")
        A(f"s_lshl_b32 s9, s{S_QT}, 1")
        A(f"s_add_u32 s46, s9, s{S_SP}")
        A(f"s_xor_b32 s47, s46, 1")
        A(f"s_lshl_b32 s10, s{S_H}, 6")
        A("s_add_u32 s11, s10, s47")
        A("s_lshl_b32 s11, s11, 13")
        add64(A, 34, 20, "s11")
        A("s_add_u32 s11, s10, s46")
        A("s_lshl_b32 s11, s11, 13")
        add64(A, 20, 20, "s11")
        for X in range(2):
            base = "s[34:35]" if X == 0 else "s[20:21]"
            for it in range(2):
                r = QD + (X * 2 + it) * 4
                A(f"global_load_dwordx2 {vr(r, 2)}, v{vQd}, {base} offset:{it*4096 - 2048} {ldmod}")
                A(f"global_load_dwordx2 {vr(r + 2, 2)}, v{vQd}, {base} offset:{it*4096 - 2048 + 128} {ldmod}")
    if QEARLY == 1:
        A(f"s_lshl_b32 s95, s{S_SP}, 5")
        A(f"s_add_u32 s95, s95, s{S_QT}")
        A("s_lshl_b32 s95, s95, 5")
        qloads()
        A("s_mov_b32 s9, s95")
    A(f"global_load_dword v171, v{T+3}, s[38:39] sc1")
    A("s_or_b32 s10, s2, s3")
    A("s_cmp_lg_u32 s10, 0")
    A("s_cbranch_scc1 L_NONONCE")
    A("s_memrealtime s[10:11]")
    A(f"v_mov_b32 v{T+1}, 0")
    A("s_waitcnt lgkmcnt(0)")
    A("s_or_b32 s10, s10, 1")
    A(f"v_mov_b32 v{T+2}, s10")
    A("s_mov_b64 exec, 1")
    A(f"global_store_dword v{T+1}, v{T+2}, s[{S_DBG}:{S_DBG+1}] sc1")
    A("s_mov_b64 exec, -1")
    A.label("L_NONONCE")
    if opt.get("codepf"):
        A("s_getpc_b64 s[94:95]")
        A.label("L_PFBASE")
        A("s_lshr_b32 s10, s2, 3")
        A("s_lshl_b32 s10, s10, 2")
        A(f"s_add_u32 s10, s10, s{S_W}")
        A("s_lshl_b32 s10, s10, 7")
        A("s_min_u32 s10, s10, L_CODE_END - L_PFBASE - 4")
        A("s_add_u32 s94, s94, s10")
        A("s_addc_u32 s95, s95, 0")
        A("s_load_dword s96, s[94:95], 0")
    srd(A, S_WS, 38, WS_SIZE)
    A(f"v_lshlrev_b32 v{vX4}, 2, v0")
    A("s_lshl_b32 s44, s2, 13")
    A(f"s_lshl_b32 s10, s{S_W}, 11")
    A("s_add_u32 s44, s44, s10")
    A(f"s_add_u32 s44, s44, {WS_X}")
    A("s_lshl_b32 s45, s2, 10")
    A(f"s_lshl_b32 s10, s{S_W}, 8")
    A("s_add_u32 s45, s45, s10")
    A(f"s_add_u32 s45, s45, {WS_L}")
    NTAIL = 1 + (8 if QEARLY == 1 else 0)
    NV = 40 + NTAIL
    if not EARLY: trig("s9", 16, CK + 4, SK + 4, None)
    A(f"v_lshrrev_b32 v{T}, 1, v{vC}")
    A(f"v_lshlrev_b32 v{vKst}, 10, v{T}")
    A(f"v_and_b32 v{T+1}, 1, v{vC}")
    A(f"v_lshl_add_u32 v{vKst}, v{T+1}, 9, v{vKst}")
    A(f"v_lshl_add_u32 v{vKst}, v{vR0}, 4, v{vKst}")
    A(f"v_lshl_add_u32 v{T+1}, v{T+1}, 5, v{vR0}")
    A(f"v_and_b32 v{T+2}, 7, v{vC}")
    A(f"v_xor_b32 v{T+1}, v{T+1}, v{T+2}")
    A(f"v_lshlrev_b32 v{vQw}, 10, v{T}")
    A(f"v_lshl_add_u32 v{vQw}, v{T+1}, 4, v{vQw}")
    A(f"v_lshrrev_b32 v{vSel}, 3, v{vC}")
    A(f"v_lshlrev_b32 v{vSel}, 4, v{vSel}")
    A(f"v_sub_u32 v{vSel}, 16, v{vSel}")
    A(f"s_lshl_b32 s43, s{S_G}, 14")
    A(f"s_and_b32 s9, s{S_W}, 1")
    A("s_lshl_b32 s9, s9, 10")
    A(f"s_lshr_b32 s10, s{S_W}, 1")
    A("s_lshl_b32 s10, s10, 12")
    A("s_add_u32 s9, s9, s10")
    A("s_add_u32 s9, s9, s43")
    A("s_add_u32 s9, s9, 8192")
    nst = 0
    for it in range(2):
        A(f"s_waitcnt vmcnt({NV - 4 * (it + 1) + nst})")
        if it == 0: g.stamp(2)
        x = KD + 8 * it
        sc = T + 16
        for k, src in enumerate((KSC + 2*it, KSC + 2*it + 1, KZ + 2*it, KZ + 2*it + 1)):
            A(f"v_lshlrev_b32 v{sc+k}, v{vSel}, v{src}")
        for j in range(8): A(f"v_cvt_f32_i32 v{x+j}, v{x+j}")
        for k in range(4): A(f"v_and_b32 v{sc+k}, 0xffff0000, v{sc+k}")
        for j in range(0, 4, 2):
            A(f"v_pk_add_f32 {vr(x+j, 2)}, {vr(x+j, 2)}, {vr(sc+2, 2)} op_sel_hi:[1,0] neg_lo:[0,1] neg_hi:[0,1]")
            A(f"v_pk_add_f32 {vr(x+4+j, 2)}, {vr(x+4+j, 2)}, {vr(sc+2, 2)} op_sel:[0,1] op_sel_hi:[1,1] neg_lo:[0,1] neg_hi:[0,1]")
        for j in range(0, 4, 2):
            A(f"v_pk_mul_f32 {vr(x+j, 2)}, {vr(x+j, 2)}, {vr(sc, 2)} op_sel_hi:[1,0]")
            A(f"v_pk_mul_f32 {vr(x+4+j, 2)}, {vr(x+4+j, 2)}, {vr(sc, 2)} op_sel:[0,1] op_sel_hi:[1,1]")
        out = T + 20 + 4 * it
        rope(x, CK + 4*it, SK + 4*it, out)
        A(f"buffer_store_dwordx4 {vr(out, 4)}, v{vKst}, s[{S_WS}:{S_WS+3}], s43 offen offset:{it*256} {kvmod}")
        nst += 1
    if QEARLY == 2:
        A("s_mov_b32 s95, s9")
        qloads()
        A("s_mov_b32 s9, s95")
        nst += 8
    A(f"s_waitcnt vmcnt({16 + NTAIL + nst})")
    SP_, ZP_ = 72, 24
    for i in range(8):
        A(f"v_lshlrev_b32 v{SP_+2*i}, 16, v{VSC+i}")
        A(f"v_and_b32 v{SP_+2*i+1}, 0xffff0000, v{VSC+i}")
        A(f"v_lshlrev_b32 v{ZP_+2*i}, 16, v{VZ+i}")
        A(f"v_and_b32 v{ZP_+2*i+1}, 0xffff0000, v{VZ+i}")
    A(f"s_waitcnt vmcnt({NTAIL + nst})")
    g.stamp(3)
    NON = SENT + 1
    A(f"v_mov_b32 v{T+1}, 0")
    A(f"global_load_dword v{NON}, v{T+1}, s[{S_DBG}:{S_DBG+1}] sc1")
    for i in range(16): A(f"v_cvt_f32_i32 v{VD+i}, v{VD+i}")
    for i in range(8): A(f"v_pk_add_f32 {vr(VD+2*i, 2)}, {vr(VD+2*i, 2)}, {vr(ZP_+2*i, 2)} neg_lo:[0,1] neg_hi:[0,1]")
    for i in range(8): A(f"v_pk_mul_f32 {vr(VD+2*i, 2)}, {vr(VD+2*i, 2)}, {vr(SP_+2*i, 2)}")
    for dbl in range(2):
        O = T + 28 + 4 * dbl
        for k in range(4):
            A(f"v_cvt_pk_bf16_f32 v{O+k}, v{VD+(2*k)*2+dbl}, v{VD+(2*k+1)*2+dbl}")
        A(f"buffer_store_dwordx4 {vr(O, 4)}, v{V_LANE16}, s[{S_WS}:{S_WS+3}], s9 offen offset:{dbl*2048} {kvmod}")
    if not QEARLY: qloads()
    else:
        A(f"s_lshl_b32 s9, s{S_QT}, 1")
        A(f"s_add_u32 s46, s9, s{S_SP}")
        A(f"s_xor_b32 s47, s46, 1")
    A("s_lshl_b32 s10, s47, 5")
    A("s_lshl_b32 s11, s46, 5")
    A(f"s_mov_b32 s42, {F(QSCALE)}")
    A(f"s_mov_b32 s43, {F(QSCALE)}")
    if not EARLY:
        trig("s10", 0, CQ, SQ, 42); trig("s10", 16, CQ + 4, SQ + 4, 42)
    for j in range(4):
        A(f"s_add_u32 s9, s{S_W}, {j}")
        A("s_and_b32 s9, s9, 3")
        A("s_lshl_b32 s9, s9, 11")
        A("s_add_u32 s9, s9, 8192")
        A(f"v_add_u32 v{V_OFFV + j}, s9, v{V_LANE16}")
    A(f"s_lshl_b32 s9, s{S_W}, 3")
    A("s_add_u32 s8, s8, s9")
    A(f"s_lshl_b32 s{S_TILE}, s8, 14")
    A(f"s_add_u32 s{S_TILE+1}, s{S_TILE}, 4096")
    for t in range(1, 8):
        A(f"s_add_u32 s{S_TILE + 2*t}, s{S_TILE}, {t * 16384}")
        A(f"s_add_u32 s{S_TILE + 2*t + 1}, s{S_TILE}, {t * 16384 + 4096}")
    A(f"s_lshl_b32 s9, s{S_QT}, 2")
    A("s_add_u32 s9, s9, s65")
    A(f"v_mov_b32 v{T}, s9")
    A(f"s_lshl_b32 s9, s{S_W}, 5")
    A("s_add_u32 s9, s9, s65")
    A(f"v_lshl_add_u32 v{T+2}, v0, 2, s9")
    FL = SENT + 2
    def qcompute():
        for pc in range(4):
            X, it = pc >> 1, pc & 1
            r = QD + pc * 4
            x = 96 + 8 * (pc & 1)
            for hh in range(2):
                for k in range(2):
                    A(f"v_lshlrev_b32 v{x+4*hh+2*k}, 16, v{r+2*hh+k}")
                    A(f"v_and_b32 v{x+4*hh+2*k+1}, 0xffff0000, v{r+2*hh+k}")
            out = T + 20 + 4 * (pc & 1)
            rope(x, CQ + 4*pc, SQ + 4*pc, out)
            A(f"ds_write_b128 v{vQw}, {vr(out, 4)} offset:{X*8192 + it*256}")
    def qaddr():
        A(f"v_lshrrev_b32 v{T+3}, 5, v0")
        for k in range(4):
            A(f"v_add_u32 v{8+k}, {2*k}, v{T+3}")
            A(f"v_xor_b32 v{8+k}, v{8+k}, v0")
            A(f"v_lshlrev_b32 v{8+k}, 4, v{8+k}")
        A(f"v_mov_b32 v{V_LA}, 0")
        A(f"v_mov_b32 v{V_LB}, 0")
        if opt.get("pkadd"):
            for k in range(4): A(f"v_mov_b32 v{188 + k}, 0")
    def qreads():
        for ks in range(4):
            for X in range(2):
                A(f"ds_read_b128 {Qreg(X, ks)}, v{8 + (ks & 3)} offset:{(X * 8 + ks) * 1024}")
    def nonce_and_flag():
        A.label("L_NPOLL")
        A(f"v_readfirstlane_b32 s{S_XCC}, v{NON}")
        A("s_nop 1")
        A(f"s_sub_u32 s94, s{S_XCC}, s{S_T0}")
        A("s_add_u32 s94, s94, 300")
        A("s_cmp_lt_u32 s94, 2300")
        A(f"s_cselect_b32 s94, s{S_XCC}, 0")
        A("s_cmp_lg_u32 s94, 0")
        A("s_cbranch_scc1 L_NOK")
        A("s_add_u32 s10, s10, 1")
        A(f"s_cmp_ge_u32 s10, {opt.get('maxpoll0', 200)}")
        A("s_cbranch_scc1 L_NTIMEOUT")
        A(f"v_mov_b32 v{T+1}, 0")
        A(f"global_load_dword v{NON}, v{T+1}, s[{S_DBG}:{S_DBG+1}] sc1")
        A("s_waitcnt vmcnt(0)")
        A("s_branch L_NPOLL")
        A.label("L_NTIMEOUT")
        A(f"s_mov_b32 s{S_XCC}, 1")
        A("s_mov_b32 s9, 1")
        A.label("L_NOK")
        A(f"v_mov_b32 v{T+1}, s{S_XCC}")
        A("s_barrier")
        A("s_mov_b64 exec, 1")
        A(f"global_store_dword v{T}, v{T+1}, s[38:39]")
        A("s_mov_b64 exec, 0xff")
        A(f"global_load_dword v{FL}, v{T+2}, s[38:39] sc1")
        A("s_mov_b64 exec, -1")
        A("s_mov_b32 s65, s9")
    if QEARLY == 2:
        trig("s11", 0, CQ + 8, SQ + 8, 42); trig("s11", 16, CQ + 12, SQ + 12, 42)
        A("s_waitcnt vmcnt(3)")
        g.stamp(5)
        qcompute()
        qaddr()
        A("s_mov_b32 s10, 0")
        A("s_mov_b32 s9, 0")
        A("s_waitcnt vmcnt(0) lgkmcnt(0)")
        g.stamp(4)
        g.stamp_wait()
        nonce_and_flag()
        qreads()
    else:
        A("s_mov_b32 s10, 0")
        A("s_mov_b32 s9, 0")
        A(f"s_waitcnt vmcnt({0 if QEARLY else 8})")
        g.stamp(4)
        nonce_and_flag()
        if EARLY < 2:
            trig("s11", 0, CQ + 8, SQ + 8, 42); trig("s11", 16, CQ + 12, SQ + 12, 42)
        A("s_waitcnt vmcnt(2)")
        g.stamp(5)
        qcompute()
        qaddr()
        A("s_waitcnt lgkmcnt(0)")
        A("s_barrier")
        qreads()
    A("s_cmp_lg_u32 s65, 0")
    A("s_cbranch_scc1 L_WAVEFAIL")
    A("s_mov_b32 s10, 0")
    A("s_mov_b64 exec, 0xff")
    A.label("L_FPOLL")
    A("s_waitcnt vmcnt(0)")
    A(f"v_cmp_ne_u32 vcc, s{S_XCC}, v{FL}")
    A("s_cbranch_vccz L_FOK")
    A("s_add_u32 s10, s10, 1")
    A(f"s_cmp_ge_u32 s10, {opt.get('maxpoll1', 400)}")
    A("s_cbranch_scc1 L_WAVEFAIL")
    A(f"global_load_dword v{FL}, v{T+2}, s[38:39] sc1")
    A("s_branch L_FPOLL")
    A.label("L_FOK")
    A("s_mov_b64 exec, -1")
    g.stamp(6)
    if opt.get("stamp"): A(f"s_mov_b32 s{ST0 + 2*11}, s10")
    seq = stream()
    rmod = opt.get("ring_mod", "")
    DEPTH = opt.get("depth", 16)
    for p in range(DEPTH): A(ring_load(seq, p, rmod))
    SE = T + 4
    for j in range(4): A(f"v_mov_b32 v{SE + j}, -1")
    A(f"buffer_store_dwordx4 {vr(SE, 4)}, v{V_LANE16}, s[{S_WS}:{S_WS+3}], s44 offen sc1")
    A(f"buffer_store_dwordx4 {vr(SE, 4)}, v{V_LANE16}, s[{S_WS}:{S_WS+3}], s44 offen offset:1024 sc1")
    A(f"buffer_store_dword v{SE}, v{vX4}, s[{S_WS}:{S_WS+3}], s45 offen sc1")
    g.stamp(7)
    g.stamp_wait()

def gen_wavefail(g):
    A = g.A
    A.label("L_WAVEFAIL")
    A("s_mov_b64 exec, -1")
    A("s_waitcnt vmcnt(0) lgkmcnt(0)")
    A(f"v_lshlrev_b32 v19, 2, v0")
    for j in range(4): A(f"v_mov_b32 v{136 + j}, -1")
    A(f"buffer_store_dwordx4 v[136:139], v{V_LANE16}, s[{S_WS}:{S_WS+3}], s44 offen sc1")
    A(f"buffer_store_dwordx4 v[136:139], v{V_LANE16}, s[{S_WS}:{S_WS+3}], s44 offen offset:1024 sc1")
    A(f"buffer_store_dword v136, v19, s[{S_WS}:{S_WS+3}], s45 offen sc1")
    e = Epi(g)
    for l in e.address_setup(): A(l)
    A(f"v_mov_b32 v{V_LA}, 0x7fc00000")
    A(f"v_mov_b32 v{V_LB}, 0x7fc00000")
    for l in e.lwrite(0): A(l)
    A("s_waitcnt vmcnt(0)")
    A("s_branch L_EPI")

def gen_main(g):
    A, opt = g.A, g.opt
    if opt.get("align64"): A(".p2align 6")
    for _ in range(opt.get("prenop", 0)): A("s_nop 0")
    seq = stream()
    rmod = opt.get("ring_mod", "")
    pos_of = {(k, t, i): p for p, (k, t, i) in enumerate(seq)}
    ops = []
    def phase(kind, t, Xs=(0, 1)):
        if len(Xs) == 2:
            for i in range(8):
                for X in (0, 1): ops.append((kind, t, i, X))
        else:
            for i in range(8): ops.append((kind, t, i, Xs[0]))
    phase("K", 0)
    for t in range(6):
        phase("K", t + 1); phase("V", t)
    phase("K", 7)
    phase("V", 6, (0,)); phase("V", 7, (0,))
    iB = len(ops)
    phase("V", 6, (1,)); phase("V", 7, (1,))
    NG = len(ops); assert NG == 256
    first, last = {}, {}
    for n, (k, t, i, X) in enumerate(ops):
        p = pos_of[(k, t, i)]
        first.setdefault(p, n); last[p] = n
    lastS = {}
    for n, (k, t, i, X) in enumerate(ops):
        if k == "K": lastS[(t, X)] = n
    firstP = {}
    for n, (k, t, i, X) in enumerate(ops):
        if k == "V": firstP.setdefault((t, X, i >> 2), n)
    tasks = []
    for t in range(8):
        if t < 7:
            order = [(0, 0), (1, 0), (0, 1), (1, 1)]
        else:
            order = [(0, 0), (0, 1), (1, 0), (1, 1)]
        if t == 6: order = [(0, 0), (0, 1), (1, 0), (1, 1)]
        for X, half in order:
            for j in range(8 * half, 8 * half + 8): tasks.append((t, X, j))
    def avail(t, X):
        lag = opt.get("lag0", 5) if t == 0 else opt.get("lag", 3)
        return lastS[(t, X)] + lag + (0 if X == 1 else 1)
    def deadline(t, X, j): return firstP[(t, X, j >> 3)]
    plan = [[] for _ in range(NG)]
    MARG = 3
    CAP = opt.get("cap", 2)
    LS = [0] * len(tasks); cnt = {}; nxt = 10 ** 9
    for k in range(len(tasks) - 1, -1, -1):
        t, X, j = tasks[k]
        gg = min(deadline(t, X, j) - MARG, nxt)
        while cnt.get(gg, 0) >= CAP: gg -= 1
        cnt[gg] = cnt.get(gg, 0) + 1
        LS[k] = gg; nxt = gg
    done = 0
    for gg in range(NG):
        n = 0
        while done < len(tasks) and avail(tasks[done][0], tasks[done][1]) <= gg and (n < 1 or LS[done] <= gg):
            plan[gg].append(tasks[done]); done += 1; n += 1
        if done < len(tasks): assert LS[done] > gg, ("deadline miss", gg, tasks[done], LS[done])
    assert done == len(tasks)
    if opt.get("show_plan"):
        print("elements per gap:", "".join(str(len(x)) for x in plan), file=sys.stderr)
    st = dict(add=[], cvt=[])
    E64 = "_e64" if opt.get("e64") else ""
    def fillers(gg):
        out = []
        adds, cvts = st["add"], st["cvt"]
        st["add"], st["cvt"] = [], []
        exps = []
        PKA = opt.get("pkadd", 0)
        for (t, X, j) in plan[gg]:
            s = Sreg(t & 1, X) + j
            exps.append(f"v_exp_f32{E64} v{s}, v{s}")
            if not PKA or (j & 1): st["add"].append((t, X, j))
            if j & 1: st["cvt"].append((t, X, j))
        rest = []
        for (t, X, j) in adds:
            if PKA:
                sp = Sreg(t & 1, X) + j - 1
                rest.append(f"v_pk_add_f32 {vr(188 + 2 * X, 2)}, {vr(188 + 2 * X, 2)}, {vr(sp, 2)}")
            else:
                rest.append(f"v_add_f32{E64} v{V_LA + X}, v{V_LA + X}, v{Sreg(t & 1, X) + j}")
        for (t, X, j) in cvts:
            s = Sreg(t & 1, X) + j
            rest.append(f"v_cvt_pk_bf16_f32 v{Preg(t & 1, X) + (j >> 1)}, v{s - 1}, v{s}")
        while exps or rest:
            if exps: out.append(exps.pop(0))
            if rest: out.append(rest.pop(0))
            if rest and not exps: out += rest; rest = []
        return out
    extra = {n: [] for n in range(NG)}
    epi = Epi(g)
    pre = epi.address_setup()
    for k, ins in enumerate(pre):
        extra[200 + k // 2].append(ins)
    wa = epi.lwrite(0) + epi.owrite(0)
    if opt.get("pkadd"): wa = [f"v_add_f32 v{V_LA}, v188, v189"] + wa
    lastA_add = max(n for n in range(NG) for (t, X, j) in plan[n] if X == 0) + 1
    startA = max(iB + 1, lastA_add + 1)
    TAIL2 = opt.get("tail2", 0)
    if not TAIL2:
        startA = max(iB + 2, lastA_add + 1)
        for k, ins in enumerate(wa):
            extra[min(NG - 4, startA + k)].append(ins)
    else:
        for k, ins in enumerate(wa):
            extra[startA + (k + 1) // 2].append(ins)
        gb = opt.get("tail_bar", 250)
        extra[gb].append("s_waitcnt lgkmcnt(0)")
        extra[gb].append("s_barrier")
        rd = epi.oread(0)
        per = -(-len(rd) // (NG - gb))
        for k, ins in enumerate(rd):
            extra[gb + k // per].append(ins)
    DEPTH = opt.get("depth", 16)
    issued = DEPTH
    def younger(p):
        return (issued - 1 - p) + (3 if p < DEPTH else 0)
    for n, (k, t, i, X) in enumerate(ops):
        p = pos_of[(k, t, i)]
        if n in (0, 16, 32, 128, 240): A.c(f"---- mfma {n}: {k}{t} i{i} X{X}")
        if opt.get("stamp") and opt.get("loopstamp") and n in (32, 64, 96, 128, 160, 192, 224):
            g.stamp(n // 32)
        if first[p] == n:
            w = f"s_waitcnt vmcnt({younger(p)})"
            if k == "K" and t == 0:
                nq = min(7, i + 3) - i
                w += f" lgkmcnt({2 * nq})"
            A(w)
            if opt.get("e64"): A("s_nop 0")
        frag = ring(p)
        if k == "K":
            S = vr(Sreg(t & 1, X), 16)
            C = "0" if i == 0 else S
            A(f"v_mfma_f32_32x32x16_bf16 {S}, {frag}, {Qreg(X, i)}, {C}")
        else:
            j, ks = i & 3, i >> 2
            O = Oreg(X, j)
            C = "0" if (t == 0 and ks == 0) else O
            A(f"v_mfma_f32_32x32x16_bf16 {O}, {frag}, {vr(Preg(t & 1, X) + 4 * ks, 4)}, {C}")
        fl = fillers(n)
        bal = opt.get("bal", 1)
        if bal == 0 or DEPTH + 1 > RINGSZ - 8:
            do_load = last[p] == n and issued < 128 and p + DEPTH == issued
        else:
            do_load = first[p] == n and issued < 128 and p + DEPTH == issued
            if do_load: assert last.get(issued - RINGSZ, -1) < n
        if do_load:
            fl.insert(min(opt.get("ldpos", 0), len(fl)), ring_load(seq, issued, rmod)); issued += 1
        if k == "K" and t == 0 and X == 1 and i + 4 <= 7:
            for XX in range(2):
                fl.append(f"ds_read_b128 {Qreg(XX, i + 4)}, v{8 + ((i + 4) & 3)} offset:{(XX * 8 + i + 4) * 1024}")
        fl += extra[n]
        for l in fl: A(l)
    assert issued == 128
    assert not st["cvt"]
    for (t, X, j) in st["add"]:
        if opt.get("pkadd"):
            A(f"v_pk_add_f32 {vr(188 + 2 * X, 2)}, {vr(188 + 2 * X, 2)}, {vr(Sreg(t & 1, X) + j - 1, 2)}")
        else:
            A(f"v_add_f32 v{V_LA + X}, v{V_LA + X}, v{Sreg(t & 1, X) + j}")
    if opt.get("pkadd"): A(f"v_add_f32 v{V_LB}, v190, v191")
    epi.finish()

class Epi:
    vWr = [None, 8, 9, 10]; vRd = 11; vLw = 12; vLr = 13; vX = 14
    TA = V_S
    TL = 64
    PK = 72
    RX = 80
    def __init__(self, g): self.g = g; self.A = g.A; self.opt = g.opt
    def address_setup(self):
        L = []
        for j in range(1, 4):
            L += [f"s_add_u32 s9, s{S_W}, {j}", "s_and_b32 s9, s9, 3", "s_mul_i32 s9, s9, 12288",
                  f"s_add_u32 s9, s9, {RED_A + (j - 1) * 4096}", f"v_add_u32 v{self.vWr[j]}, s9, v{V_LANE16}"]
        L += [f"s_mul_i32 s9, s{S_W}, 12288", f"s_add_u32 s9, s9, {RED_A}", f"v_add_u32 v{self.vRd}, s9, v{V_LANE16}"]
        L += ["v_and_b32 v15, 31, v0", f"v_lshlrev_b32 v{self.vLr}, 5, v15", f"v_add_u32 v{self.vLr}, {LRED}, v{self.vLr}",
              "v_lshrrev_b32 v15, 5, v0", f"v_lshl_add_u32 v{self.vLw}, v15, 2, v{self.vLr}",
              f"s_lshl_b32 s9, s{S_W}, 3", f"v_add_u32 v{self.vLw}, s9, v{self.vLw}",
              f"v_lshlrev_b32 v{self.vX}, 2, v0"]
        L += ["s_xor_b32 s46, s44, 8192", "s_xor_b32 s47, s45, 1024"]
        L += [f"s_lshl_b32 s9, s{S_H}, 6", f"s_lshl_b32 s10, s{S_QT}, 1", "s_add_u32 s9, s9, s10", f"s_add_u32 s9, s9, s{S_SP}",
              "s_lshl_b32 s9, s9, 13", f"s_lshl_b32 s10, s{S_W}, 6", "s_add_u32 s42, s9, s10",
              "v_and_b32 v15, 31, v0", "v_lshlrev_b32 v15, 8, v15"]
        L += [f"s_mov_b32 s{S_OUT}, s{S_OUTP}", f"s_and_b32 s{S_OUT+1}, s{S_OUTP+1}, 0xffff", f"s_mov_b32 s{S_OUT+2}, {2 << 20}", f"s_mov_b32 s{S_OUT+3}, 0x20000"]
        return L
    def lwrite(self, X):
        return [f"ds_write_b32 v{self.vLw}, v{V_LA + X} offset:{X * 1024}"]
    def owrite(self, X):
        L = []
        for j in range(1, 4):
            for qd in range(4):
                a = A_O + X * 48 + (j - 1) * 16 + qd * 4
                L.append(f"ds_write_b128 v{self.vWr[j]}, {ar(a, 4)} offset:{X * RED_BOFF + qd * 1024}")
        return L
    def oread(self, X):
        L = [f"ds_read_b128 {vr(self.TL, 4)}, v{self.vLr} offset:{X * 1024}",
             f"ds_read_b128 {vr(self.TL + 4, 4)}, v{self.vLr} offset:{X * 1024 + 16}"]
        for j in range(1, 4):
            for qd in range(4):
                L.append(f"ds_read_b128 {vr(self.TA + (j - 1) * 16 + qd * 4, 4)}, v{self.vRd} offset:{X * RED_BOFF + (j - 1) * 4096 + qd * 1024}")
        return L
    def sums(self, X):
        A = self.A; TL = self.TL; O = V_O0 + 16 * X
        A(f"v_add_f32 v{TL}, v{TL}, v{TL + 1}")
        A(f"v_add_f32 v{TL + 2}, v{TL + 2}, v{TL + 3}")
        A(f"v_add_f32 v{TL + 4}, v{TL + 4}, v{TL + 5}")
        A(f"v_add_f32 v{TL + 6}, v{TL + 6}, v{TL + 7}")
        A(f"v_add_f32 v{TL}, v{TL}, v{TL + 2}")
        A(f"v_add_f32 v{TL + 4}, v{TL + 4}, v{TL + 6}")
        A(f"v_add_f32 v{V_LA + X}, v{TL}, v{TL + 4}")
        for j in range(3):
            for r in range(0, 16, 2):
                A(f"v_pk_add_f32 {vr(O + r, 2)}, {vr(O + r, 2)}, {vr(self.TA + j * 16 + r, 2)}")
    def finish(self):
        g, A, opt = self.g, self.A, self.opt
        PK, RX = self.PK, self.RX
        A.c("==== epilogue")
        A.label("L_EPI")
        g.stamp(8)
        ws = f"s[{S_WS}:{S_WS+3}]"
        es = opt.get("epistamp")
        if not opt.get("tail2"):
            A("s_waitcnt lgkmcnt(0)")
            if es: g.stamp(1)
            A("s_barrier")
            if es: g.stamp(2); g.stamp_wait()
            for l in self.oread(0): A(l)
            for l in self.lwrite(1): A(l)
            A("s_waitcnt lgkmcnt(1)")
        else:
            for l in self.lwrite(1): A(l)
            A("s_waitcnt lgkmcnt(1)")
        if es: g.stamp(3)
        self.sums(0)
        for k in range(8):
            A(f"v_cvt_pk_bf16_f32 v{PK + k}, v{V_O0 + 2 * k}, v{V_O0 + 2 * k + 1}")
        omod = opt.get("xchg_mod", "sc1")
        A(f"buffer_store_dwordx4 {vr(PK, 4)}, v{V_LANE16}, {ws}, s46 offen {omod}")
        A(f"buffer_store_dwordx4 {vr(PK + 4, 4)}, v{V_LANE16}, {ws}, s46 offen offset:1024 {omod}")
        A(f"buffer_store_dword v{V_LA}, v{self.vX}, {ws}, s47 offen {omod}")
        g.stamp(9)
        def poll(R=RX):
            pm = opt.get("poll_mod", "sc1")
            A(f"buffer_load_dwordx4 {vr(R, 4)}, v{V_LANE16}, {ws}, s44 offen {pm}")
            A(f"buffer_load_dwordx4 {vr(R + 4, 4)}, v{V_LANE16}, {ws}, s44 offen offset:1024 {pm}")
            A(f"buffer_load_dword v{R + 8}, v{self.vX}, {ws}, s45 offen {pm}")
        def test(R=RX):
            A(f"v_max3_u32 v90, v{R}, v{R + 1}, v{R + 2}")
            A(f"v_max3_u32 v91, v{R + 3}, v{R + 4}, v{R + 5}")
            A(f"v_max3_u32 v92, v{R + 6}, v{R + 7}, v{R + 8}")
            A("v_max3_u32 v90, v90, v91, v92")
            A("v_cmp_eq_u32 vcc, -1, v90")
        RX2 = 100
        dbl = opt.get("dblpoll", 0)
        if dbl == 1: poll()
        pp = opt.get("pollpos", 12)
        for k, l in enumerate(self.owrite(1)):
            if k == pp: poll(RX)
            A(l)
        if pp >= 12: poll(RX2 if dbl == 1 else RX)
        if es: g.stamp(4)
        A("s_waitcnt lgkmcnt(0)")
        if es: g.stamp(5)
        A("s_barrier")
        if es: g.stamp(6); g.stamp_wait()
        for l in self.oread(1): A(l)
        A("s_mov_b32 s10, 0")
        if dbl == 2:
            A("s_waitcnt lgkmcnt(7)")
            poll(RX2)
        A("s_waitcnt lgkmcnt(0)")
        self.sums(1)
        if es: g.stamp(7)
        if dbl:
            A("s_waitcnt vmcnt(3)")
            test(RX)
            A("s_nop 1")
            A("s_cbranch_vccz L_GOT")
            A("s_waitcnt vmcnt(0)")
            for k in range(9): A(f"v_mov_b32 v{RX + k}, v{RX2 + k}")
            A("s_branch L_POLLT")
        else:
            A("s_branch L_POLLW")
        A.label("L_POLL")
        poll()
        A.label("L_POLLW")
        A("s_waitcnt vmcnt(0)")
        A.label("L_POLLT")
        test(RX)
        A("s_add_u32 s10, s10, 1")
        A(f"s_cmp_ge_u32 s10, {opt.get('maxpoll2', 200)}")
        A("s_cbranch_scc1 L_FALLBACK")
        A("s_cbranch_vccnz L_POLL")
        A.label("L_GOT")
        g.stamp(10)
        if opt.get("stamp"): A(f"s_mov_b32 s{ST0 + 2*11 + 1}, s10")
        O = V_O0 + 16
        A(f"v_add_f32 v{V_LB}, v{V_LB}, v{RX + 8}")
        for k in range(8):
            A(f"v_lshlrev_b32 v{16 + 2 * k}, 16, v{RX + k}")
            A(f"v_and_b32 v{17 + 2 * k}, 0xffff0000, v{RX + k}")
        A(f"v_rcp_f32 v32, v{V_LB}")
        for r in range(0, 16, 2):
            A(f"v_pk_add_f32 {vr(O + r, 2)}, {vr(O + r, 2)}, {vr(16 + r, 2)}")
        A("v_pk_mul_f32 v[34:35], v[%d:%d], 0" % (O, O + 1))
        for r in range(2, 16, 2):
            A(f"v_pk_fma_f32 v[34:35], {vr(O + r, 2)}, 0, v[34:35]")
        A(f"s_mov_b32 s9, {F(2.0 ** -30)}")
        A(f"s_mov_b32 s10, {F(2.0 ** 30)}")
        A(f"v_cmp_le_f32 s[46:47], s9, v{V_LB}")
        A(f"v_cmp_ge_f32 s[8:9], s10, v{V_LB}")
        A("v_cmp_o_f32 vcc, v34, v35")
        A("v_mov_b32 v33, v32")
        A("s_and_b64 s[46:47], s[46:47], s[8:9]")
        A("s_and_b64 s[46:47], s[46:47], vcc")
        A("s_cmp_eq_u64 s[46:47], exec")
        A("s_cbranch_scc0 L_FALLBACK")
        for r in range(0, 16, 2):
            A(f"v_pk_mul_f32 {vr(O + r, 2)}, {vr(O + r, 2)}, v[32:33]")
        A.label("L_STORE")
        for k in range(8):
            A(f"v_cvt_pk_bf16_f32 v{PK + k}, v{O + 2 * k}, v{O + 2 * k + 1}")
        A("v_lshrrev_b32 v37, 5, v0")
        A("v_lshl_add_u32 v36, v37, 5, v15")
        om = opt.get("out_mod", "nt")
        A(f"buffer_store_dwordx4 {vr(PK, 4)}, v36, s[{S_OUT}:{S_OUT+3}], s42 offen {om}")
        A(f"buffer_store_dwordx4 {vr(PK + 4, 4)}, v36, s[{S_OUT}:{S_OUT+3}], s42 offen offset:16 {om}")
        if opt.get("stamp"):
            A("s_waitcnt vmcnt(0)")
            g.stamp(12)
            A("s_waitcnt lgkmcnt(0)")
            if opt.get("dbgstamp"):
                A("s_mov_b64 exec, 1")
                A("v_mov_b32 v174, 0")
                A(f"s_not_b32 s98, s{ST0}")
                A("v_mov_b32 v175, s98")
                A(f"global_atomic_umax v174, v175, s[{S_DBG}:{S_DBG+1}] offset:4 sc1")
                for k, idx in enumerate((1, 2, 3, 4, 6, 7, 8, 9, 10, 12)):
                    A(f"v_mov_b32 v175, s{ST0 + 2 * idx}")
                    A(f"global_atomic_umax v174, v175, s[{S_DBG}:{S_DBG+1}] offset:{8 + 4 * k} sc1")
                A("s_endpgm")
            A("s_lshl_b32 s98, s2, 2")
            A(f"s_add_u32 s98, s98, s{S_W}")
            A("s_lshl_b32 s98, s98, 7")
            A(f"s_add_u32 s98, s98, {WS_STAMP}")
            A("v_mov_b32 v174, s98")
            A("s_mov_b64 exec, 1")
            for i in range(13):
                A(f"v_mov_b32 v175, s{ST0 + 2 * i}")
                A(f"global_store_dword v174, v175, s[38:39] offset:{4 * i}")
            A(f"v_mov_b32 v175, s{ST0 + 2*11 + 1}")
            A(f"global_store_dword v174, v175, s[38:39] offset:{4 * 13}")
        A.label("L_END")
        A("s_endpgm")

def gen_fallback(g):
    A, opt = g.A, g.opt
    S = 16; P = 32; XL = 40; KS = 48; KZ = 50; CS = 52; SN = 56; U = 60; KF = 68; QF = 72; WV = 76
    VX = 80; VS = 88; VZ = 96; VF = 104
    M, L, T0, T1, POS, vM, vH, vA = 108, 109, 110, 111, 144, 145, 146, 147
    vKo, vSo, vVo, vVso = 148, 149, 150, 151
    O = V_O0 + 16
    A.label("L_FALLBACK")
    A("s_waitcnt vmcnt(0) lgkmcnt(0)")
    A(f"s_load_dwordx16 s[{S_ARG}:{S_ARG+15}], s[0:1], 0")
    A(f"v_and_b32 v{vM}, 31, v0")
    A(f"v_lshrrev_b32 v{vH}, 5, v0")
    A(f"v_lshlrev_b32 v{vKo}, 9, v{vM}")
    A(f"v_lshl_add_u32 v{vKo}, v{vH}, 4, v{vKo}")
    A(f"v_lshlrev_b32 v{vSo}, 3, v{vM}")
    A(f"v_bfe_u32 v{T0}, v{vM}, 2, 1")
    A(f"v_lshlrev_b32 v{T0}, 4, v{T0}")
    A(f"v_lshrrev_b32 v{T1}, 3, v{vM}")
    A(f"v_lshl_add_u32 v{T0}, v{T1}, 2, v{T0}")
    A(f"v_and_b32 v{T1}, 3, v{vM}")
    A(f"v_add_u32 v{T0}, v{T0}, v{T1}")
    A(f"s_lshl_b32 s9, s{S_W}, 5")
    A(f"v_add_u32 v{T0}, s9, v{T0}")
    A(f"v_lshlrev_b32 v{T0}, 2, v{T0}")
    A(f"v_lshl_add_u32 v{vVo}, v{vH}, 11, v{T0}")
    A(f"s_lshl_b32 s9, s{S_W}, 1")
    A(f"v_lshlrev_b32 v{vVso}, 5, v{vH}")
    A(f"v_add_u32 v{vVso}, s9, v{vVso}")
    A(f"v_mov_b32 v{M}, 0xff800000")
    A(f"v_mov_b32 v{L}, 0")
    for r in range(16): A(f"v_mov_b32 v{O + r}, 0")
    A("s_waitcnt lgkmcnt(0)")
    A(f"s_lshl_b32 s8, s{S_H}, 20")
    A(f"s_lshl_b32 s9, s{S_H}, 14")
    add64(A, 22, 22, "s8"); add64(A, 28, 28, "s8")
    add64(A, 24, 24, "s9"); add64(A, 26, 26, "s9"); add64(A, 30, 30, "s9"); add64(A, 32, 32, "s9")
    A("s_mov_b32 s48, 0")
    A.label("L_FB_TILE")
    A(f"global_load_dwordx2 {vr(KS, 2)}, v{vSo}, s[24:25]")
    A(f"global_load_dwordx2 {vr(KZ, 2)}, v{vSo}, s[26:27]")
    A("s_lshl_b32 s49, s48, 5")
    A(f"v_add_u32 v{POS}, s49, v{vM}")
    A(f"v_cvt_f32_u32 v{POS}, v{POS}")
    for r in range(16): A(f"v_mov_b32 v{S + r}, 0")
    A("s_mov_b32 s50, 0")
    A.label("L_FB_KS")
    A("s_lshl_b32 s51, s50, 5")
    A(f"v_add_u32 v{vA}, s51, v{vKo}")
    A(f"global_load_dwordx4 {vr(XL, 4)}, v{vA}, s[22:23]")
    A(f"global_load_dwordx4 {vr(XL + 4, 4)}, v{vA}, s[22:23] offset:256")
    A("s_and_b32 s51, s50, 3")
    A("s_lshl_b32 s51, s51, 1")
    A(f"v_add_u32 v{vA}, s51, v{vH}")
    A(f"v_xor_b32 v{vA}, v{vA}, v0")
    A(f"v_lshlrev_b32 v{vA}, 4, v{vA}")
    A("s_lshl_b32 s51, s50, 10")
    A("s_add_u32 s51, s51, 8192")
    A(f"v_add_u32 v{vA}, s51, v{vA}")
    A(f"ds_read_b128 {vr(QF, 4)}, v{vA}")
    A("s_lshl_b32 s51, s50, 1")
    A(f"v_add_u32 v{T0}, s51, v{vH}")
    A(f"v_lshlrev_b32 v{T0}, 2, v{T0}")
    A(f"v_cvt_f32_u32 v{T0}, v{T0}")
    A(f"s_mov_b32 s51, {F(TRIG_A)}")
    for j in range(4): A(f"v_mov_b32 v{WV + j}, {F(TRIG_B + j * TRIG_A)}")
    for j in range(4): A(f"v_fma_f32 v{WV + j}, v{T0}, s51, v{WV + j}")
    for j in range(4): A(f"v_exp_f32 v{WV + j}, v{WV + j}")
    A("s_nop 0")
    for j in range(4): A(f"v_mul_f32 v{WV + j}, v{POS}, v{WV + j}")
    for j in range(4): A(f"v_fract_f32 v{WV + j}, v{WV + j}")
    for j in range(4):
        A(f"v_cos_f32 v{CS + j}, v{WV + j}")
        A(f"v_sin_f32 v{SN + j}, v{WV + j}")
    A("s_cmp_lt_u32 s50, 4")
    A("s_cselect_b32 s51, 16, 0")
    A("s_waitcnt vmcnt(0) lgkmcnt(0)")
    for k, src in enumerate((KS, KS + 1, KZ, KZ + 1)):
        A(f"v_lshlrev_b32 v{U + k}, s51, v{src}")
    for k in range(4): A(f"v_and_b32 v{WV + k}, 0xffff0000, v{U + k}")
    for j in range(8): A(f"v_cvt_f32_i32 v{XL + j}, v{XL + j}")
    for j in range(8): A(f"v_sub_f32 v{XL + j}, v{XL + j}, v{WV + 2 + (j >> 2)}")
    for j in range(8): A(f"v_mul_f32 v{XL + j}, v{XL + j}, v{WV + (j >> 2)}")
    for j in range(4):
        A(f"v_mul_f32 v{U + j}, v{XL + 4 + j}, v{SN + j}")
        A(f"v_mul_f32 v{U + 4 + j}, v{XL + j}, v{SN + j}")
    for j in range(4):
        A(f"v_fma_f32 v{U + j}, v{XL + j}, v{CS + j}, -v{U + j}")
        A(f"v_fma_f32 v{U + 4 + j}, v{XL + 4 + j}, v{CS + j}, v{U + 4 + j}")
    for k in range(4): A(f"v_cvt_pk_bf16_f32 v{KF + k}, v{U + 2 * k}, v{U + 2 * k + 1}")
    A("s_nop 1")
    A(f"v_mfma_f32_32x32x16_bf16 {vr(S, 16)}, {vr(KF, 4)}, {vr(QF, 4)}, {vr(S, 16)}")
    A("s_nop 15")
    A("s_add_u32 s50, s50, 1")
    A("s_cmp_lt_u32 s50, 8")
    A("s_cbranch_scc1 L_FB_KS")
    A(f"v_max3_f32 v{T0}, v{S}, v{S + 1}, v{S + 2}")
    for r in range(3, 15, 2): A(f"v_max3_f32 v{T0}, v{T0}, v{S + r}, v{S + r + 1}")
    A(f"v_max_f32 v{T0}, v{T0}, v{S + 15}")
    A(f"v_mov_b32 v{T1}, v{T0}")
    A("s_nop 1")
    A(f"v_permlane32_swap_b32 v{T0}, v{T1}")
    A("s_nop 1")
    A(f"v_max3_f32 v{T0}, v{T0}, v{T1}, v{M}")
    A(f"v_sub_f32 v{T1}, v{M}, v{T0}")
    A(f"v_exp_f32 v{T1}, v{T1}")
    A(f"v_mov_b32 v{M}, v{T0}")
    for r in range(16): A(f"v_sub_f32 v{S + r}, v{S + r}, v{T0}")
    for r in range(16): A(f"v_exp_f32 v{S + r}, v{S + r}")
    A(f"v_mul_f32 v{L}, v{L}, v{T1}")
    for r in range(16): A(f"v_mul_f32 v{O + r}, v{O + r}, v{T1}")
    for r in range(16): A(f"v_add_f32 v{L}, v{L}, v{S + r}")
    for k in range(8): A(f"v_cvt_pk_bf16_f32 v{P + k}, v{S + 2 * k}, v{S + 2 * k + 1}")
    for kst in range(2):
        A(f"v_add_u32 v{vA}, {kst * 8192}, v{vVo}")
        A(f"v_add_u32 v{T0}, {kst * 8192 + 4096}, v{vVo}")
        for i in range(8):
            A(f"global_load_dword v{VX + i}, v{vA if i < 4 else T0}, s[28:29] offset:{(i & 3) * 512}")
        for i in range(8):
            ro = (16 * kst + 8 * (i >> 2) + (i & 3)) * 8
            A(f"global_load_ushort v{VS + i}, v{vVso}, s[30:31] offset:{ro}")
            A(f"global_load_ushort v{VZ + i}, v{vVso}, s[32:33] offset:{ro}")
        A("s_waitcnt vmcnt(0)")
        for i in range(8):
            A(f"v_cvt_f32_i32 v{VX + i}, v{VX + i}")
            A(f"v_lshlrev_b32 v{VS + i}, 16, v{VS + i}")
            A(f"v_lshlrev_b32 v{VZ + i}, 16, v{VZ + i}")
        for i in range(8): A(f"v_sub_f32 v{VX + i}, v{VX + i}, v{VZ + i}")
        for i in range(8): A(f"v_mul_f32 v{VX + i}, v{VX + i}, v{VS + i}")
        for k in range(4): A(f"v_cvt_pk_bf16_f32 v{VF + k}, v{VX + 2 * k}, v{VX + 2 * k + 1}")
        A("s_nop 1")
        A(f"v_mfma_f32_32x32x16_bf16 {vr(O, 16)}, {vr(VF, 4)}, {vr(P + 4 * kst, 4)}, {vr(O, 16)}")
        A("s_nop 15")
    add64(A, 22, 22, 16384); add64(A, 28, 28, 16384)
    add64(A, 24, 24, 256); add64(A, 26, 26, 256); add64(A, 30, 30, 256); add64(A, 32, 32, 256)
    A("s_add_u32 s48, s48, 1")
    A("s_cmp_lt_u32 s48, 64")
    A("s_cbranch_scc1 L_FB_TILE")
    A(f"v_mov_b32 v{T1}, v{L}")
    A("s_nop 1")
    A(f"v_permlane32_swap_b32 v{L}, v{T1}")
    A("s_nop 1")
    A(f"v_add_f32 v{L}, v{L}, v{T1}")
    A(f"v_rcp_f32 v{L}, v{L}")
    A("s_nop 0")
    for r in range(16): A(f"v_mul_f32 v{O + r}, v{O + r}, v{L}")
    A("s_branch L_STORE")

def kd(A, name, vgpr, sgpr, accum):
    A(f".amdhsa_kernel {name}")
    A(f"  .amdhsa_next_free_vgpr {vgpr}")
    A(f"  .amdhsa_next_free_sgpr {sgpr}")
    A(f"  .amdhsa_accum_offset {accum}")
    A("  .amdhsa_group_segment_fixed_size 0")
    A("  .amdhsa_kernarg_size 112")
    A("  .amdhsa_user_sgpr_count 2")
    A("  .amdhsa_user_sgpr_kernarg_segment_ptr 1")
    A("  .amdhsa_system_sgpr_workgroup_id_x 1")
    A(".end_amdhsa_kernel")

HEADER = open("cdna_kernels/" + NAME + ".s.ref").read().split("; Override launch geometry")[0]

def generate(opt):
    g = G(opt); A = g.A
    A(HEADER.rstrip("\n"))
    A(f"; @launch grid=(256,1,1) block=(256,1,1) lds={LDS_BYTES}")
    A('.amdgcn_target "amdgcn-amd-amdhsa--gfx950"')
    A(".text")
    A(f".globl {KNAME}\n.p2align 8\n.type {KNAME},@function")
    A.label(KNAME)
    n0 = len(A.lines)
    gen_prologue(g)
    if opt.get("force_fallback"): A("s_branch L_WAVEFAIL")
    gen_main(g)
    n1 = len(A.lines)
    gen_wavefail(g)
    gen_fallback(g)
    A.label("L_CODE_END")
    A("s_endpgm")
    n2 = len(A.lines)
    A('.section .rodata,"a"\n.p2align 6')
    kd(A, KNAME, NVGPR_ARCH + 256, 102 if opt.get("stamp") else 98, NVGPR_ARCH)
    L = A.lines
    errs = check(L[n0:n1], "main") + check(L[n1:n2], "fallback")
    return A.text(), errs

if __name__ == "__main__":
    opt = {}
    for a in sys.argv[2:]:
        k, v = a.split("=")
        try: v = int(v)
        except ValueError: pass
        opt[k] = v
    txt, errs = generate(opt)
    out = sys.argv[1]
    open(out, "w").write(txt)
    print("wrote", out, len(txt), "bytes;", len(errs), "check problems")
```

```python
import sys, math, struct
from asmlib import Asm, vr, ar, sr, check

NAME = "standalone__kv_cache_quant_pre_rope_vs_post_rope__prompt"
KNAME = NAME + "_kernel"

WS_KV = 0
WS_X  = 4 << 20
WS_L  = 6 << 20
WS_F  = 7 << 20
WS_SIZE = 8 << 20
WS_STAMP = 12 << 20

def f32bits(x): return struct.unpack("<I", struct.pack("<f", x))[0]
def F(x): return f"0x{f32bits(x):08x}"
QSCALE = math.log2(math.e) / math.sqrt(128.0)
TRIG_A = -math.log2(10000.0) / 64.0
TRIG_B = -math.log2(2 * math.pi)

LDS_Q = 0
RED_A = 16384
RED_BOFF = 49152
LRED = 114688
LFAIL = 116736
LDS_BYTES = 116736 + 64

S_W, S_H, S_SP, S_QT, S_G = 3, 4, 5, 6, 7
S_WS = 12
S_OUT = 16
S_ARG = 20
S_DBG = 36
S_OUTP = 40
S_TILE = 48
S_XCC = 64
S_T0 = 92
ST0 = 66

V_LANE16 = 1
V_OFFV = 2
V_LA, V_LB = 6, 7
V_S = 16
V_P = 80
V_O0 = 112
V_RING = 144
A_O = 0
A_Q = 96
A_RING = 160
NVGPR_ARCH = 192

def Sreg(par, X): return V_S + (par * 2 + X) * 16
def Preg(par, X): return V_P + (par * 2 + X) * 8
def Oreg(X, j):
    if j == 0: return vr(V_O0 + 16 * X, 16)
    return ar(A_O + X * 48 + (j - 1) * 16, 16)
def Qreg(X, ks): return ar(A_Q + (X * 8 + ks) * 4, 4)
RINGSZ = 32
def ring(p):
    s = p % RINGSZ
    return ar(A_RING + s * 4, 4) if s < 24 else vr(V_RING + (s - 24) * 4, 4)

class G:
    def __init__(self, opt):
        self.opt = opt; self.A = Asm(); self.nst = 0
    def stamp(self, idx):
        o = self.opt
        if o.get("stamp"):
            self.A(f"{'s_memtime' if o['stamp'] == 2 else 's_memrealtime'} s[{ST0 + 2*idx}:{ST0 + 2*idx + 1}]")
    def stamp_wait(self):
        if self.opt.get("stamp"): self.A("s_waitcnt lgkmcnt(0)")

def srd(A, d, b, nbytes):
    A(f"s_mov_b32 s{d}, s{b}")
    A(f"s_and_b32 s{d+1}, s{b+1}, 0xffff")
    A(f"s_mov_b32 s{d+2}, {nbytes}")
    A(f"s_mov_b32 s{d+3}, 0x20000")

def add64(A, d, b, off):
    A(f"s_add_u32 s{d}, s{b}, {off}")
    A(f"s_addc_u32 s{d+1}, s{b+1}, 0")

def stream():
    seq = [("K", 0, i) for i in range(8)]
    for t in range(7):
        seq += [("K", t + 1, i) for i in range(8)]
        seq += [("V", t, i) for i in range(8)]
    seq += [("V", 7, i) for i in range(8)]
    return seq

def ring_load(seq, p, mod=""):
    kind, t, i = seq[p]
    dst = ring(p)
    if kind == "K":
        so = f"s{S_TILE + 2 * t + (i >> 2)}"
        return f"buffer_load_dwordx4 {dst}, v{V_LANE16}, s[{S_WS}:{S_WS+3}], {so} offen offset:{(i & 3) * 1024} {mod}".rstrip()
    j, ks = i & 3, i >> 2
    so = f"s{S_TILE + 2 * t}"
    return f"buffer_load_dwordx4 {dst}, v{V_OFFV + j}, s[{S_WS}:{S_WS+3}], {so} offen offset:{ks * 1024} {mod}".rstrip()

def gen_prologue(g):
    A, opt = g.A, g.opt
    ldmod = opt.get("raw_load_mod", "")
    kvmod = opt.get("kv_store_mod", "sc1")
    vC, vR0, vK0, vK1, vKs, vVd, vVs, vQd = 8, 9, 10, 11, 12, 13, 14, 15
    vKst, vQw, vSel, vX4 = 16, 17, 18, 19
    W = 20; CK, SK, CQ, SQ = 24, 32, 40, 56
    KD, KSC, KZ = 72, 88, 92
    VD, VSC, VZ = 96, 112, 120
    SENT = 128
    T = 132
    P0 = T + 4
    def trig(pos_s, extra, c0, s0, scale):
        A(f"v_add_u32 v{P0}, {pos_s}, v{vR0}")
        if extra: A(f"v_add_u32 v{P0}, {extra}, v{P0}")
        A(f"v_cvt_f32_u32 v{P0}, v{P0}")
        for j in range(4): A(f"v_mul_f32 v{P0+1+j}, v{P0}, v{W+j}")
        for j in range(4): A(f"v_fract_f32 v{P0+1+j}, v{P0+1+j}")
        for j in range(4):
            A(f"v_cos_f32 v{c0+j}, v{P0+1+j}")
            A(f"v_sin_f32 v{s0+j}, v{P0+1+j}")
        if scale:
            A("s_nop 0")
            for j in range(0, 4, 2):
                A(f"v_pk_mul_f32 {vr(c0+j, 2)}, {vr(c0+j, 2)}, s[{scale}:{scale+1}]")
                A(f"v_pk_mul_f32 {vr(s0+j, 2)}, {vr(s0+j, 2)}, s[{scale}:{scale+1}]")
    def rope(x, c0, s0, out):
        U = T + 8
        for j in range(0, 4, 2):
            A(f"v_pk_mul_f32 {vr(U+j, 2)}, {vr(x+4+j, 2)}, {vr(s0+j, 2)}")
            A(f"v_pk_mul_f32 {vr(U+4+j, 2)}, {vr(x+j, 2)}, {vr(s0+j, 2)}")
        for j in range(0, 4, 2):
            A(f"v_pk_fma_f32 {vr(U+j, 2)}, {vr(x+j, 2)}, {vr(c0+j, 2)}, {vr(U+j, 2)} neg_lo:[0,0,1] neg_hi:[0,0,1]")
            A(f"v_pk_fma_f32 {vr(U+4+j, 2)}, {vr(x+4+j, 2)}, {vr(c0+j, 2)}, {vr(U+4+j, 2)}")
        for k in range(4):
            A(f"v_cvt_pk_bf16_f32 v{out+k}, v{U+2*k}, v{U+2*k+1}")

    g.stamp(0)
    A("s_cmp_ge_u32 s2, 256")
    A("s_cbranch_scc1 L_END")
    A(f"s_load_dwordx16 s[{S_ARG}:{S_ARG+15}], s[0:1], 0")
    A(f"s_load_dwordx4 s[{S_DBG}:{S_DBG+3}], s[0:1], 96")
    A(f"s_load_dwordx2 s[{S_OUTP}:{S_OUTP+1}], s[0:1], 88")
    A(f"s_memrealtime s[{S_T0}:{S_T0+1}]")
    A("v_lshrrev_b32 v8, 6, v0")
    A("v_and_b32 v0, 63, v0")
    A(f"v_readfirstlane_b32 s{S_W}, v8")
    A(f"v_lshlrev_b32 v{V_LANE16}, 4, v0")
    A("s_and_b32 s8, s2, 7")
    A(f"s_lshr_b32 s{S_H}, s8, 1")
    A(f"s_and_b32 s{S_SP}, s8, 1")
    A(f"s_lshr_b32 s{S_QT}, s2, 3")
    A(f"s_lshl_b32 s8, s{S_H}, 6")
    A(f"s_lshl_b32 s9, s{S_SP}, 5")
    A("s_add_u32 s8, s8, s9")
    A(f"s_add_u32 s{S_G}, s8, s{S_QT}")
    A(f"v_and_b32 v{vC}, 15, v0")
    A(f"v_lshrrev_b32 v{vR0}, 4, v0")
    A(f"s_lshl_b32 s9, s{S_W}, 2")
    A(f"v_add_u32 v{vR0}, s9, v{vR0}")
    A(f"v_lshlrev_b32 v{vK0}, 9, v{vR0}")
    A(f"v_lshl_add_u32 v{vK0}, v{vC}, 4, v{vK0}")
    A(f"v_add_u32 v{vK1}, 8192, v{vK0}")
    A(f"v_lshlrev_b32 v{vKs}, 3, v{vR0}")
    A(f"v_and_b32 v{T}, 31, v0")
    A(f"v_lshrrev_b32 v{T+1}, 5, v0")
    A(f"v_bfe_u32 v{T+2}, v{T}, 2, 1")
    A(f"v_lshlrev_b32 v{T+2}, 4, v{T+2}")
    A(f"v_lshrrev_b32 v{T+3}, 3, v{T}")
    A(f"v_lshl_add_u32 v{T+2}, v{T+3}, 2, v{T+2}")
    A(f"v_and_b32 v{T+3}, 3, v{T}")
    A(f"v_add_u32 v{T+2}, v{T+2}, v{T+3}")
    A(f"s_and_b32 s10, s{S_W}, 1")
    A(f"s_lshr_b32 s11, s{S_W}, 1")
    A("s_lshl_b32 s9, s10, 4")
    A(f"v_lshlrev_b32 v{T+1}, 2, v{T+1}")
    A(f"v_add_u32 v{T+1}, s9, v{T+1}")
    A("s_lshl_b32 s9, s11, 8")
    A("s_add_u32 s9, s9, 2048")
    A(f"v_lshlrev_b32 v{vVd}, 9, v{T+1}")
    A(f"v_lshl_add_u32 v{vVd}, v{T+2}, 2, v{vVd}")
    A(f"v_add_u32 v{vVd}, s9, v{vVd}")
    A("s_lshl_b32 s9, s11, 2")
    A(f"v_lshlrev_b32 v{vVs}, 3, v{T+1}")
    A(f"v_add_u32 v{vVs}, s9, v{vVs}")
    A(f"s_lshl_b32 s42, s{S_G}, 14")
    A(f"s_lshl_b32 s43, s{S_G}, 8")
    A(f"s_lshl_b32 s9, s8, 3")
    A(f"s_add_u32 s65, s9, {WS_F}")
    A(f"v_mov_b32 v{T+3}, s65")
    A(f"v_lshlrev_b32 v{T}, 2, v{vC}")
    A(f"v_cvt_f32_u32 v{T}, v{T}")
    A(f"s_mov_b32 s9, {F(TRIG_A)}")
    for j in range(4): A(f"v_mov_b32 v{W+j}, {F(TRIG_B + j * TRIG_A)}")
    for j in range(4): A(f"v_fma_f32 v{W+j}, v{T}, s9, v{W+j}")
    for j in range(4): A(f"v_exp_f32 v{W+j}, v{W+j}")
    A(f"s_lshl_b32 s9, s{S_SP}, 5")
    A(f"s_add_u32 s9, s9, s{S_QT}")
    A("s_lshl_b32 s9, s9, 5")
    trig("s9", 0, CK, SK, None)
    EARLY = opt.get("early_trig", 0)
    if EARLY:
        trig("s9", 16, CK + 4, SK + 4, None)
        A(f"s_lshl_b32 s9, s{S_QT}, 1")
        A(f"s_add_u32 s46, s9, s{S_SP}")
        A(f"s_xor_b32 s47, s46, 1")
        A("s_lshl_b32 s10, s47, 5")
        A("s_lshl_b32 s11, s46, 5")
        A(f"s_mov_b32 s94, {F(QSCALE)}")
        A(f"s_mov_b32 s95, {F(QSCALE)}")
        trig("s10", 0, CQ, SQ, 94); trig("s10", 16, CQ + 4, SQ + 4, 94)
        if EARLY > 1:
            trig("s11", 0, CQ + 8, SQ + 8, 94); trig("s11", 16, CQ + 12, SQ + 12, 94)
    A("s_waitcnt lgkmcnt(0)")
    g.stamp(1)
    A(f"s_or_b32 s10, s2, s{S_W}")
    A("s_cmp_lg_u32 s10, 0")
    A("s_cbranch_scc1 L_NONONCE")
    A(f"s_or_b32 s10, s{S_T0}, 1")
    A(f"v_mov_b32 v{T+1}, 0")
    A(f"v_mov_b32 v{T+2}, s10")
    A("s_mov_b64 exec, 1")
    A(f"global_store_dword v{T+1}, v{T+2}, s[{S_DBG}:{S_DBG+1}] sc1")
    A("s_mov_b64 exec, -1")
    A.label("L_NONONCE")
    add64(A, 22, 22, "s42")
    add64(A, 24, 24, "s43")
    add64(A, 26, 26, "s43")
    def kloads(it):
        vo = vK0 if it == 0 else vK1
        A(f"global_load_dwordx4 {vr(KD + 8*it, 4)}, v{vo}, s[22:23] {ldmod}")
        A(f"global_load_dwordx4 {vr(KD + 8*it + 4, 4)}, v{vo}, s[22:23] offset:256 {ldmod}")
        A(f"global_load_dwordx2 {vr(KSC + 2*it, 2)}, v{vKs}, s[24:25] offset:{it*128}")
        A(f"global_load_dwordx2 {vr(KZ + 2*it, 2)}, v{vKs}, s[26:27] offset:{it*128}")
    kloads(0); kloads(1)
    add64(A, 28, 28, "s42")
    add64(A, 30, 30, "s43")
    add64(A, 32, 32, "s43")
    for i in range(8):
        ro = (8 * (i >> 2) + (i & 3)) * 8
        A(f"global_load_dword v{VSC + i}, v{vVs}, s[30:31] offset:{ro}")
        A(f"global_load_dword v{VZ + i}, v{vVs}, s[32:33] offset:{ro}")
    for i in range(8):
        for dbl in range(2):
            off = (i >> 2) * 4096 + (i & 3) * 512 + dbl * 128 - 2048
            A(f"global_load_dword v{VD + 2*i + dbl}, v{vVd}, s[28:29] offset:{off} {ldmod}")
    QEARLY = 2 if opt.get("split", 0) else opt.get("q_early", 0)
    QD = 72 if not QEARLY else 172
    def qloads():
        A(f"v_lshlrev_b32 v{vQd}, 8, v{vR0}")
        A(f"v_lshl_add_u32 v{vQd}, v{vC}, 3, v{vQd}")
        A(f"v_add_u32 v{vQd}, 2048, v{vQd}")
        A(f"s_lshl_b32 s9, s{S_QT}, 1")
        A(f"s_add_u32 s46, s9, s{S_SP}")
        A(f"s_xor_b32 s47, s46, 1")
        A(f"s_lshl_b32 s10, s{S_H}, 6")
        A("s_add_u32 s11, s10, s47")
        A("s_lshl_b32 s11, s11, 13")
        add64(A, 34, 20, "s11")
        A("s_add_u32 s11, s10, s46")
        A("s_lshl_b32 s11, s11, 13")
        add64(A, 20, 20, "s11")
        for X in range(2):
            base = "s[34:35]" if X == 0 else "s[20:21]"
            for it in range(2):
                r = QD + (X * 2 + it) * 4
                A(f"global_load_dwordx2 {vr(r, 2)}, v{vQd}, {base} offset:{it*4096 - 2048} {ldmod}")
                A(f"global_load_dwordx2 {vr(r + 2, 2)}, v{vQd}, {base} offset:{it*4096 - 2048 + 128} {ldmod}")
    if QEARLY == 1:
        A(f"s_lshl_b32 s95, s{S_SP}, 5")
        A(f"s_add_u32 s95, s95, s{S_QT}")
        A("s_lshl_b32 s95, s95, 5")
        qloads()
        A("s_mov_b32 s9, s95")
    SPLIT = opt.get("split", 0)
    A(f"global_load_dword v171, v{T+3}, s[38:39] sc1")
    if SPLIT: A(f"global_load_dword v170, v{T+3}, s[38:39] offset:128 sc1")
    NPRE = 0
    if opt.get("pretouch"):
        A(f"s_lshl_b32 s10, s{S_G}, 14")
        A(f"v_mov_b32 v{T+2}, s10")
        A(f"global_load_dword v170, v{T+2}, s[38:39]")
        A(f"global_load_dword v169, v{T+2}, s[20:21]" if False else f"v_lshrrev_b32 v{T+2}, 1, v{T+2}")
        A(f"global_load_dword v169, v{T+2}, s[20:21]")
        A(f"global_load_dword v168, v{T+2}, s[{S_OUTP}:{S_OUTP+1}]")
        NPRE = 3
    if opt.get("codepf"):
        A("s_getpc_b64 s[94:95]")
        A.label("L_PFBASE")
        A("s_lshr_b32 s10, s2, 3")
        A("s_lshl_b32 s10, s10, 2")
        A(f"s_add_u32 s10, s10, s{S_W}")
        A("s_lshl_b32 s10, s10, 7")
        A("s_min_u32 s10, s10, L_CODE_END - L_PFBASE - 4")
        A("s_add_u32 s94, s94, s10")
        A("s_addc_u32 s95, s95, 0")
        A("s_load_dword s96, s[94:95], 0")
    srd(A, S_WS, 38, WS_SIZE)
    A(f"v_lshlrev_b32 v{vX4}, 2, v0")
    A("s_lshl_b32 s44, s2, 13")
    A(f"s_lshl_b32 s10, s{S_W}, 11")
    A("s_add_u32 s44, s44, s10")
    A(f"s_add_u32 s44, s44, {WS_X}")
    A("s_lshl_b32 s45, s2, 10")
    A(f"s_lshl_b32 s10, s{S_W}, 8")
    A("s_add_u32 s45, s45, s10")
    A(f"s_add_u32 s45, s45, {WS_L}")
    NTAIL = 1 + SPLIT + NPRE + (8 if QEARLY == 1 else 0)
    NV = 40 + NTAIL
    if not EARLY: trig("s9", 16, CK + 4, SK + 4, None)
    A(f"v_lshrrev_b32 v{T}, 1, v{vC}")
    A(f"v_lshlrev_b32 v{vKst}, 10, v{T}")
    A(f"v_and_b32 v{T+1}, 1, v{vC}")
    A(f"v_lshl_add_u32 v{vKst}, v{T+1}, 9, v{vKst}")
    A(f"v_lshl_add_u32 v{vKst}, v{vR0}, 4, v{vKst}")
    A(f"v_lshl_add_u32 v{T+1}, v{T+1}, 5, v{vR0}")
    A(f"v_and_b32 v{T+2}, 7, v{vC}")
    A(f"v_xor_b32 v{T+1}, v{T+1}, v{T+2}")
    A(f"v_lshlrev_b32 v{vQw}, 10, v{T}")
    A(f"v_lshl_add_u32 v{vQw}, v{T+1}, 4, v{vQw}")
    A(f"v_lshrrev_b32 v{vSel}, 3, v{vC}")
    A(f"v_lshlrev_b32 v{vSel}, 4, v{vSel}")
    A(f"v_sub_u32 v{vSel}, 16, v{vSel}")
    A(f"s_lshl_b32 s43, s{S_G}, 14")
    A(f"s_and_b32 s9, s{S_W}, 1")
    A("s_lshl_b32 s9, s9, 10")
    A(f"s_lshr_b32 s10, s{S_W}, 1")
    A("s_lshl_b32 s10, s10, 12")
    A("s_add_u32 s9, s9, s10")
    A("s_add_u32 s9, s9, s43")
    A("s_add_u32 s9, s9, 8192")
    nst = 0
    for it in range(2):
        A(f"s_waitcnt vmcnt({NV - 4 * (it + 1) + nst})")
        if it == 0: g.stamp(2)
        x = KD + 8 * it
        sc = T + 16
        for k, src in enumerate((KSC + 2*it, KSC + 2*it + 1, KZ + 2*it, KZ + 2*it + 1)):
            A(f"v_lshlrev_b32 v{sc+k}, v{vSel}, v{src}")
        for j in range(8): A(f"v_cvt_f32_i32 v{x+j}, v{x+j}")
        for k in range(4): A(f"v_and_b32 v{sc+k}, 0xffff0000, v{sc+k}")
        for j in range(0, 4, 2):
            A(f"v_pk_add_f32 {vr(x+j, 2)}, {vr(x+j, 2)}, {vr(sc+2, 2)} op_sel_hi:[1,0] neg_lo:[0,1] neg_hi:[0,1]")
            A(f"v_pk_add_f32 {vr(x+4+j, 2)}, {vr(x+4+j, 2)}, {vr(sc+2, 2)} op_sel:[0,1] op_sel_hi:[1,1] neg_lo:[0,1] neg_hi:[0,1]")
        for j in range(0, 4, 2):
            A(f"v_pk_mul_f32 {vr(x+j, 2)}, {vr(x+j, 2)}, {vr(sc, 2)} op_sel_hi:[1,0]")
            A(f"v_pk_mul_f32 {vr(x+4+j, 2)}, {vr(x+4+j, 2)}, {vr(sc, 2)} op_sel:[0,1] op_sel_hi:[1,1]")
        out = T + 20 + 4 * it
        rope(x, CK + 4*it, SK + 4*it, out)
        A(f"buffer_store_dwordx4 {vr(out, 4)}, v{vKst}, s[{S_WS}:{S_WS+3}], s43 offen offset:{it*256} {kvmod}")
        nst += 1
    NON = SENT + 1
    NEARLY = opt.get("nonce_early", 0)
    if NEARLY:
        A(f"v_mov_b32 v{T+1}, 0")
        A(f"global_load_dword v{NON}, v{T+1}, s[{S_DBG}:{S_DBG+1}] sc1")
        nst += 1
    if QEARLY == 2:
        A("s_mov_b32 s95, s9")
        qloads()
        A("s_mov_b32 s9, s95")
        nst += 8
    A(f"s_waitcnt vmcnt({16 + NTAIL + nst})")
    SP_, ZP_ = 72, 24
    for i in range(8):
        A(f"v_lshlrev_b32 v{SP_+2*i}, 16, v{VSC+i}")
        A(f"v_and_b32 v{SP_+2*i+1}, 0xffff0000, v{VSC+i}")
        A(f"v_lshlrev_b32 v{ZP_+2*i}, 16, v{VZ+i}")
        A(f"v_and_b32 v{ZP_+2*i+1}, 0xffff0000, v{VZ+i}")
    A(f"s_waitcnt vmcnt({NTAIL + nst})")
    g.stamp(3)
    if not NEARLY:
        A(f"v_mov_b32 v{T+1}, 0")
        A(f"global_load_dword v{NON}, v{T+1}, s[{S_DBG}:{S_DBG+1}] sc1")
    for i in range(16): A(f"v_cvt_f32_i32 v{VD+i}, v{VD+i}")
    for i in range(8): A(f"v_pk_add_f32 {vr(VD+2*i, 2)}, {vr(VD+2*i, 2)}, {vr(ZP_+2*i, 2)} neg_lo:[0,1] neg_hi:[0,1]")
    for i in range(8): A(f"v_pk_mul_f32 {vr(VD+2*i, 2)}, {vr(VD+2*i, 2)}, {vr(SP_+2*i, 2)}")
    for dbl in range(2):
        O = T + 28 + 4 * dbl
        for k in range(4):
            A(f"v_cvt_pk_bf16_f32 v{O+k}, v{VD+(2*k)*2+dbl}, v{VD+(2*k+1)*2+dbl}")
        A(f"buffer_store_dwordx4 {vr(O, 4)}, v{V_LANE16}, s[{S_WS}:{S_WS+3}], s9 offen offset:{dbl*2048} {kvmod}")
    if not QEARLY: qloads()
    else:
        A(f"s_lshl_b32 s9, s{S_QT}, 1")
        A(f"s_add_u32 s46, s9, s{S_SP}")
        A(f"s_xor_b32 s47, s46, 1")
    def post_store_setup():
        A("s_lshl_b32 s10, s47, 5")
        A("s_lshl_b32 s11, s46, 5")
        A(f"s_mov_b32 s42, {F(QSCALE)}")
        A(f"s_mov_b32 s43, {F(QSCALE)}")
        if not EARLY:
            trig("s10", 0, CQ, SQ, 42); trig("s10", 16, CQ + 4, SQ + 4, 42)
        for j in range(4):
            A(f"s_add_u32 s9, s{S_W}, {j}")
            A("s_and_b32 s9, s9, 3")
            A("s_lshl_b32 s9, s9, 11")
            A("s_add_u32 s9, s9, 8192")
            A(f"v_add_u32 v{V_OFFV + j}, s9, v{V_LANE16}")
        A(f"s_lshl_b32 s9, s{S_W}, 3")
        A("s_add_u32 s8, s8, s9")
        A(f"s_lshl_b32 s{S_TILE}, s8, 14")
        A(f"s_add_u32 s{S_TILE+1}, s{S_TILE}, 4096")
        for t in range(1, 8):
            A(f"s_add_u32 s{S_TILE + 2*t}, s{S_TILE}, {t * 16384}")
            A(f"s_add_u32 s{S_TILE + 2*t + 1}, s{S_TILE}, {t * 16384 + 4096}")
    def flag_addr():
        A(f"s_lshl_b32 s9, s{S_QT}, 2")
        A("s_add_u32 s9, s9, s65")
        A(f"v_mov_b32 v{T}, s9")
        A(f"s_lshl_b32 s9, s{S_W}, 5")
        A("s_add_u32 s9, s9, s65")
        A(f"v_and_b32 v{T+2}, 7, v0")
        A(f"v_lshl_add_u32 v{T+2}, v{T+2}, 2, s9")
    if not SPLIT:
        post_store_setup()
        flag_addr()
    FL = SENT + 2
    def qcompute():
        for pc in range(4):
            X, it = pc >> 1, pc & 1
            r = QD + pc * 4
            x = 96 + 8 * (pc & 1)
            for hh in range(2):
                for k in range(2):
                    A(f"v_lshlrev_b32 v{x+4*hh+2*k}, 16, v{r+2*hh+k}")
                    A(f"v_and_b32 v{x+4*hh+2*k+1}, 0xffff0000, v{r+2*hh+k}")
            out = T + 20 + 4 * (pc & 1)
            rope(x, CQ + 4*pc, SQ + 4*pc, out)
            A(f"ds_write_b128 v{vQw}, {vr(out, 4)} offset:{X*8192 + it*256}")
    def qaddr():
        A(f"v_lshrrev_b32 v{T+3}, 5, v0")
        for k in range(4):
            A(f"v_add_u32 v{8+k}, {2*k}, v{T+3}")
            A(f"v_xor_b32 v{8+k}, v{8+k}, v0")
            A(f"v_lshlrev_b32 v{8+k}, 4, v{8+k}")
        A(f"v_mov_b32 v{V_LA}, 0")
        A(f"v_mov_b32 v{V_LB}, 0")
        if opt.get("dotsum"): A("s_mov_b32 s95, 0x3f803f80")
        if opt.get("pkadd"):
            for k in range(4): A(f"v_mov_b32 v{188 + k}, 0")
    def qreads():
        for ks in range(4):
            for X in range(2):
                A(f"ds_read_b128 {Qreg(X, ks)}, v{8 + (ks & 3)} offset:{(X * 8 + ks) * 1024}")
    def nonce_and_flag(all_lanes=False):
        A.label("L_NPOLL")
        A(f"v_readfirstlane_b32 s{S_XCC}, v{NON}")
        A("s_nop 1")
        A(f"s_sub_u32 s94, s{S_XCC}, s{S_T0}")
        A("s_add_u32 s94, s94, 500")
        A("s_cmp_lt_u32 s94, 2500")
        A(f"s_cselect_b32 s94, s{S_XCC}, 0")
        A("s_cmp_lg_u32 s94, 0")
        A("s_cbranch_scc1 L_NOK")
        A("s_add_u32 s10, s10, 1")
        A(f"s_cmp_ge_u32 s10, {opt.get('maxpoll0', 200)}")
        A("s_cbranch_scc1 L_NTIMEOUT")
        A(f"v_mov_b32 v{T+1}, 0")
        A(f"global_load_dword v{NON}, v{T+1}, s[{S_DBG}:{S_DBG+1}] sc1")
        A("s_waitcnt vmcnt(0)")
        A("s_branch L_NPOLL")
        A.label("L_NTIMEOUT")
        A(f"s_mov_b32 s{S_XCC}, 1")
        A("s_mov_b32 s9, 1")
        A.label("L_NOK")
        A(f"v_mov_b32 v{T+1}, s{S_XCC}")
        A("s_barrier")
        A("s_mov_b64 exec, 1")
        A(f"global_store_dword v{T}, v{T+1}, s[38:39]")
        if not all_lanes:
            A("s_mov_b64 exec, 0xff")
            A(f"global_load_dword v{FL}, v{T+2}, s[38:39] sc1")
        A("s_mov_b64 exec, -1")
        A("s_mov_b32 s65, s9")
    seq = stream()
    rmod = opt.get("ring_mod", "")
    DEPTH = opt.get("depth", 16)
    SE = T + 4
    def sentinels():
        for j in range(4): A(f"v_mov_b32 v{SE + j}, -1")
        A(f"buffer_store_dwordx4 {vr(SE, 4)}, v{V_LANE16}, s[{S_WS}:{S_WS+3}], s44 offen sc1")
        A(f"buffer_store_dwordx4 {vr(SE, 4)}, v{V_LANE16}, s[{S_WS}:{S_WS+3}], s44 offen offset:1024 sc1")
        A(f"buffer_store_dword v{SE}, v{vX4}, s[{S_WS}:{S_WS+3}], s45 offen sc1")
    if SPLIT:
        assert DEPTH == 16
        flag_addr()
        A("s_mov_b32 s10, 0")
        A("s_mov_b32 s9, 0")
        A(f"s_waitcnt vmcnt({10 if NEARLY else 2})")
        g.stamp(4)
        nonce_and_flag(all_lanes=True)
        post_store_setup()
        trig("s11", 0, CQ + 8, SQ + 8, 42); trig("s11", 16, CQ + 12, SQ + 12, 42)
        qaddr()
        if NEARLY: A("s_waitcnt vmcnt(3)")
        g.stamp(5)
        qcompute()
        A(f"v_mov_b32 v{T+1}, s{S_XCC}")
        A(f"v_mov_b32 v186, v{T+2}")
        A(f"global_load_dword v{FL}, v{T+2}, s[38:39] sc1")
        A("s_waitcnt vmcnt(2) lgkmcnt(0)")
        A("s_barrier")
        A("s_mov_b64 exec, 1")
        A(f"global_store_dword v{T}, v{T+1}, s[38:39] offset:128")
        A("s_mov_b64 exec, -1")
        qreads()
        A("s_cmp_lg_u32 s65, 0")
        A("s_cbranch_scc1 L_WAVEFAIL")
        A("s_mov_b32 s10, 0")
        A("s_waitcnt vmcnt(1)")
        A.label("L_FPOLL")
        A(f"v_cmp_ne_u32 vcc, s{S_XCC}, v{FL}")
        A("s_nop 0")
        A("s_cbranch_vccz L_FOK")
        A("s_add_u32 s10, s10, 1")
        A(f"s_cmp_ge_u32 s10, {opt.get('maxpoll1', 400)}")
        A("s_cbranch_scc1 L_WAVEFAIL")
        A(f"global_load_dword v{FL}, v{T+2}, s[38:39] sc1")
        A("s_waitcnt vmcnt(0)")
        A("s_branch L_FPOLL")
        A.label("L_FOK")
        g.stamp(6)
        if opt.get("stamp"): A(f"s_mov_b32 s{ST0 + 2*11}, s10")
        for p in range(DEPTH): A(ring_load(seq, p, rmod))
        sentinels()
        g.stamp(7)
        g.stamp_wait()
        return
    if QEARLY == 2:
        trig("s11", 0, CQ + 8, SQ + 8, 42); trig("s11", 16, CQ + 12, SQ + 12, 42)
        A("s_waitcnt vmcnt(3)")
        g.stamp(5)
        qcompute()
        qaddr()
        A("s_mov_b32 s10, 0")
        A("s_mov_b32 s9, 0")
        A("s_waitcnt vmcnt(0) lgkmcnt(0)")
        g.stamp(4)
        g.stamp_wait()
        nonce_and_flag()
        qreads()
    else:
        A("s_mov_b32 s10, 0")
        A("s_mov_b32 s9, 0")
        A(f"s_waitcnt vmcnt({0 if QEARLY else 8})")
        g.stamp(4)
        nonce_and_flag()
        if EARLY < 2:
            trig("s11", 0, CQ + 8, SQ + 8, 42); trig("s11", 16, CQ + 12, SQ + 12, 42)
        A("s_waitcnt vmcnt(2)")
        g.stamp(5)
        qcompute()
        qaddr()
        A("s_waitcnt lgkmcnt(0)")
        A("s_barrier")
        qreads()
    A("s_cmp_lg_u32 s65, 0")
    A("s_cbranch_scc1 L_WAVEFAIL")
    A("s_mov_b32 s10, 0")
    PROG = opt.get("prog", 0)
    A(f"s_mov_b64 exec, {'0x3' if PROG else '0xff'}")
    A.label("L_FPOLL")
    A("s_waitcnt vmcnt(0)")
    A(f"v_cmp_ne_u32 vcc, s{S_XCC}, v{FL}")
    A("s_cbranch_vccz L_FOK")
    A("s_add_u32 s10, s10, 1")
    A(f"s_cmp_ge_u32 s10, {opt.get('maxpoll1', 400)}")
    A("s_cbranch_scc1 L_WAVEFAIL")
    A(f"global_load_dword v{FL}, v{T+2}, s[38:39] sc1")
    A("s_branch L_FPOLL")
    A.label("L_FOK")
    A("s_mov_b64 exec, -1")
    if PROG: A(f"v_mov_b32 v186, v{T+2}")
    g.stamp(6)
    if opt.get("stamp"): A(f"s_mov_b32 s{ST0 + 2*11}, s10")
    for p in range(DEPTH): A(ring_load(seq, p, rmod))
    if opt.get("prog", 0) or opt.get("sent_in_loop", 0):
        for j in range(4): A(f"v_mov_b32 v{SE + j}, -1")
        A("v_lshlrev_b32 v185, 2, v0")
    else:
        sentinels()
    g.stamp(7)
    g.stamp_wait()

def gen_prologue2(g):
    A, opt = g.A, g.opt
    vC, vR0, vKo, vKs, vVd, vVs, vQd = 8, 9, 10, 12, 13, 14, 15
    vKst, vQw, vSel = 16, 17, 18
    W = 20; CKA, SKA, CQ, SQ = 24, 28, 40, 56
    CKB, SKB = 92, 96
    KD, KSC, KZ, U, SC, KOUT = 80, 88, 90, 100, 108, 112
    VD, VSC, VZ, VOUT = 116, 124, 132, 140
    QD, QX, QU, QOUT = 144, 160, 176, 184
    vPoll, vRes, vMyF, vFVal = 188, 189, 190, 191
    NON, FL = 171, 172
    T = 32
    P0 = T + 2
    def trig(pos_s, extra, c0, s0, scale):
        A(f"v_add_u32 v{P0}, {pos_s}, v{vR0}")
        if extra: A(f"v_add_u32 v{P0}, {extra}, v{P0}")
        A(f"v_cvt_f32_u32 v{P0}, v{P0}")
        for j in range(4): A(f"v_mul_f32 v{P0+1+j}, v{P0}, v{W+j}")
        for j in range(4): A(f"v_fract_f32 v{P0+1+j}, v{P0+1+j}")
        for j in range(4):
            A(f"v_cos_f32 v{c0+j}, v{P0+1+j}")
            A(f"v_sin_f32 v{s0+j}, v{P0+1+j}")
        if scale:
            A("s_nop 0")
            for j in range(0, 4, 2):
                A(f"v_pk_mul_f32 {vr(c0+j, 2)}, {vr(c0+j, 2)}, s[{scale}:{scale+1}]")
                A(f"v_pk_mul_f32 {vr(s0+j, 2)}, {vr(s0+j, 2)}, s[{scale}:{scale+1}]")
    def rope(x, c0, s0, u, out):
        L = []
        for j in range(0, 4, 2):
            L.append(f"v_pk_mul_f32 {vr(u+j, 2)}, {vr(x+4+j, 2)}, {vr(s0+j, 2)}")
            L.append(f"v_pk_mul_f32 {vr(u+4+j, 2)}, {vr(x+j, 2)}, {vr(s0+j, 2)}")
        for j in range(0, 4, 2):
            L.append(f"v_pk_fma_f32 {vr(u+j, 2)}, {vr(x+j, 2)}, {vr(c0+j, 2)}, {vr(u+j, 2)} neg_lo:[0,0,1] neg_hi:[0,0,1]")
            L.append(f"v_pk_fma_f32 {vr(u+4+j, 2)}, {vr(x+4+j, 2)}, {vr(c0+j, 2)}, {vr(u+4+j, 2)}")
        for k in range(4):
            L.append(f"v_cvt_pk_bf16_f32 v{out+k}, v{u+2*k}, v{u+2*k+1}")
        return L
    def kloads(base_k, base_s, base_z):
        A(f"global_load_dwordx4 {vr(KD, 4)}, v{vKo}, {base_k}")
        A(f"global_load_dwordx4 {vr(KD + 4, 4)}, v{vKo}, {base_k} offset:256")
        A(f"global_load_dwordx2 {vr(KSC, 2)}, v{vKs}, {base_s}")
        A(f"global_load_dwordx2 {vr(KZ, 2)}, v{vKs}, {base_z}")
    def vloads(base_v, base_s, base_z):
        for i in range(8):
            ro = (8 * (i >> 2) + (i & 3)) * 8
            A(f"global_load_ushort v{VSC + i}, v{vVs}, {base_s} offset:{ro}")
            A(f"global_load_ushort v{VZ + i}, v{vVs}, {base_z} offset:{ro}")
        for i in range(8):
            off = (i >> 2) * 4096 + (i & 3) * 512 - 2048
            A(f"global_load_dword v{VD + i}, v{vVd}, {base_v} offset:{off}")
    def kcompute(ck, sk, sbase, vKst=vKst, vSel=vSel):
        L = []
        for k, src in enumerate((KSC, KSC + 1, KZ, KZ + 1)): L.append(f"v_lshlrev_b32 v{SC+k}, v{vSel}, v{src}")
        for j in range(8): L.append(f"v_cvt_f32_i32 v{KD+j}, v{KD+j}")
        for k in range(4): L.append(f"v_and_b32 v{SC+k}, 0xffff0000, v{SC+k}")
        for j in range(0, 4, 2):
            L.append(f"v_pk_add_f32 {vr(KD+j, 2)}, {vr(KD+j, 2)}, {vr(SC+2, 2)} op_sel_hi:[1,0] neg_lo:[0,1] neg_hi:[0,1]")
            L.append(f"v_pk_add_f32 {vr(KD+4+j, 2)}, {vr(KD+4+j, 2)}, {vr(SC+2, 2)} op_sel:[0,1] op_sel_hi:[1,1] neg_lo:[0,1] neg_hi:[0,1]")
        for j in range(0, 4, 2):
            L.append(f"v_pk_mul_f32 {vr(KD+j, 2)}, {vr(KD+j, 2)}, {vr(SC, 2)} op_sel_hi:[1,0]")
            L.append(f"v_pk_mul_f32 {vr(KD+4+j, 2)}, {vr(KD+4+j, 2)}, {vr(SC, 2)} op_sel:[0,1] op_sel_hi:[1,1]")
        L += rope(KD, ck, sk, U, KOUT)
        L.append(f"buffer_store_dwordx4 {vr(KOUT, 4)}, v{vKst}, s[{S_WS}:{S_WS+3}], {sbase} offen sc1")
        return L
    def vcompute(sbase):
        L = []
        for i in range(8):
            L.append(f"v_lshlrev_b32 v{VSC+i}, 16, v{VSC+i}")
            L.append(f"v_lshlrev_b32 v{VZ+i}, 16, v{VZ+i}")
        for i in range(8): L.append(f"v_cvt_f32_i32 v{VD+i}, v{VD+i}")
        for i in range(0, 8, 2): L.append(f"v_pk_add_f32 {vr(VD+i, 2)}, {vr(VD+i, 2)}, {vr(VZ+i, 2)} neg_lo:[0,1] neg_hi:[0,1]")
        for i in range(0, 8, 2): L.append(f"v_pk_mul_f32 {vr(VD+i, 2)}, {vr(VD+i, 2)}, {vr(VSC+i, 2)}")
        for k in range(4): L.append(f"v_cvt_pk_bf16_f32 v{VOUT+k}, v{VD+2*k}, v{VD+2*k+1}")
        L.append(f"buffer_store_dwordx4 {vr(VOUT, 4)}, v{V_LANE16}, s[{S_WS}:{S_WS+3}], {sbase} offen sc1")
        return L

    g.stamp(0)
    A("s_cmp_ge_u32 s2, 256")
    A("s_cbranch_scc1 L_END")
    A(f"s_load_dwordx16 s[{S_ARG}:{S_ARG+15}], s[0:1], 0")
    A(f"s_load_dwordx4 s[{S_DBG}:{S_DBG+3}], s[0:1], 96")
    A(f"s_load_dwordx2 s[{S_OUTP}:{S_OUTP+1}], s[0:1], 88")
    A(f"s_memrealtime s[{S_T0}:{S_T0+1}]")
    A("v_lshrrev_b32 v8, 6, v0")
    A("v_and_b32 v0, 63, v0")
    A(f"v_readfirstlane_b32 s{S_W}, v8")
    A(f"v_lshlrev_b32 v{V_LANE16}, 4, v0")
    A("s_and_b32 s8, s2, 7")
    A(f"s_lshr_b32 s{S_H}, s8, 1")
    A(f"s_and_b32 s{S_SP}, s8, 1")
    A(f"s_lshr_b32 s{S_QT}, s2, 3")
    A(f"s_lshl_b32 s8, s{S_H}, 6")
    A(f"s_lshl_b32 s9, s{S_SP}, 5")
    A("s_add_u32 s8, s8, s9")
    A(f"s_lshr_b32 s9, s{S_QT}, 1")
    A("s_lshr_b32 s10, s9, 2")
    A("s_lshl_b32 s10, s10, 3")
    A("s_and_b32 s9, s9, 3")
    A("s_add_u32 s10, s10, s9")
    A(f"s_add_u32 s{S_G}, s8, s10")
    A(f"s_and_b32 s66x, s{S_QT}, 1".replace("s66x", "s11"))
    A(f"v_and_b32 v{vC}, 15, v0")
    A(f"v_lshrrev_b32 v{vR0}, 4, v0")
    A(f"s_lshl_b32 s9, s{S_W}, 2")
    A(f"v_add_u32 v{vR0}, s9, v{vR0}")
    A("s_lshl_b32 s9, s11, 4")
    A(f"v_add_u32 v{T}, s9, v{vR0}")
    A(f"v_lshlrev_b32 v{vKo}, 9, v{T}")
    A(f"v_lshl_add_u32 v{vKo}, v{vC}, 4, v{vKo}")
    A(f"v_lshlrev_b32 v{vKs}, 3, v{T}")
    A(f"v_lshrrev_b32 v{T+1}, 1, v{vC}")
    A(f"v_lshlrev_b32 v{vKst}, 10, v{T+1}")
    A(f"v_and_b32 v{T+2}, 1, v{vC}")
    A(f"v_lshl_add_u32 v{vKst}, v{T+2}, 9, v{vKst}")
    A(f"v_lshl_add_u32 v{vKst}, v{T}, 4, v{vKst}")
    A(f"v_lshl_add_u32 v{T+2}, v{T+2}, 5, v{vR0}")
    A(f"v_and_b32 v{T+3}, 7, v{vC}")
    A(f"v_xor_b32 v{T+2}, v{T+2}, v{T+3}")
    A(f"v_lshlrev_b32 v{vQw}, 10, v{T+1}")
    A(f"v_lshl_add_u32 v{vQw}, v{T+2}, 4, v{vQw}")
    A(f"v_lshrrev_b32 v{vSel}, 3, v{vC}")
    A(f"v_lshlrev_b32 v{vSel}, 4, v{vSel}")
    A(f"v_sub_u32 v{vSel}, 16, v{vSel}")
    A(f"v_and_b32 v{T}, 31, v0")
    A(f"v_lshrrev_b32 v{T+1}, 5, v0")
    A(f"v_bfe_u32 v{T+2}, v{T}, 2, 1")
    A(f"v_lshlrev_b32 v{T+2}, 4, v{T+2}")
    A(f"v_lshrrev_b32 v{T+3}, 3, v{T}")
    A(f"v_lshl_add_u32 v{T+2}, v{T+3}, 2, v{T+2}")
    A(f"v_and_b32 v{T+3}, 3, v{T}")
    A(f"v_add_u32 v{T+2}, v{T+2}, v{T+3}")
    A("s_lshl_b32 s9, s11, 4")
    A(f"v_lshlrev_b32 v{T+1}, 2, v{T+1}")
    A(f"v_add_u32 v{T+1}, s9, v{T+1}")
    A(f"s_lshl_b32 s9, s{S_W}, 7")
    A("s_add_u32 s9, s9, 2048")
    A(f"v_lshlrev_b32 v{vVd}, 9, v{T+1}")
    A(f"v_lshl_add_u32 v{vVd}, v{T+2}, 2, v{vVd}")
    A(f"v_add_u32 v{vVd}, s9, v{vVd}")
    A(f"s_lshl_b32 s9, s{S_W}, 1")
    A(f"v_lshlrev_b32 v{vVs}, 3, v{T+1}")
    A(f"v_add_u32 v{vVs}, s9, v{vVs}")
    A(f"v_lshlrev_b32 v{vQd}, 8, v{vR0}")
    A(f"v_lshl_add_u32 v{vQd}, v{vC}, 3, v{vQd}")
    A(f"v_add_u32 v{vQd}, 2048, v{vQd}")
    A(f"s_lshl_b32 s42, s{S_G}, 14")
    A(f"s_lshl_b32 s43, s{S_G}, 8")
    A("s_lshl_b32 s9, s8, 3")
    A(f"s_add_u32 s65, s9, {WS_F}")
    A(f"v_mov_b32 v{T+7}, s65")
    A(f"s_lshl_b32 s9, s{S_QT}, 1")
    A(f"s_add_u32 s46, s9, s{S_SP}")
    A("s_xor_b32 s47, s46, 1")
    A(f"s_lshl_b32 s9, s{S_H}, 6")
    A("s_add_u32 s94, s9, s47")
    A("s_lshl_b32 s94, s94, 13")
    A("s_add_u32 s95, s9, s46")
    A("s_lshl_b32 s95, s95, 13")
    A(f"v_lshlrev_b32 v{T}, 2, v{vC}")
    A(f"v_cvt_f32_u32 v{T}, v{T}")
    A(f"s_mov_b32 s9, {F(TRIG_A)}")
    for j in range(4): A(f"v_mov_b32 v{W+j}, {F(TRIG_B + j * TRIG_A)}")
    for j in range(4): A(f"v_fma_f32 v{W+j}, v{T}, s9, v{W+j}")
    for j in range(4): A(f"v_exp_f32 v{W+j}, v{W+j}")
    A(f"s_lshl_b32 s9, s{S_SP}, 5")
    A("s_add_u32 s9, s9, s10")
    A("s_lshl_b32 s9, s9, 5")
    A("s_lshl_b32 s10, s11, 4")
    A("s_add_u32 s44, s9, s10")
    trig("s44", 0, CKA, SKA, None)
    A("s_waitcnt lgkmcnt(0)")
    g.stamp(1)
    A(f"s_or_b32 s10, s2, s{S_W}")
    A("s_cmp_lg_u32 s10, 0")
    A("s_cbranch_scc1 L_NONONCE")
    A(f"s_or_b32 s10, s{S_T0}, 1")
    A(f"v_mov_b32 v{T+1}, 0")
    A(f"v_mov_b32 v{T+2}, s10")
    A("s_mov_b64 exec, 1")
    A(f"global_store_dword v{T+1}, v{T+2}, s[{S_DBG}:{S_DBG+1}] sc1")
    A("s_mov_b64 exec, -1")
    A.label("L_NONONCE")
    add64(A, 22, 22, "s42"); add64(A, 24, 24, "s43"); add64(A, 26, 26, "s43")
    kloads("s[22:23]", "s[24:25]", "s[26:27]")
    add64(A, 28, 28, "s42"); add64(A, 30, 30, "s43"); add64(A, 32, 32, "s43")
    vloads("s[28:29]", "s[30:31]", "s[32:33]")
    add64(A, 34, 20, "s94"); add64(A, 20, 20, "s95")
    for X in range(2):
        base = "s[34:35]" if X == 0 else "s[20:21]"
        for it in range(2):
            r = QD + (X * 2 + it) * 4
            A(f"global_load_dwordx2 {vr(r, 2)}, v{vQd}, {base} offset:{it*4096 - 2048}")
            A(f"global_load_dwordx2 {vr(r + 2, 2)}, v{vQd}, {base} offset:{it*4096 - 2048 + 128}")
    A(f"global_load_dword v173, v{T+7}, s[38:39] sc1")
    A(f"global_load_dword v174, v{T+7}, s[38:39] offset:128 sc1")
    srd(A, S_WS, 38, WS_SIZE)
    trig("s44", 128, CKB, SKB, None)
    add64(A, 22, 22, 4 * 16384); add64(A, 24, 24, 4 * 256); add64(A, 26, 26, 4 * 256)
    add64(A, 28, 28, 4 * 16384); add64(A, 30, 30, 4 * 256); add64(A, 32, 32, 4 * 256)
    A(f"s_lshl_b32 s43, s{S_G}, 14")
    A(f"s_lshl_b32 s9, s{S_W}, 11")
    A("s_lshl_b32 s10, s11, 10")
    A("s_add_u32 s9, s9, s10")
    A("s_add_u32 s9, s9, 8192")
    A("s_add_u32 s42, s43, s9")
    A("s_add_u32 s66, s43, 65536".replace("s66", "s96"))
    A("s_add_u32 s97, s42, 65536")
    A("s_lshl_b32 s44, s2, 13")
    A(f"s_lshl_b32 s10, s{S_W}, 11")
    A("s_add_u32 s44, s44, s10")
    A(f"s_add_u32 s44, s44, {WS_X}")
    A("s_lshl_b32 s45, s2, 10")
    A(f"s_lshl_b32 s10, s{S_W}, 8")
    A("s_add_u32 s45, s45, s10")
    A(f"s_add_u32 s45, s45, {WS_L}")
    A("s_waitcnt vmcnt(34)")
    g.stamp(2)
    for l in kcompute(CKA, SKA, "s43"): A(l)
    A("s_waitcnt vmcnt(11)")
    g.stamp(3)
    for l in vcompute("s42"): A(l)
    A(f"v_mov_b32 v{T+1}, 0")
    A(f"global_load_dword v{NON}, v{T+1}, s[{S_DBG}:{S_DBG+1}] sc1")
    kloads("s[22:23]", "s[24:25]", "s[26:27]")
    vloads("s[28:29]", "s[30:31]", "s[32:33]")
    A(f"v_mov_b32 v12, v{vKst}")
    A(f"v_mov_b32 v13, v{vSel}")
    A("s_lshl_b32 s10, s47, 5")
    A("s_lshl_b32 s11, s46, 5")
    A(f"s_mov_b32 s46, {F(QSCALE)}")
    A(f"s_mov_b32 s47, {F(QSCALE)}")
    trig("s10", 0, CQ, SQ, 46); trig("s10", 16, CQ + 4, SQ + 4, 46)
    trig("s11", 0, CQ + 8, SQ + 8, 46); trig("s11", 16, CQ + 12, SQ + 12, 46)
    A("s_waitcnt vmcnt(31)")
    for pc in range(4):
        X, it = pc >> 1, pc & 1
        r = QD + pc * 4
        for hh in range(2):
            for k in range(2):
                A(f"v_lshlrev_b32 v{QX+4*hh+2*k}, 16, v{r+2*hh+k}")
                A(f"v_and_b32 v{QX+4*hh+2*k+1}, 0xffff0000, v{r+2*hh+k}")
        for l in rope(QX, CQ + 4*pc, SQ + 4*pc, QU, QOUT): A(l)
        A(f"ds_write_b128 v{vQw}, {vr(QOUT, 4)} offset:{X*8192 + it*256}")
    for j in range(4):
        A(f"s_add_u32 s9, s{S_W}, {j}")
        A("s_and_b32 s9, s9, 3")
        A("s_lshl_b32 s9, s9, 11")
        A("s_add_u32 s9, s9, 8192")
        A(f"v_add_u32 v{V_OFFV + j}, s9, v{V_LANE16}")
    A(f"s_lshl_b32 s9, s{S_W}, 3")
    A("s_add_u32 s8, s8, s9")
    A(f"s_lshl_b32 s{S_TILE}, s8, 14")
    A(f"s_add_u32 s{S_TILE+1}, s{S_TILE}, 4096")
    for t in range(1, 8):
        A(f"s_add_u32 s{S_TILE + 2*t}, s{S_TILE}, {t * 16384}")
        A(f"s_add_u32 s{S_TILE + 2*t + 1}, s{S_TILE}, {t * 16384 + 4096}")
    A(f"s_lshl_b32 s9, s{S_QT}, 2")
    A("s_add_u32 s9, s9, s65")
    A(f"v_mov_b32 v{vMyF}, s9")
    A(f"s_lshl_b32 s9, s{S_W}, 5")
    A("s_add_u32 s9, s9, s65")
    A(f"v_and_b32 v{vPoll}, 7, v0")
    A(f"v_lshl_add_u32 v{vPoll}, v{vPoll}, 2, s9")
    A(f"v_lshrrev_b32 v{T+3}, 5, v0")
    for k in range(4):
        A(f"v_add_u32 v{8+k}, {2*k}, v{T+3}")
        A(f"v_xor_b32 v{8+k}, v{8+k}, v0")
        A(f"v_lshlrev_b32 v{8+k}, 4, v{8+k}")
    A(f"v_mov_b32 v{V_LA}, 0")
    A(f"v_mov_b32 v{V_LB}, 0")
    A("s_mov_b32 s10, 0")
    A("s_mov_b32 s65, 0")
    A("s_waitcnt vmcnt(28) lgkmcnt(0)")
    g.stamp(4)
    g.stamp_wait()
    A.label("L_NPOLL")
    A(f"v_readfirstlane_b32 s{S_XCC}, v{NON}")
    A("s_nop 1")
    A(f"s_sub_u32 s94, s{S_XCC}, s{S_T0}")
    A("s_add_u32 s94, s94, 500")
    A("s_cmp_lt_u32 s94, 2500")
    A(f"s_cselect_b32 s94, s{S_XCC}, 0")
    A("s_cmp_lg_u32 s94, 0")
    A("s_cbranch_scc1 L_NOK")
    A("s_add_u32 s10, s10, 1")
    A(f"s_cmp_ge_u32 s10, {opt.get('maxpoll0', 200)}")
    A("s_cbranch_scc1 L_NTIMEOUT")
    A(f"v_mov_b32 v{T+1}, 0")
    A(f"global_load_dword v{NON}, v{T+1}, s[{S_DBG}:{S_DBG+1}] sc1")
    A("s_waitcnt vmcnt(0)")
    A("s_branch L_NPOLL")
    A.label("L_NTIMEOUT")
    A(f"s_mov_b32 s{S_XCC}, 1")
    A("s_mov_b32 s65, 1")
    A.label("L_NOK")
    A(f"v_mov_b32 v{vFVal}, s{S_XCC}")
    A("s_barrier")
    A("s_mov_b64 exec, 1")
    A(f"global_store_dword v{vMyF}, v{vFVal}, s[38:39]")
    A("s_mov_b64 exec, -1")
    A(f"global_load_dword v{FL}, v{vPoll}, s[38:39] sc1")
    for ks in range(4):
        for X in range(2):
            A(f"ds_read_b128 {Qreg(X, ks)}, v{8 + (ks & 3)} offset:{(X * 8 + ks) * 1024}")
    g.stamp(5)
    A("s_mov_b32 s10, 0")
    A("s_cmp_lg_u32 s65, 0")
    A("s_cbranch_scc1 L_FOK")
    A.label("L_FPOLL")
    A("s_waitcnt vmcnt(0)")
    A(f"v_cmp_ne_u32 vcc, s{S_XCC}, v{FL}")
    A("s_nop 0")
    A("s_cbranch_vccz L_FOK")
    A("s_add_u32 s10, s10, 1")
    A(f"s_cmp_ge_u32 s10, {opt.get('maxpoll1', 400)}")
    A("s_cbranch_scc1 L_FTIMEOUT")
    A(f"global_load_dword v{FL}, v{vPoll}, s[38:39] sc1")
    A("s_branch L_FPOLL")
    A.label("L_FTIMEOUT")
    A("s_mov_b32 s65, 1")
    A.label("L_FOK")
    g.stamp(6)
    if opt.get("stamp"): A(f"s_mov_b32 s{ST0 + 2*11}, s10")
    seq = stream()
    for p in range(16): A(ring_load(seq, p, opt.get("ring_mod", "")))
    g.stamp(7)
    g.stamp_wait()
    for j in range(4): A(f"v_mov_b32 v{184 + j}, -1")
    A("v_lshlrev_b32 v183, 2, v0")
    g.stageB = kcompute(CKB, SKB, "s96", 12, 13) + vcompute("s97")
    g.s2regs = dict(vPoll=vPoll, vRes=vRes, vMyF=vMyF, vFVal=vFVal)

def gen_wavefail(g):
    A = g.A
    A.label("L_WAVEFAIL")
    A("s_mov_b64 exec, -1")
    A("s_waitcnt vmcnt(0) lgkmcnt(0)")
    A(f"v_lshlrev_b32 v19, 2, v0")
    for j in range(4): A(f"v_mov_b32 v{136 + j}, -1")
    A(f"buffer_store_dwordx4 v[136:139], v{V_LANE16}, s[{S_WS}:{S_WS+3}], s44 offen sc1")
    A(f"buffer_store_dwordx4 v[136:139], v{V_LANE16}, s[{S_WS}:{S_WS+3}], s44 offen offset:1024 sc1")
    A(f"buffer_store_dword v136, v19, s[{S_WS}:{S_WS+3}], s45 offen sc1")
    e = Epi(g)
    for l in e.address_setup(): A(l)
    A(f"v_mov_b32 v{V_LA}, 0x7fc00000")
    A(f"v_mov_b32 v{V_LB}, 0x7fc00000")
    for l in e.lwrite(0): A(l)
    A("s_waitcnt vmcnt(0)")
    A("s_branch L_EPI")

def gen_main(g):
    A, opt = g.A, g.opt
    if opt.get("align64"): A(".p2align 6")
    for _ in range(opt.get("prenop", 0)): A("s_nop 0")
    seq = stream()
    rmod = opt.get("ring_mod", "")
    pos_of = {(k, t, i): p for p, (k, t, i) in enumerate(seq)}
    ops = []
    def phase(kind, t, Xs=(0, 1)):
        if len(Xs) == 2:
            for i in range(8):
                for X in (0, 1): ops.append((kind, t, i, X))
        else:
            for i in range(8): ops.append((kind, t, i, Xs[0]))
    if opt.get("xsplit0", 0): phase("K", 0, (0,)); phase("K", 0, (1,))
    else: phase("K", 0)
    for t in range(6):
        phase("K", t + 1); phase("V", t)
    if opt.get("xsplit7", 0): phase("K", 7, (0,)); phase("K", 7, (1,))
    else: phase("K", 7)
    if opt.get("tailorder", 0) == 1:
        phase("V", 6, (0,)); phase("V", 6, (1,)); phase("V", 7, (0,))
        iB = len(ops)
        phase("V", 7, (1,))
    else:
        phase("V", 6, (0,)); phase("V", 7, (0,))
        iB = len(ops)
        phase("V", 6, (1,)); phase("V", 7, (1,))
    NG = len(ops); assert NG == 256
    first, last = {}, {}
    for n, (k, t, i, X) in enumerate(ops):
        p = pos_of[(k, t, i)]
        first.setdefault(p, n); last[p] = n
    lastS = {}
    for n, (k, t, i, X) in enumerate(ops):
        if k == "K": lastS[(t, X)] = n
    firstP = {}
    for n, (k, t, i, X) in enumerate(ops):
        if k == "V": firstP.setdefault((t, X, i >> 2), n)
    tasks = []
    for t in range(8):
        if t < 7:
            order = [(0, 0), (1, 0), (0, 1), (1, 1)]
        else:
            order = [(0, 0), (0, 1), (1, 0), (1, 1)]
        if t == 6: order = [(0, 0), (0, 1), (1, 0), (1, 1)]
        for X, half in order:
            for j in range(8 * half, 8 * half + 8): tasks.append((t, X, j))
    def avail(t, X):
        lag = opt.get("lag0", 5) if t == 0 else opt.get("lag", 3)
        return lastS[(t, X)] + lag + (0 if X == 1 else 1)
    def deadline(t, X, j): return firstP[(t, X, j >> 3)]
    plan = [[] for _ in range(NG)]
    MARG = 3
    CAP = opt.get("cap", 2)
    if opt.get("edf", 1):
        tasks.sort(key=lambda x: (deadline(*x), x[0], x[1], x[2]))
        LS = {}; cnt = {}
        nxt = {}
        for x in reversed(tasks):
            gg = deadline(*x) - MARG
            key = (x[0], x[1])
            if key in nxt: gg = min(gg, nxt[key])
            while cnt.get(gg, 0) >= CAP: gg -= 1
            cnt[gg] = cnt.get(gg, 0) + 1
            LS[x] = gg; nxt[key] = gg
        remaining = list(tasks)
        for gg in range(NG):
            n = 0
            while True:
                av = [x for x in remaining if avail(x[0], x[1]) <= gg and all(not (y[0] == x[0] and y[1] == x[1] and y[2] < x[2]) for y in remaining)]
                if not av: break
                must = [x for x in av if LS[x] <= gg]
                if must: x = min(must, key=lambda y: LS[y])
                elif n < 1: x = av[0]
                else: break
                if n >= CAP: break
                plan[gg].append(x); remaining.remove(x); n += 1
            for x in remaining: assert deadline(*x) - MARG > gg, ("deadline miss", gg, x)
        assert not remaining
    else:
        LS = [0] * len(tasks); cnt = {}; nxt = 10 ** 9
        for k in range(len(tasks) - 1, -1, -1):
            t, X, j = tasks[k]
            gg = min(deadline(t, X, j) - MARG, nxt)
            while cnt.get(gg, 0) >= CAP: gg -= 1
            cnt[gg] = cnt.get(gg, 0) + 1
            LS[k] = gg; nxt = gg
        done = 0
        for gg in range(NG):
            n = 0
            while done < len(tasks) and avail(tasks[done][0], tasks[done][1]) <= gg and (n < 1 or LS[done] <= gg):
                plan[gg].append(tasks[done]); done += 1; n += 1
            if done < len(tasks): assert LS[done] > gg, ("deadline miss", gg, tasks[done], LS[done])
        assert done == len(tasks)
    if opt.get("show_plan"):
        print("elements per gap:", "".join(str(len(x)) for x in plan), file=sys.stderr)
    st = dict(add=[], cvt=[])
    E64 = "_e64" if opt.get("e64") else ""
    def fillers(gg):
        out = []
        adds, cvts = st["add"], st["cvt"]
        st["add"], st["cvt"] = [], []
        exps = []
        PKA = opt.get("pkadd", 0)
        DOT = opt.get("dotsum", 0)
        for (t, X, j) in plan[gg]:
            s = Sreg(t & 1, X) + j
            exps.append(f"v_exp_f32{E64} v{s}, v{s}")
            if not DOT and (not PKA or (j & 1)): st["add"].append((t, X, j))
            if j & 1: st["cvt"].append((t, X, j))
        rest = []
        for (t, X, j) in adds:
            if DOT:
                rest.append(f"v_dot2c_f32_bf16 v{V_LA + X}, s95, v{Preg(t & 1, X) + (j >> 1)}")
            elif PKA:
                sp = Sreg(t & 1, X) + j - 1
                rest.append(f"v_pk_add_f32 {vr(188 + 2 * X, 2)}, {vr(188 + 2 * X, 2)}, {vr(sp, 2)}")
            else:
                rest.append(f"v_add_f32{E64} v{V_LA + X}, v{V_LA + X}, v{Sreg(t & 1, X) + j}")
        for (t, X, j) in cvts:
            s = Sreg(t & 1, X) + j
            rest.append(f"v_cvt_pk_bf16_f32 v{Preg(t & 1, X) + (j >> 1)}, v{s - 1}, v{s}")
            if DOT: st["add"].append((t, X, j))
        while exps or rest:
            if exps: out.append(exps.pop(0))
            if rest: out.append(rest.pop(0))
            if rest and not exps: out += rest; rest = []
        return out
    extra = {n: [] for n in range(NG)}
    if opt.get("xsplit0", 0):
        for n in range(8, 13): extra[n].append("s_nop 2")
    epi = Epi(g)
    pre = epi.address_setup()
    for k, ins in enumerate(pre):
        extra[200 + k // 2].append(ins)
    wa = epi.lwrite(0) + epi.owrite(0)
    if opt.get("pkadd"): wa = [f"v_add_f32 v{V_LA}, v188, v189"] + wa
    lastA_add = max(n for n in range(NG) for (t, X, j) in plan[n] if X == 0) + 1 + (4 if opt.get("dotsum") else 0)
    startA = max(iB + 1, lastA_add + 1)
    TAIL2 = opt.get("tail2", 0)
    if not TAIL2:
        startA = max(iB + 2, lastA_add + 1)
        for k, ins in enumerate(wa):
            extra[min(NG - 4, startA + k)].append(ins)
    else:
        for k, ins in enumerate(wa):
            extra[startA + (k + 1) // 2].append(ins)
        gb = opt.get("tail_bar", 250)
        extra[gb].append("s_waitcnt lgkmcnt(0)")
        extra[gb].append("s_barrier")
        rd = epi.oread(0)
        per = -(-len(rd) // (NG - gb))
        for k, ins in enumerate(rd):
            extra[gb + k // per].append(ins)
    DEPTH = opt.get("depth", 16)
    SPLIT = opt.get("split", 0)
    PROG = opt.get("prog", 0)
    STAGE2 = opt.get("stage2", 0)
    if STAGE2: order = list(range(DEPTH))
    elif SPLIT: order = ["vflag"] + list(range(DEPTH)) + ["s0", "s1", "s2"]
    elif PROG or opt.get("sent_in_loop", 0): order = list(range(DEPTH))
    else: order = list(range(DEPTH)) + ["s0", "s1", "s2"]
    SENTL = (PROG or opt.get("sent_in_loop", 0)) and not SPLIT and not STAGE2
    sent_ins = [f"buffer_store_dwordx4 v[136:139], v{V_LANE16}, s[{S_WS}:{S_WS+3}], s44 offen sc1",
                f"buffer_store_dwordx4 v[136:139], v{V_LANE16}, s[{S_WS}:{S_WS+3}], s44 offen offset:1024 sc1",
                f"buffer_store_dword v136, v185, s[{S_WS}:{S_WS+3}], s45 offen sc1"]
    def younger(x): return len(order) - 1 - order.index(x)
    sched = {}
    loaded = set(range(DEPTH))
    bal = opt.get("bal", 1)
    for n, (k, t, i, X) in enumerate(ops):
        p = pos_of[(k, t, i)]
        trigger = (first[p] == n) if bal else (last[p] == n)
        if trigger and p + DEPTH < 128:
            q = p + DEPTH
            if SPLIT and p < 8: q = 24 + p
            elif SPLIT and p < 16: continue
            sched.setdefault(n, []).append(q)
    if SPLIT:
        for j in range(8): sched.setdefault(16 + j, []).append(16 + j)
    for n, (k, t, i, X) in enumerate(ops):
        p = pos_of[(k, t, i)]
        if n in (0, 16, 32, 128, 240): A.c(f"---- mfma {n}: {k}{t} i{i} X{X}")
        if opt.get("stamp") and opt.get("loopstamp") == 1 and n in (32, 64, 96, 128, 160, 192, 224):
            g.stamp(n // 32)
        if opt.get("stamp") and opt.get("loopstamp") == 2 and n in (17, 24, 32, 40, 48, 64):
            g.stamp({17: 1, 24: 2, 32: 3, 40: 4, 48: 5, 64: 6}[n])
        if opt.get("stamp") and opt.get("loopstamp") == 3 and n in (208, 216, 224, 232, 240, 248):
            g.stamp({208: 1, 216: 2, 224: 3, 232: 4, 240: 5, 248: 6}[n])
        if STAGE2 and n == 80:
            R = g.s2regs
            A(f"s_waitcnt vmcnt({younger('vpoll')})")
            A("s_mov_b32 s10, 0")
            A.label("L_VPOLL")
            A(f"v_cmp_ne_u32 vcc, s{S_XCC}, v{R['vRes']}")
            A("s_nop 0")
            A("s_cbranch_vccz L_VOK")
            A("s_add_u32 s10, s10, 1")
            A(f"s_cmp_ge_u32 s10, {opt.get('maxpoll1', 400)}")
            A("s_cbranch_scc1 L_WAVEFAIL")
            A(f"global_load_dword v{R['vRes']}, v{R['vPoll']}, s[38:39] offset:128 sc1")
            A("s_waitcnt vmcnt(0)")
            A("s_branch L_VPOLL")
            A.label("L_VOK")
        if (SPLIT or PROG) and n == 16:
            A(f"s_waitcnt vmcnt({younger('vpoll')})")
            A("s_mov_b32 s10, 0")
            A.label("L_VPOLL")
            A(f"v_cmp_ne_u32 vcc, s{S_XCC}, v187")
            A("s_nop 0")
            A("s_cbranch_vccz L_VOK")
            A("s_add_u32 s10, s10, 1")
            A(f"s_cmp_ge_u32 s10, {opt.get('maxpoll1', 400)}")
            A("s_cbranch_scc1 L_WAVEFAIL")
            A(f"global_load_dword v187, v186, s[38:39] offset:{128 if SPLIT else 0} sc1")
            A("s_waitcnt vmcnt(0)")
            A("s_branch L_VPOLL")
            A.label("L_VOK")
        if first[p] == n:
            w = f"s_waitcnt vmcnt({younger(p)})"
            if k == "K" and t == 0:
                if opt.get("xsplit0", 0): w += " lgkmcnt(0)" if i == 0 or i == 4 else ""
                else:
                    nq = min(7, i + 3) - i
                    w += f" lgkmcnt({2 * nq})"
            A(w)
            if opt.get("e64"): A("s_nop 0")
        frag = ring(p)
        if k == "K":
            S = vr(Sreg(t & 1, X), 16)
            C = "0" if i == 0 else S
            A(f"v_mfma_f32_32x32x16_bf16 {S}, {frag}, {Qreg(X, i)}, {C}")
        else:
            j, ks = i & 3, i >> 2
            O = Oreg(X, j)
            C = "0" if (t == 0 and ks == 0) else O
            A(f"v_mfma_f32_32x32x16_bf16 {O}, {frag}, {vr(Preg(t & 1, X) + 4 * ks, 4)}, {C}")
        fl = fillers(n)
        for q in sched.get(n, []):
            assert last.get(q - RINGSZ, -1) < n + (0 if bal else 1), (q, n)
            fl.insert(min(opt.get("ldpos", 0), len(fl)), ring_load(seq, q, rmod)); order.append(q); loaded.add(q)
        if STAGE2:
            R = g.s2regs
            if n < 16:
                nb = len(g.stageB); lo = (n * nb) // 16; hi = ((n + 1) * nb) // 16
                for ins in g.stageB[lo:hi]:
                    fl.append(ins)
                    if ins.startswith("buffer_store"): order.append("bst%d" % len([o for o in order if str(o).startswith("bst")]))
            if n == opt.get("bpub", 44):
                fl += [f"s_waitcnt vmcnt({younger('bst1')})", "s_barrier", "s_mov_b64 exec, 1",
                       f"global_store_dword v{R['vMyF']}, v{R['vFVal']}, s[38:39] offset:128", "s_mov_b64 exec, -1",
                       "s_cmp_lg_u32 s65, 0", "s_cbranch_scc1 L_WAVEFAIL"]
                order.append("bflag")
            if n in (50, 52, 54):
                k3 = (n - 50) // 2
                fl.append([f"buffer_store_dwordx4 v[184:187], v{V_LANE16}, s[{S_WS}:{S_WS+3}], s44 offen sc1",
                           f"buffer_store_dwordx4 v[184:187], v{V_LANE16}, s[{S_WS}:{S_WS+3}], s44 offen offset:1024 sc1",
                           f"buffer_store_dword v184, v183, s[{S_WS}:{S_WS+3}], s45 offen sc1"][k3]); order.append(f"s{n}")
            if n == opt.get("bpoll", 66):
                fl.append(f"global_load_dword v{R['vRes']}, v{R['vPoll']}, s[38:39] offset:128 sc1"); order.append("vpoll")
        if SENTL and n in (17, 19, 21):
            fl.append(sent_ins[(n - 17) // 2]); order.append(f"s{n}")
        if (SPLIT or PROG) and n == opt.get("vpoll_at", 9):
            fl.append(f"global_load_dword v187, v186, s[38:39] offset:{128 if SPLIT else 0} sc1"); order.append("vpoll")
        if opt.get("xsplit0", 0):
            if n == 0:
                for ks4 in range(4, 8):
                    for XX in range(2):
                        fl.append(f"ds_read_b128 {Qreg(XX, ks4)}, v{8 + (ks4 & 3)} offset:{(XX * 8 + ks4) * 1024}")
        elif k == "K" and t == 0 and X == 1 and i + 4 <= 7:
            for XX in range(2):
                fl.append(f"ds_read_b128 {Qreg(XX, i + 4)}, v{8 + ((i + 4) & 3)} offset:{(XX * 8 + i + 4) * 1024}")
        fl += extra[n]
        dbgdrop = opt.get("drop", "")
        if "a" in dbgdrop: fl = [l for l in fl if not l.startswith("v_add_f32 v6,") and not l.startswith("v_add_f32 v7,")]
        if "e" in dbgdrop: fl = [l for l in fl if not l.startswith("v_exp_f32")]
        if "c" in dbgdrop: fl = [l for l in fl if not l.startswith("v_cvt_pk")]
        for l in fl: A(l)
    issued = len(loaded)
    assert issued == 128
    assert not st["cvt"]
    for (t, X, j) in st["add"]:
        if opt.get("dotsum"):
            A(f"v_dot2c_f32_bf16 v{V_LA + X}, s95, v{Preg(t & 1, X) + (j >> 1)}")
        elif opt.get("pkadd"):
            A(f"v_pk_add_f32 {vr(188 + 2 * X, 2)}, {vr(188 + 2 * X, 2)}, {vr(Sreg(t & 1, X) + j - 1, 2)}")
        else:
            A(f"v_add_f32 v{V_LA + X}, v{V_LA + X}, v{Sreg(t & 1, X) + j}")
    if opt.get("pkadd"): A(f"v_add_f32 v{V_LB}, v190, v191")
    epi.finish()

class Epi:
    vWr = [None, 8, 9, 10]; vRd = 11; vLw = 12; vLr = 13; vX = 14
    TA = V_S
    TL = 64
    PK = 72
    RX = 80
    def __init__(self, g): self.g = g; self.A = g.A; self.opt = g.opt
    def address_setup(self):
        L = []
        for j in range(1, 4):
            L += [f"s_add_u32 s9, s{S_W}, {j}", "s_and_b32 s9, s9, 3", "s_mul_i32 s9, s9, 12288",
                  f"s_add_u32 s9, s9, {RED_A + (j - 1) * 4096}", f"v_add_u32 v{self.vWr[j]}, s9, v{V_LANE16}"]
        L += [f"s_mul_i32 s9, s{S_W}, 12288", f"s_add_u32 s9, s9, {RED_A}", f"v_add_u32 v{self.vRd}, s9, v{V_LANE16}"]
        L += ["v_and_b32 v15, 31, v0", f"v_lshlrev_b32 v{self.vLr}, 5, v15", f"v_add_u32 v{self.vLr}, {LRED}, v{self.vLr}",
              "v_lshrrev_b32 v15, 5, v0", f"v_lshl_add_u32 v{self.vLw}, v15, 2, v{self.vLr}",
              f"s_lshl_b32 s9, s{S_W}, 3", f"v_add_u32 v{self.vLw}, s9, v{self.vLw}",
              f"v_lshlrev_b32 v{self.vX}, 2, v0"]
        L += ["s_xor_b32 s46, s44, 8192", "s_xor_b32 s47, s45, 1024"]
        L += [f"s_lshl_b32 s9, s{S_H}, 6", f"s_lshl_b32 s10, s{S_QT}, 1", "s_add_u32 s9, s9, s10", f"s_add_u32 s9, s9, s{S_SP}",
              "s_lshl_b32 s9, s9, 13", f"s_lshl_b32 s10, s{S_W}, 6", "s_add_u32 s42, s9, s10",
              "v_and_b32 v15, 31, v0", "v_lshlrev_b32 v15, 8, v15"]
        L += [f"s_mov_b32 s{S_OUT}, s{S_OUTP}", f"s_and_b32 s{S_OUT+1}, s{S_OUTP+1}, 0xffff", f"s_mov_b32 s{S_OUT+2}, {2 << 20}", f"s_mov_b32 s{S_OUT+3}, 0x20000"]
        return L
    def lwrite(self, X):
        return [f"ds_write_b32 v{self.vLw}, v{V_LA + X} offset:{X * 1024}"]
    def owrite(self, X):
        L = []
        for j in range(1, 4):
            for qd in range(4):
                a = A_O + X * 48 + (j - 1) * 16 + qd * 4
                L.append(f"ds_write_b128 v{self.vWr[j]}, {ar(a, 4)} offset:{X * RED_BOFF + qd * 1024}")
        return L
    def oread(self, X):
        L = [f"ds_read_b128 {vr(self.TL, 4)}, v{self.vLr} offset:{X * 1024}",
             f"ds_read_b128 {vr(self.TL + 4, 4)}, v{self.vLr} offset:{X * 1024 + 16}"]
        for j in range(1, 4):
            for qd in range(4):
                L.append(f"ds_read_b128 {vr(self.TA + (j - 1) * 16 + qd * 4, 4)}, v{self.vRd} offset:{X * RED_BOFF + (j - 1) * 4096 + qd * 1024}")
        return L
    def sums(self, X):
        A = self.A; TL = self.TL; O = V_O0 + 16 * X
        A(f"v_add_f32 v{TL}, v{TL}, v{TL + 1}")
        A(f"v_add_f32 v{TL + 2}, v{TL + 2}, v{TL + 3}")
        A(f"v_add_f32 v{TL + 4}, v{TL + 4}, v{TL + 5}")
        A(f"v_add_f32 v{TL + 6}, v{TL + 6}, v{TL + 7}")
        A(f"v_add_f32 v{TL}, v{TL}, v{TL + 2}")
        A(f"v_add_f32 v{TL + 4}, v{TL + 4}, v{TL + 6}")
        A(f"v_add_f32 v{V_LA + X}, v{TL}, v{TL + 4}")
        for j in range(3):
            for r in range(0, 16, 2):
                A(f"v_pk_add_f32 {vr(O + r, 2)}, {vr(O + r, 2)}, {vr(self.TA + j * 16 + r, 2)}")
    def finish(self):
        g, A, opt = self.g, self.A, self.opt
        PK, RX = self.PK, self.RX
        A.c("==== epilogue")
        A.label("L_EPI")
        g.stamp(8)
        ws = f"s[{S_WS}:{S_WS+3}]"
        es = opt.get("epistamp")
        if not opt.get("tail2"):
            A("s_waitcnt lgkmcnt(0)")
            if es: g.stamp(1)
            A("s_barrier")
            if es: g.stamp(2); g.stamp_wait()
            for l in self.oread(0): A(l)
            for l in self.lwrite(1): A(l)
            A("s_waitcnt lgkmcnt(1)")
        else:
            for l in self.lwrite(1): A(l)
            A("s_waitcnt lgkmcnt(1)")
        if es: g.stamp(3)
        self.sums(0)
        for k in range(8):
            A(f"v_cvt_pk_bf16_f32 v{PK + k}, v{V_O0 + 2 * k}, v{V_O0 + 2 * k + 1}")
        omod = opt.get("xchg_mod", "sc1")
        A(f"buffer_store_dwordx4 {vr(PK, 4)}, v{V_LANE16}, {ws}, s46 offen {omod}")
        A(f"buffer_store_dwordx4 {vr(PK + 4, 4)}, v{V_LANE16}, {ws}, s46 offen offset:1024 {omod}")
        A(f"buffer_store_dword v{V_LA}, v{self.vX}, {ws}, s47 offen {omod}")
        g.stamp(9)
        def poll(R=RX):
            pm = opt.get("poll_mod", "sc1")
            A(f"buffer_load_dwordx4 {vr(R, 4)}, v{V_LANE16}, {ws}, s44 offen {pm}")
            A(f"buffer_load_dwordx4 {vr(R + 4, 4)}, v{V_LANE16}, {ws}, s44 offen offset:1024 {pm}")
            A(f"buffer_load_dword v{R + 8}, v{self.vX}, {ws}, s45 offen {pm}")
        def test(R=RX):
            A(f"v_max3_u32 v90, v{R}, v{R + 1}, v{R + 2}")
            A(f"v_max3_u32 v91, v{R + 3}, v{R + 4}, v{R + 5}")
            A(f"v_max3_u32 v92, v{R + 6}, v{R + 7}, v{R + 8}")
            A("v_max3_u32 v90, v90, v91, v92")
            A("v_cmp_eq_u32 vcc, -1, v90")
        RX2 = 100
        dbl = opt.get("dblpoll", 0)
        if dbl == 1: poll()
        pp = opt.get("pollpos", 12)
        for k, l in enumerate(self.owrite(1)):
            if k == pp: poll(RX)
            A(l)
        if pp >= 12: poll(RX2 if dbl == 1 else RX)
        if es: g.stamp(4)
        A("s_waitcnt lgkmcnt(0)")
        if es: g.stamp(5)
        A("s_barrier")
        if es: g.stamp(6); g.stamp_wait()
        for l in self.oread(1): A(l)
        A("s_mov_b32 s10, 0")
        if dbl == 2:
            A("s_waitcnt lgkmcnt(7)")
            poll(RX2)
        A("s_waitcnt lgkmcnt(0)")
        self.sums(1)
        if es: g.stamp(7)
        if dbl:
            A("s_waitcnt vmcnt(3)")
            test(RX)
            A("s_nop 1")
            A("s_cbranch_vccz L_GOT")
            A("s_waitcnt vmcnt(0)")
            for k in range(9): A(f"v_mov_b32 v{RX + k}, v{RX2 + k}")
            A("s_branch L_POLLT")
        else:
            A("s_branch L_POLLW")
        A.label("L_POLL")
        poll()
        A.label("L_POLLW")
        A("s_waitcnt vmcnt(0)")
        A.label("L_POLLT")
        test(RX)
        A("s_add_u32 s10, s10, 1")
        A(f"s_cmp_ge_u32 s10, {opt.get('maxpoll2', 200)}")
        A("s_cbranch_scc1 L_FALLBACK")
        A("s_cbranch_vccnz L_POLL")
        A.label("L_GOT")
        g.stamp(10)
        if opt.get("stamp"): A(f"s_mov_b32 s{ST0 + 2*11 + 1}, s10")
        O = V_O0 + 16
        A(f"v_add_f32 v{V_LB}, v{V_LB}, v{RX + 8}")
        for k in range(8):
            A(f"v_lshlrev_b32 v{16 + 2 * k}, 16, v{RX + k}")
            A(f"v_and_b32 v{17 + 2 * k}, 0xffff0000, v{RX + k}")
        A(f"v_rcp_f32 v32, v{V_LB}")
        for r in range(0, 16, 2):
            A(f"v_pk_add_f32 {vr(O + r, 2)}, {vr(O + r, 2)}, {vr(16 + r, 2)}")
        A("v_pk_mul_f32 v[34:35], v[%d:%d], 0" % (O, O + 1))
        for r in range(2, 16, 2):
            A(f"v_pk_fma_f32 v[34:35], {vr(O + r, 2)}, 0, v[34:35]")
        A(f"s_mov_b32 s9, {F(2.0 ** -30)}")
        A(f"s_mov_b32 s10, {F(2.0 ** 30)}")
        A(f"v_cmp_le_f32 s[46:47], s9, v{V_LB}")
        A(f"v_cmp_ge_f32 s[8:9], s10, v{V_LB}")
        A("v_cmp_o_f32 vcc, v34, v35")
        A("v_mov_b32 v33, v32")
        A("s_and_b64 s[46:47], s[46:47], s[8:9]")
        A("s_and_b64 s[46:47], s[46:47], vcc")
        A("s_cmp_eq_u64 s[46:47], exec")
        if not opt.get("nocheck"): A("s_cbranch_scc0 L_FALLBACK")
        for r in range(0, 16, 2):
            A(f"v_pk_mul_f32 {vr(O + r, 2)}, {vr(O + r, 2)}, v[32:33]")
        A.label("L_STORE")
        for k in range(8):
            A(f"v_cvt_pk_bf16_f32 v{PK + k}, v{O + 2 * k}, v{O + 2 * k + 1}")
        A("v_lshrrev_b32 v37, 5, v0")
        A("v_lshl_add_u32 v36, v37, 5, v15")
        om = opt.get("out_mod", "nt")
        A(f"buffer_store_dwordx4 {vr(PK, 4)}, v36, s[{S_OUT}:{S_OUT+3}], s42 offen {om}")
        A(f"buffer_store_dwordx4 {vr(PK + 4, 4)}, v36, s[{S_OUT}:{S_OUT+3}], s42 offen offset:16 {om}")
        if opt.get("stamp"):
            A("s_waitcnt vmcnt(0)")
            g.stamp(12)
            A("s_waitcnt lgkmcnt(0)")
            if opt.get("dbgstamp"):
                A("s_mov_b64 exec, 1")
                A("v_mov_b32 v174, 0")
                A(f"s_not_b32 s98, s{ST0}")
                A("v_mov_b32 v175, s98")
                A(f"global_atomic_umax v174, v175, s[{S_DBG}:{S_DBG+1}] offset:4 sc1")
                for k, idx in enumerate((1, 2, 3, 4, 6, 7, 8, 9, 10, 12)):
                    A(f"v_mov_b32 v175, s{ST0 + 2 * idx}")
                    A(f"global_atomic_umax v174, v175, s[{S_DBG}:{S_DBG+1}] offset:{8 + 4 * k} sc1")
                A("s_endpgm")
            A("s_lshl_b32 s98, s2, 2")
            A(f"s_add_u32 s98, s98, s{S_W}")
            A("s_lshl_b32 s98, s98, 7")
            A(f"s_add_u32 s98, s98, {WS_STAMP}")
            A("v_mov_b32 v174, s98")
            A("s_mov_b64 exec, 1")
            for i in range(13):
                A(f"v_mov_b32 v175, s{ST0 + 2 * i}")
                A(f"global_store_dword v174, v175, s[38:39] offset:{4 * i}")
            A(f"v_mov_b32 v175, s{ST0 + 2*11 + 1}")
            A(f"global_store_dword v174, v175, s[38:39] offset:{4 * 13}")
        A.label("L_END")
        A("s_endpgm")

def gen_fallback(g):
    A, opt = g.A, g.opt
    S = 16; P = 32; XL = 40; KS = 48; KZ = 50; CS = 52; SN = 56; U = 60; KF = 68; QF = 72; WV = 76
    VX = 80; VS = 88; VZ = 96; VF = 104
    M, L, T0, T1, POS, vM, vH, vA = 108, 109, 110, 111, 144, 145, 146, 147
    vKo, vSo, vVo, vVso = 148, 149, 150, 151
    O = V_O0 + 16
    A.label("L_FALLBACK")
    A("s_waitcnt vmcnt(0) lgkmcnt(0)")
    A(f"s_load_dwordx16 s[{S_ARG}:{S_ARG+15}], s[0:1], 0")
    A(f"v_and_b32 v{vM}, 31, v0")
    A(f"v_lshrrev_b32 v{vH}, 5, v0")
    A(f"v_lshlrev_b32 v{vKo}, 9, v{vM}")
    A(f"v_lshl_add_u32 v{vKo}, v{vH}, 4, v{vKo}")
    A(f"v_lshlrev_b32 v{vSo}, 3, v{vM}")
    A(f"v_bfe_u32 v{T0}, v{vM}, 2, 1")
    A(f"v_lshlrev_b32 v{T0}, 4, v{T0}")
    A(f"v_lshrrev_b32 v{T1}, 3, v{vM}")
    A(f"v_lshl_add_u32 v{T0}, v{T1}, 2, v{T0}")
    A(f"v_and_b32 v{T1}, 3, v{vM}")
    A(f"v_add_u32 v{T0}, v{T0}, v{T1}")
    A(f"s_lshl_b32 s9, s{S_W}, 5")
    A(f"v_add_u32 v{T0}, s9, v{T0}")
    A(f"v_lshlrev_b32 v{T0}, 2, v{T0}")
    A(f"v_lshl_add_u32 v{vVo}, v{vH}, 11, v{T0}")
    A(f"s_lshl_b32 s9, s{S_W}, 1")
    A(f"v_lshlrev_b32 v{vVso}, 5, v{vH}")
    A(f"v_add_u32 v{vVso}, s9, v{vVso}")
    A(f"v_mov_b32 v{M}, 0xff800000")
    A(f"v_mov_b32 v{L}, 0")
    for r in range(16): A(f"v_mov_b32 v{O + r}, 0")
    A("s_waitcnt lgkmcnt(0)")
    A(f"s_lshl_b32 s8, s{S_H}, 20")
    A(f"s_lshl_b32 s9, s{S_H}, 14")
    add64(A, 22, 22, "s8"); add64(A, 28, 28, "s8")
    add64(A, 24, 24, "s9"); add64(A, 26, 26, "s9"); add64(A, 30, 30, "s9"); add64(A, 32, 32, "s9")
    A("s_mov_b32 s48, 0")
    A.label("L_FB_TILE")
    A(f"global_load_dwordx2 {vr(KS, 2)}, v{vSo}, s[24:25]")
    A(f"global_load_dwordx2 {vr(KZ, 2)}, v{vSo}, s[26:27]")
    A("s_lshl_b32 s49, s48, 5")
    A(f"v_add_u32 v{POS}, s49, v{vM}")
    A(f"v_cvt_f32_u32 v{POS}, v{POS}")
    for r in range(16): A(f"v_mov_b32 v{S + r}, 0")
    A("s_mov_b32 s50, 0")
    A.label("L_FB_KS")
    A("s_lshl_b32 s51, s50, 5")
    A(f"v_add_u32 v{vA}, s51, v{vKo}")
    A(f"global_load_dwordx4 {vr(XL, 4)}, v{vA}, s[22:23]")
    A(f"global_load_dwordx4 {vr(XL + 4, 4)}, v{vA}, s[22:23] offset:256")
    A("s_and_b32 s51, s50, 3")
    A("s_lshl_b32 s51, s51, 1")
    A(f"v_add_u32 v{vA}, s51, v{vH}")
    A(f"v_xor_b32 v{vA}, v{vA}, v0")
    A(f"v_lshlrev_b32 v{vA}, 4, v{vA}")
    A("s_lshl_b32 s51, s50, 10")
    A("s_add_u32 s51, s51, 8192")
    A(f"v_add_u32 v{vA}, s51, v{vA}")
    A(f"ds_read_b128 {vr(QF, 4)}, v{vA}")
    A("s_lshl_b32 s51, s50, 1")
    A(f"v_add_u32 v{T0}, s51, v{vH}")
    A(f"v_lshlrev_b32 v{T0}, 2, v{T0}")
    A(f"v_cvt_f32_u32 v{T0}, v{T0}")
    A(f"s_mov_b32 s51, {F(TRIG_A)}")
    for j in range(4): A(f"v_mov_b32 v{WV + j}, {F(TRIG_B + j * TRIG_A)}")
    for j in range(4): A(f"v_fma_f32 v{WV + j}, v{T0}, s51, v{WV + j}")
    for j in range(4): A(f"v_exp_f32 v{WV + j}, v{WV + j}")
    A("s_nop 0")
    for j in range(4): A(f"v_mul_f32 v{WV + j}, v{POS}, v{WV + j}")
    for j in range(4): A(f"v_fract_f32 v{WV + j}, v{WV + j}")
    for j in range(4):
        A(f"v_cos_f32 v{CS + j}, v{WV + j}")
        A(f"v_sin_f32 v{SN + j}, v{WV + j}")
    A("s_cmp_lt_u32 s50, 4")
    A("s_cselect_b32 s51, 16, 0")
    A("s_waitcnt vmcnt(0) lgkmcnt(0)")
    for k, src in enumerate((KS, KS + 1, KZ, KZ + 1)):
        A(f"v_lshlrev_b32 v{U + k}, s51, v{src}")
    for k in range(4): A(f"v_and_b32 v{WV + k}, 0xffff0000, v{U + k}")
    for j in range(8): A(f"v_cvt_f32_i32 v{XL + j}, v{XL + j}")
    for j in range(8): A(f"v_sub_f32 v{XL + j}, v{XL + j}, v{WV + 2 + (j >> 2)}")
    for j in range(8): A(f"v_mul_f32 v{XL + j}, v{XL + j}, v{WV + (j >> 2)}")
    for j in range(4):
        A(f"v_mul_f32 v{U + j}, v{XL + 4 + j}, v{SN + j}")
        A(f"v_mul_f32 v{U + 4 + j}, v{XL + j}, v{SN + j}")
    for j in range(4):
        A(f"v_fma_f32 v{U + j}, v{XL + j}, v{CS + j}, -v{U + j}")
        A(f"v_fma_f32 v{U + 4 + j}, v{XL + 4 + j}, v{CS + j}, v{U + 4 + j}")
    for k in range(4): A(f"v_cvt_pk_bf16_f32 v{KF + k}, v{U + 2 * k}, v{U + 2 * k + 1}")
    A("s_nop 1")
    A(f"v_mfma_f32_32x32x16_bf16 {vr(S, 16)}, {vr(KF, 4)}, {vr(QF, 4)}, {vr(S, 16)}")
    A("s_nop 15")
    A("s_add_u32 s50, s50, 1")
    A("s_cmp_lt_u32 s50, 8")
    A("s_cbranch_scc1 L_FB_KS")
    A(f"v_max3_f32 v{T0}, v{S}, v{S + 1}, v{S + 2}")
    for r in range(3, 15, 2): A(f"v_max3_f32 v{T0}, v{T0}, v{S + r}, v{S + r + 1}")
    A(f"v_max_f32 v{T0}, v{T0}, v{S + 15}")
    A(f"v_mov_b32 v{T1}, v{T0}")
    A("s_nop 1")
    A(f"v_permlane32_swap_b32 v{T0}, v{T1}")
    A("s_nop 1")
    A(f"v_max3_f32 v{T0}, v{T0}, v{T1}, v{M}")
    A(f"v_sub_f32 v{T1}, v{M}, v{T0}")
    A(f"v_exp_f32 v{T1}, v{T1}")
    A(f"v_mov_b32 v{M}, v{T0}")
    for r in range(16): A(f"v_sub_f32 v{S + r}, v{S + r}, v{T0}")
    for r in range(16): A(f"v_exp_f32 v{S + r}, v{S + r}")
    A(f"v_mul_f32 v{L}, v{L}, v{T1}")
    for r in range(16): A(f"v_mul_f32 v{O + r}, v{O + r}, v{T1}")
    for r in range(16): A(f"v_add_f32 v{L}, v{L}, v{S + r}")
    for k in range(8): A(f"v_cvt_pk_bf16_f32 v{P + k}, v{S + 2 * k}, v{S + 2 * k + 1}")
    for kst in range(2):
        A(f"v_add_u32 v{vA}, {kst * 8192}, v{vVo}")
        A(f"v_add_u32 v{T0}, {kst * 8192 + 4096}, v{vVo}")
        for i in range(8):
            A(f"global_load_dword v{VX + i}, v{vA if i < 4 else T0}, s[28:29] offset:{(i & 3) * 512}")
        for i in range(8):
            ro = (16 * kst + 8 * (i >> 2) + (i & 3)) * 8
            A(f"global_load_ushort v{VS + i}, v{vVso}, s[30:31] offset:{ro}")
            A(f"global_load_ushort v{VZ + i}, v{vVso}, s[32:33] offset:{ro}")
        A("s_waitcnt vmcnt(0)")
        for i in range(8):
            A(f"v_cvt_f32_i32 v{VX + i}, v{VX + i}")
            A(f"v_lshlrev_b32 v{VS + i}, 16, v{VS + i}")
            A(f"v_lshlrev_b32 v{VZ + i}, 16, v{VZ + i}")
        for i in range(8): A(f"v_sub_f32 v{VX + i}, v{VX + i}, v{VZ + i}")
        for i in range(8): A(f"v_mul_f32 v{VX + i}, v{VX + i}, v{VS + i}")
        for k in range(4): A(f"v_cvt_pk_bf16_f32 v{VF + k}, v{VX + 2 * k}, v{VX + 2 * k + 1}")
        A("s_nop 1")
        A(f"v_mfma_f32_32x32x16_bf16 {vr(O, 16)}, {vr(VF, 4)}, {vr(P + 4 * kst, 4)}, {vr(O, 16)}")
        A("s_nop 15")
    add64(A, 22, 22, 16384); add64(A, 28, 28, 16384)
    add64(A, 24, 24, 256); add64(A, 26, 26, 256); add64(A, 30, 30, 256); add64(A, 32, 32, 256)
    A("s_add_u32 s48, s48, 1")
    A("s_cmp_lt_u32 s48, 64")
    A("s_cbranch_scc1 L_FB_TILE")
    A(f"v_mov_b32 v{T1}, v{L}")
    A("s_nop 1")
    A(f"v_permlane32_swap_b32 v{L}, v{T1}")
    A("s_nop 1")
    A(f"v_add_f32 v{L}, v{L}, v{T1}")
    A(f"v_rcp_f32 v{L}, v{L}")
    A("s_nop 0")
    for r in range(16): A(f"v_mul_f32 v{O + r}, v{O + r}, v{L}")
    A("s_branch L_STORE")

def kd(A, name, vgpr, sgpr, accum):
    A(f".amdhsa_kernel {name}")
    A(f"  .amdhsa_next_free_vgpr {vgpr}")
    A(f"  .amdhsa_next_free_sgpr {sgpr}")
    A(f"  .amdhsa_accum_offset {accum}")
    A("  .amdhsa_group_segment_fixed_size 0")
    A("  .amdhsa_kernarg_size 112")
    A("  .amdhsa_user_sgpr_count 2")
    A("  .amdhsa_user_sgpr_kernarg_segment_ptr 1")
    A("  .amdhsa_system_sgpr_workgroup_id_x 1")
    A(".end_amdhsa_kernel")

HEADER = open("cdna_kernels/" + NAME + ".s.ref").read().split("; Override launch geometry")[0]

def generate(opt):
    g = G(opt); A = g.A
    A(HEADER.rstrip("\n"))
    A(f"; @launch grid=(256,1,1) block=(256,1,1) lds={LDS_BYTES}")
    A('.amdgcn_target "amdgcn-amd-amdhsa--gfx950"')
    A(".text")
    A(f".globl {KNAME}\n.p2align 8\n.type {KNAME},@function")
    A.label(KNAME)
    n0 = len(A.lines)
    if opt.get("stage2"): gen_prologue2(g)
    else: gen_prologue(g)
    if opt.get("force_fallback"): A("s_branch L_WAVEFAIL")
    gen_main(g)
    n1 = len(A.lines)
    gen_wavefail(g)
    gen_fallback(g)
    A.label("L_CODE_END")
    A("s_endpgm")
    n2 = len(A.lines)
    A('.section .rodata,"a"\n.p2align 6')
    kd(A, KNAME, NVGPR_ARCH + 256, 102 if opt.get("stamp") else 100, NVGPR_ARCH)
    L = A.lines
    errs = check(L[n0:n1], "main") + check(L[n1:n2], "fallback")
    return A.text(), errs

if __name__ == "__main__":
    opt = {}
    for a in sys.argv[2:]:
        k, v = a.split("=")
        try: v = int(v)
        except ValueError: pass
        opt[k] = v
    txt, errs = generate(opt)
    out = sys.argv[1]
    open(out, "w").write(txt)
    print("wrote", out, len(txt), "bytes;", len(errs), "check problems")
```

```python
import sys, math, struct
from asmlib import Asm, vr, ar, sr, check

NAME = "standalone__kv_cache_quant_pre_rope_vs_post_rope__prompt"
KNAME = NAME + "_kernel"

WS_KV = 0
WS_X  = 4 << 20
WS_L  = 6 << 20
WS_F  = 7 << 20
WS_F2 = (7 << 20) + (64 << 10)
WS_SIZE = 8 << 20
WS_STAMP = 12 << 20

def f32bits(x): return struct.unpack("<I", struct.pack("<f", x))[0]
def F(x): return f"0x{f32bits(x):08x}"
QSCALE = math.log2(math.e) / math.sqrt(128.0)
TRIG_A = -math.log2(10000.0) / 64.0
TRIG_B = -math.log2(2 * math.pi)

LDS_Q = 0
RED_A = 16384
RED_BOFF = 49152
LRED = 114688
LFAIL = 116736
LDS_BYTES = 116736 + 64

S_W, S_H, S_SP, S_QT, S_G = 3, 4, 5, 6, 7
S_WS = 12
S_OUT = 16
S_ARG = 20
S_DBG = 36
S_OUTP = 40
S_TILE = 48
S_XCC = 64
S_T0 = 92
ST0 = 66

V_LANE16 = 1
V_OFFV = 2
V_LA, V_LB = 6, 7
V_S = 16
V_P = 80
V_O0 = 112
V_RING = 144
A_O = 0
A_Q = 96
A_RING = 160
NVGPR_ARCH = 192

def Sreg(par, X): return V_S + (par * 2 + X) * 16
def Preg(par, X): return V_P + (par * 2 + X) * 8
def Oreg(X, j):
    if j == 0: return vr(V_O0 + 16 * X, 16)
    return ar(A_O + X * 48 + (j - 1) * 16, 16)
def Qreg(X, ks): return ar(A_Q + (X * 8 + ks) * 4, 4)
RINGSZ = 32
def ring(p):
    s = p % RINGSZ
    return ar(A_RING + s * 4, 4) if s < 24 else vr(V_RING + (s - 24) * 4, 4)

class G:
    def __init__(self, opt):
        self.opt = opt; self.A = Asm(); self.nst = 0
    def stamp(self, idx):
        o = self.opt
        if o.get("stamp"):
            self.A(f"{'s_memtime' if o['stamp'] == 2 else 's_memrealtime'} s[{ST0 + 2*idx}:{ST0 + 2*idx + 1}]")
    def stamp_wait(self):
        if self.opt.get("stamp"): self.A("s_waitcnt lgkmcnt(0)")

def srd(A, d, b, nbytes):
    A(f"s_mov_b32 s{d}, s{b}")
    A(f"s_and_b32 s{d+1}, s{b+1}, 0xffff")
    A(f"s_mov_b32 s{d+2}, {nbytes}")
    A(f"s_mov_b32 s{d+3}, 0x20000")

def add64(A, d, b, off):
    A(f"s_add_u32 s{d}, s{b}, {off}")
    A(f"s_addc_u32 s{d+1}, s{b+1}, 0")

def stream():
    seq = [("K", 0, i) for i in range(8)]
    for t in range(7):
        seq += [("K", t + 1, i) for i in range(8)]
        seq += [("V", t, i) for i in range(8)]
    seq += [("V", 7, i) for i in range(8)]
    return seq

def ring_load(seq, p, mod=""):
    kind, t, i = seq[p]
    dst = ring(p)
    if kind == "K":
        so = f"s{S_TILE + 2 * t + (i >> 2)}"
        return f"buffer_load_dwordx4 {dst}, v{V_LANE16}, s[{S_WS}:{S_WS+3}], {so} offen offset:{(i & 3) * 1024} {mod}".rstrip()
    j, ks = i & 3, i >> 2
    so = f"s{S_TILE + 2 * t}"
    return f"buffer_load_dwordx4 {dst}, v{V_OFFV + j}, s[{S_WS}:{S_WS+3}], {so} offen offset:{ks * 1024} {mod}".rstrip()

def gen_prologue(g):
    A, opt = g.A, g.opt
    ldmod = opt.get("raw_load_mod", "")
    kvmod = opt.get("kv_store_mod", "sc1")
    vC, vR0, vK0, vK1, vKs, vVd, vVs, vQd = 8, 9, 10, 11, 12, 13, 14, 15
    vKst, vQw, vSel, vX4 = 16, 17, 18, 19
    W = 20; CK, SK, CQ, SQ = 24, 32, 40, 56
    KD, KSC, KZ = 72, 88, 92
    VD, VSC, VZ = 96, 112, 120
    SENT = 128
    T = 132
    P0 = T + 4
    def trig(pos_s, extra, c0, s0, scale):
        A(f"v_add_u32 v{P0}, {pos_s}, v{vR0}")
        if extra: A(f"v_add_u32 v{P0}, {extra}, v{P0}")
        A(f"v_cvt_f32_u32 v{P0}, v{P0}")
        for j in range(4): A(f"v_mul_f32 v{P0+1+j}, v{P0}, v{W+j}")
        for j in range(4): A(f"v_fract_f32 v{P0+1+j}, v{P0+1+j}")
        for j in range(4):
            A(f"v_cos_f32 v{c0+j}, v{P0+1+j}")
            A(f"v_sin_f32 v{s0+j}, v{P0+1+j}")
        if scale:
            A("s_nop 0")
            for j in range(0, 4, 2):
                A(f"v_pk_mul_f32 {vr(c0+j, 2)}, {vr(c0+j, 2)}, s[{scale}:{scale+1}]")
                A(f"v_pk_mul_f32 {vr(s0+j, 2)}, {vr(s0+j, 2)}, s[{scale}:{scale+1}]")
    def rope(x, c0, s0, out):
        U = T + 8
        for j in range(0, 4, 2):
            A(f"v_pk_mul_f32 {vr(U+j, 2)}, {vr(x+4+j, 2)}, {vr(s0+j, 2)}")
            A(f"v_pk_mul_f32 {vr(U+4+j, 2)}, {vr(x+j, 2)}, {vr(s0+j, 2)}")
        for j in range(0, 4, 2):
            A(f"v_pk_fma_f32 {vr(U+j, 2)}, {vr(x+j, 2)}, {vr(c0+j, 2)}, {vr(U+j, 2)} neg_lo:[0,0,1] neg_hi:[0,0,1]")
            A(f"v_pk_fma_f32 {vr(U+4+j, 2)}, {vr(x+4+j, 2)}, {vr(c0+j, 2)}, {vr(U+4+j, 2)}")
        for k in range(4):
            A(f"v_cvt_pk_bf16_f32 v{out+k}, v{U+2*k}, v{U+2*k+1}")

    g.stamp(0)
    A("s_cmp_ge_u32 s2, 256")
    A("s_cbranch_scc1 L_END")
    A(f"s_load_dwordx16 s[{S_ARG}:{S_ARG+15}], s[0:1], 0")
    A(f"s_load_dwordx4 s[{S_DBG}:{S_DBG+3}], s[0:1], 96")
    A(f"s_load_dwordx2 s[{S_OUTP}:{S_OUTP+1}], s[0:1], 88")
    A(f"s_memrealtime s[{S_T0}:{S_T0+1}]")
    A("v_lshrrev_b32 v8, 6, v0")
    A("v_and_b32 v0, 63, v0")
    A(f"v_readfirstlane_b32 s{S_W}, v8")
    A(f"v_lshlrev_b32 v{V_LANE16}, 4, v0")
    XL = opt.get("xl", 0)
    if not XL:
        A("s_and_b32 s8, s2, 7")
        A(f"s_lshr_b32 s{S_H}, s8, 1")
        A(f"s_and_b32 s{S_SP}, s8, 1")
        A(f"s_lshr_b32 s{S_QT}, s2, 3")
        A(f"s_lshl_b32 s8, s{S_H}, 6")
        A(f"s_lshl_b32 s9, s{S_SP}, 5")
        A("s_add_u32 s8, s8, s9")
        A(f"s_add_u32 s{S_G}, s8, s{S_QT}")
        A(f"s_mov_b32 s97, s{S_QT}")
        A(f"s_lshl_b32 s96, s{S_SP}, 5")
        A(f"s_add_u32 s96, s96, s{S_QT}")
    else:
        A("s_and_b32 s8, s2, 7")
        A(f"s_lshr_b32 s{S_H}, s8, 1")
        A("s_and_b32 s9, s8, 1")
        A("s_lshr_b32 s97, s2, 3")
        A(f"s_and_b32 s{S_SP}, s97, 1")
        A(f"s_lshr_b32 s{S_QT}, s97, 1")
        A("s_lshl_b32 s10, s9, 4")
        A(f"s_add_u32 s{S_QT}, s{S_QT}, s10")
        A("s_lshl_b32 s96, s9, 5")
        A("s_add_u32 s96, s96, s97")
        A(f"s_lshl_b32 s8, s{S_H}, 6")
        A(f"s_add_u32 s{S_G}, s8, s96")
        A(f"s_xor_b32 s98, s9, s{S_SP}")
        A(f"s_lshl_b32 s9, s{S_SP}, 5")
        A("s_add_u32 s8, s8, s9")
    A(f"v_and_b32 v{vC}, 15, v0")
    A(f"v_lshrrev_b32 v{vR0}, 4, v0")
    A(f"s_lshl_b32 s9, s{S_W}, 2")
    A(f"v_add_u32 v{vR0}, s9, v{vR0}")
    A(f"v_lshlrev_b32 v{vK0}, 9, v{vR0}")
    A(f"v_lshl_add_u32 v{vK0}, v{vC}, 4, v{vK0}")
    A(f"v_add_u32 v{vK1}, 8192, v{vK0}")
    A(f"v_lshlrev_b32 v{vKs}, 3, v{vR0}")
    A(f"v_and_b32 v{T}, 31, v0")
    A(f"v_lshrrev_b32 v{T+1}, 5, v0")
    A(f"v_bfe_u32 v{T+2}, v{T}, 2, 1")
    A(f"v_lshlrev_b32 v{T+2}, 4, v{T+2}")
    A(f"v_lshrrev_b32 v{T+3}, 3, v{T}")
    A(f"v_lshl_add_u32 v{T+2}, v{T+3}, 2, v{T+2}")
    A(f"v_and_b32 v{T+3}, 3, v{T}")
    A(f"v_add_u32 v{T+2}, v{T+2}, v{T+3}")
    A(f"s_and_b32 s10, s{S_W}, 1")
    A(f"s_lshr_b32 s11, s{S_W}, 1")
    A("s_lshl_b32 s9, s10, 4")
    A(f"v_lshlrev_b32 v{T+1}, 2, v{T+1}")
    A(f"v_add_u32 v{T+1}, s9, v{T+1}")
    A("s_lshl_b32 s9, s11, 8")
    A("s_add_u32 s9, s9, 2048")
    A(f"v_lshlrev_b32 v{vVd}, 9, v{T+1}")
    A(f"v_lshl_add_u32 v{vVd}, v{T+2}, 2, v{vVd}")
    A(f"v_add_u32 v{vVd}, s9, v{vVd}")
    A("s_lshl_b32 s9, s11, 2")
    A(f"v_lshlrev_b32 v{vVs}, 3, v{T+1}")
    A(f"v_add_u32 v{vVs}, s9, v{vVs}")
    A(f"s_lshl_b32 s42, s{S_G}, 14")
    A(f"s_lshl_b32 s43, s{S_G}, 8")
    if not XL:
        A(f"s_lshl_b32 s9, s8, 3")
        A(f"s_add_u32 s65, s9, {WS_F}")
        A("s_mov_b32 s98, s65")
    else:
        A(f"s_sub_u32 s9, s{S_G}, s97")
        A("s_lshl_b32 s9, s9, 3")
        A(f"s_add_u32 s65, s9, {WS_F}")
        A("s_lshl_b32 s99, s8, 3")
        A(f"s_add_u32 s99, s99, {WS_F}")
    A(f"v_mov_b32 v{T+3}, s65")
    LEAN = opt.get("lean", 0)
    def trig_first():
        A(f"v_lshlrev_b32 v{T}, 2, v{vC}")
        A(f"v_cvt_f32_u32 v{T}, v{T}")
        A(f"s_mov_b32 s9, {F(TRIG_A)}")
        for j in range(4): A(f"v_mov_b32 v{W+j}, {F(TRIG_B + j * TRIG_A)}")
        for j in range(4): A(f"v_fma_f32 v{W+j}, v{T}, s9, v{W+j}")
        for j in range(4): A(f"v_exp_f32 v{W+j}, v{W+j}")
        A("s_lshl_b32 s9, s96, 5")
        trig("s9", 0, CK, SK, None)
    if not LEAN: trig_first()
    EARLY = opt.get("early_trig", 0)
    if EARLY:
        trig("s9", 16, CK + 4, SK + 4, None)
        A(f"s_lshl_b32 s9, s{S_QT}, 1")
        A(f"s_add_u32 s46, s9, s{S_SP}")
        A(f"s_xor_b32 s47, s46, 1")
        A("s_lshl_b32 s10, s47, 5")
        A("s_lshl_b32 s11, s46, 5")
        A(f"s_mov_b32 s94, {F(QSCALE)}")
        A(f"s_mov_b32 s95, {F(QSCALE)}")
        trig("s10", 0, CQ, SQ, 94); trig("s10", 16, CQ + 4, SQ + 4, 94)
        if EARLY > 1:
            trig("s11", 0, CQ + 8, SQ + 8, 94); trig("s11", 16, CQ + 12, SQ + 12, 94)
    A("s_waitcnt lgkmcnt(0)")
    g.stamp(1)
    A(f"s_or_b32 s10, s2, s{S_W}")
    A("s_cmp_lg_u32 s10, 0")
    A("s_cbranch_scc1 L_NONONCE")
    A(f"s_or_b32 s10, s{S_T0}, 1")
    A(f"v_mov_b32 v{T+1}, 0")
    A(f"v_mov_b32 v{T+2}, s10")
    A("s_mov_b64 exec, 1")
    A(f"global_store_dword v{T+1}, v{T+2}, s[{S_DBG}:{S_DBG+1}] sc1")
    A("s_mov_b64 exec, -1")
    A.label("L_NONONCE")
    add64(A, 22, 22, "s42")
    add64(A, 24, 24, "s43")
    add64(A, 26, 26, "s43")
    def kloads(it):
        vo = vK0 if it == 0 else vK1
        A(f"global_load_dwordx4 {vr(KD + 8*it, 4)}, v{vo}, s[22:23] {ldmod}")
        A(f"global_load_dwordx4 {vr(KD + 8*it + 4, 4)}, v{vo}, s[22:23] offset:256 {ldmod}")
        A(f"global_load_dwordx2 {vr(KSC + 2*it, 2)}, v{vKs}, s[24:25] offset:{it*128}")
        A(f"global_load_dwordx2 {vr(KZ + 2*it, 2)}, v{vKs}, s[26:27] offset:{it*128}")
    kloads(0); kloads(1)
    add64(A, 28, 28, "s42")
    add64(A, 30, 30, "s43")
    add64(A, 32, 32, "s43")
    for i in range(8):
        ro = (8 * (i >> 2) + (i & 3)) * 8
        A(f"global_load_dword v{VSC + i}, v{vVs}, s[30:31] offset:{ro}")
        A(f"global_load_dword v{VZ + i}, v{vVs}, s[32:33] offset:{ro}")
    for i in range(8):
        for dbl in range(2):
            off = (i >> 2) * 4096 + (i & 3) * 512 + dbl * 128 - 2048
            A(f"global_load_dword v{VD + 2*i + dbl}, v{vVd}, s[28:29] offset:{off} {ldmod}")
    QEARLY = 2 if opt.get("split", 0) else opt.get("q_early", 0)
    QD = 72 if not QEARLY else 172
    def qloads():
        A(f"v_lshlrev_b32 v{vQd}, 8, v{vR0}")
        A(f"v_lshl_add_u32 v{vQd}, v{vC}, 3, v{vQd}")
        A(f"v_add_u32 v{vQd}, 2048, v{vQd}")
        A(f"s_lshl_b32 s9, s{S_QT}, 1")
        A(f"s_add_u32 s46, s9, s{S_SP}")
        A(f"s_xor_b32 s47, s46, 1")
        A(f"s_lshl_b32 s10, s{S_H}, 6")
        A("s_add_u32 s11, s10, s47")
        A("s_lshl_b32 s11, s11, 13")
        add64(A, 34, 20, "s11")
        A("s_add_u32 s11, s10, s46")
        A("s_lshl_b32 s11, s11, 13")
        add64(A, 20, 20, "s11")
        for X in range(2):
            base = "s[34:35]" if X == 0 else "s[20:21]"
            for it in range(2):
                r = QD + (X * 2 + it) * 4
                A(f"global_load_dwordx2 {vr(r, 2)}, v{vQd}, {base} offset:{it*4096 - 2048} {ldmod}")
                A(f"global_load_dwordx2 {vr(r + 2, 2)}, v{vQd}, {base} offset:{it*4096 - 2048 + 128} {ldmod}")
    if QEARLY == 1:
        A(f"s_lshl_b32 s95, s{S_SP}, 5")
        A(f"s_add_u32 s95, s95, s{S_QT}")
        A("s_lshl_b32 s95, s95, 5")
        qloads()
        A("s_mov_b32 s9, s95")
    SPLIT = opt.get("split", 0)
    A(f"global_load_dword v171, v{T+3}, s[38:39] sc1")
    if SPLIT: A(f"global_load_dword v170, v{T+3}, s[38:39] offset:128 sc1")
    NPRE = 0
    if opt.get("pretouch"):
        A(f"s_lshl_b32 s10, s{S_G}, 14")
        A(f"v_mov_b32 v{T+2}, s10")
        A(f"global_load_dword v170, v{T+2}, s[38:39]")
        A(f"global_load_dword v169, v{T+2}, s[20:21]" if False else f"v_lshrrev_b32 v{T+2}, 1, v{T+2}")
        A(f"global_load_dword v169, v{T+2}, s[20:21]")
        A(f"global_load_dword v168, v{T+2}, s[{S_OUTP}:{S_OUTP+1}]")
        NPRE = 3
    if opt.get("codepf"):
        A("s_getpc_b64 s[94:95]")
        A.label("L_PFBASE")
        A("s_lshr_b32 s10, s2, 3")
        A("s_lshl_b32 s10, s10, 2")
        A(f"s_add_u32 s10, s10, s{S_W}")
        A("s_lshl_b32 s10, s10, 7")
        A("s_min_u32 s10, s10, L_CODE_END - L_PFBASE - 4")
        A("s_add_u32 s94, s94, s10")
        A("s_addc_u32 s95, s95, 0")
        A("s_load_dword s96, s[94:95], 0")
    srd(A, S_WS, 38, WS_SIZE)
    A(f"v_lshlrev_b32 v{vX4}, 2, v0")
    A("s_lshl_b32 s44, s2, 13")
    A(f"s_lshl_b32 s10, s{S_W}, 11")
    A("s_add_u32 s44, s44, s10")
    A(f"s_add_u32 s44, s44, {WS_X}")
    A("s_lshl_b32 s45, s2, 10")
    A(f"s_lshl_b32 s10, s{S_W}, 8")
    A("s_add_u32 s45, s45, s10")
    A(f"s_add_u32 s45, s45, {WS_L}")
    NTAIL = 1 + SPLIT + NPRE + (8 if QEARLY == 1 else 0)
    NV = 40 + NTAIL
    if LEAN: trig_first()
    if not EARLY: trig("s9", 16, CK + 4, SK + 4, None)
    A(f"v_lshrrev_b32 v{T}, 1, v{vC}")
    A(f"v_lshlrev_b32 v{vKst}, 10, v{T}")
    A(f"v_and_b32 v{T+1}, 1, v{vC}")
    A(f"v_lshl_add_u32 v{vKst}, v{T+1}, 9, v{vKst}")
    A(f"v_lshl_add_u32 v{vKst}, v{vR0}, 4, v{vKst}")
    A(f"v_lshl_add_u32 v{T+1}, v{T+1}, 5, v{vR0}")
    A(f"v_and_b32 v{T+2}, 7, v{vC}")
    A(f"v_xor_b32 v{T+1}, v{T+1}, v{T+2}")
    A(f"v_lshlrev_b32 v{vQw}, 10, v{T}")
    A(f"v_lshl_add_u32 v{vQw}, v{T+1}, 4, v{vQw}")
    A(f"v_lshrrev_b32 v{vSel}, 3, v{vC}")
    A(f"v_lshlrev_b32 v{vSel}, 4, v{vSel}")
    A(f"v_sub_u32 v{vSel}, 16, v{vSel}")
    A(f"s_lshl_b32 s43, s{S_G}, 14")
    A(f"s_and_b32 s9, s{S_W}, 1")
    A("s_lshl_b32 s9, s9, 10")
    A(f"s_lshr_b32 s10, s{S_W}, 1")
    A("s_lshl_b32 s10, s10, 12")
    A("s_add_u32 s9, s9, s10")
    A("s_add_u32 s9, s9, s43")
    A("s_add_u32 s9, s9, 8192")
    nst = 0
    for it in range(2):
        A(f"s_waitcnt vmcnt({NV - 4 * (it + 1) + nst})")
        if it == 0: g.stamp(2)
        x = KD + 8 * it
        sc = T + 16
        for k, src in enumerate((KSC + 2*it, KSC + 2*it + 1, KZ + 2*it, KZ + 2*it + 1)):
            A(f"v_lshlrev_b32 v{sc+k}, v{vSel}, v{src}")
        for j in range(8): A(f"v_cvt_f32_i32 v{x+j}, v{x+j}")
        for k in range(4): A(f"v_and_b32 v{sc+k}, 0xffff0000, v{sc+k}")
        for j in range(0, 4, 2):
            A(f"v_pk_add_f32 {vr(x+j, 2)}, {vr(x+j, 2)}, {vr(sc+2, 2)} op_sel_hi:[1,0] neg_lo:[0,1] neg_hi:[0,1]")
            A(f"v_pk_add_f32 {vr(x+4+j, 2)}, {vr(x+4+j, 2)}, {vr(sc+2, 2)} op_sel:[0,1] op_sel_hi:[1,1] neg_lo:[0,1] neg_hi:[0,1]")
        for j in range(0, 4, 2):
            A(f"v_pk_mul_f32 {vr(x+j, 2)}, {vr(x+j, 2)}, {vr(sc, 2)} op_sel_hi:[1,0]")
            A(f"v_pk_mul_f32 {vr(x+4+j, 2)}, {vr(x+4+j, 2)}, {vr(sc, 2)} op_sel:[0,1] op_sel_hi:[1,1]")
        out = T + 20 + 4 * it
        rope(x, CK + 4*it, SK + 4*it, out)
        A(f"buffer_store_dwordx4 {vr(out, 4)}, v{vKst}, s[{S_WS}:{S_WS+3}], s43 offen offset:{it*256} {kvmod}")
        nst += 1
    NON = SENT + 1
    NEARLY = opt.get("nonce_early", 0)
    if NEARLY:
        A(f"v_mov_b32 v{T+1}, 0")
        A(f"global_load_dword v{NON}, v{T+1}, s[{S_DBG}:{S_DBG+1}] sc1")
        nst += 1
    if QEARLY == 2:
        A("s_mov_b32 s95, s9")
        qloads()
        A("s_mov_b32 s9, s95")
        nst += 8
    A(f"s_waitcnt vmcnt({16 + NTAIL + nst})")
    SP_, ZP_ = 72, 24
    for i in range(8):
        A(f"v_lshlrev_b32 v{SP_+2*i}, 16, v{VSC+i}")
        A(f"v_and_b32 v{SP_+2*i+1}, 0xffff0000, v{VSC+i}")
        A(f"v_lshlrev_b32 v{ZP_+2*i}, 16, v{VZ+i}")
        A(f"v_and_b32 v{ZP_+2*i+1}, 0xffff0000, v{VZ+i}")
    A(f"s_waitcnt vmcnt({NTAIL + nst})")
    g.stamp(3)
    if not NEARLY:
        A(f"v_mov_b32 v{T+1}, 0")
        A(f"global_load_dword v{NON}, v{T+1}, s[{S_DBG}:{S_DBG+1}] sc1")
    for i in range(16): A(f"v_cvt_f32_i32 v{VD+i}, v{VD+i}")
    for i in range(8): A(f"v_pk_add_f32 {vr(VD+2*i, 2)}, {vr(VD+2*i, 2)}, {vr(ZP_+2*i, 2)} neg_lo:[0,1] neg_hi:[0,1]")
    for i in range(8): A(f"v_pk_mul_f32 {vr(VD+2*i, 2)}, {vr(VD+2*i, 2)}, {vr(SP_+2*i, 2)}")
    for dbl in range(2):
        O = T + 28 + 4 * dbl
        for k in range(4):
            A(f"v_cvt_pk_bf16_f32 v{O+k}, v{VD+(2*k)*2+dbl}, v{VD+(2*k+1)*2+dbl}")
        A(f"buffer_store_dwordx4 {vr(O, 4)}, v{V_LANE16}, s[{S_WS}:{S_WS+3}], s9 offen offset:{dbl*2048} {kvmod}")
    if not QEARLY: qloads()
    else:
        A(f"s_lshl_b32 s9, s{S_QT}, 1")
        A(f"s_add_u32 s46, s9, s{S_SP}")
        A(f"s_xor_b32 s47, s46, 1")
    def post_store_setup():
        A("s_lshl_b32 s10, s47, 5")
        A("s_lshl_b32 s11, s46, 5")
        A(f"s_mov_b32 s42, {F(QSCALE)}")
        A(f"s_mov_b32 s43, {F(QSCALE)}")
        if not EARLY:
            trig("s10", 0, CQ, SQ, 42); trig("s10", 16, CQ + 4, SQ + 4, 42)
        for j in range(4):
            A(f"s_add_u32 s9, s{S_W}, {j}")
            A("s_and_b32 s9, s9, 3")
            A("s_lshl_b32 s9, s9, 11")
            A("s_add_u32 s9, s9, 8192")
            A(f"v_add_u32 v{V_OFFV + j}, s9, v{V_LANE16}")
        A(f"s_lshl_b32 s9, s{S_W}, 3")
        A("s_add_u32 s8, s8, s9")
        A(f"s_lshl_b32 s{S_TILE}, s8, 14")
        A(f"s_add_u32 s{S_TILE+1}, s{S_TILE}, 4096")
        for t in range(1, 8):
            A(f"s_add_u32 s{S_TILE + 2*t}, s{S_TILE}, {t * 16384}")
            A(f"s_add_u32 s{S_TILE + 2*t + 1}, s{S_TILE}, {t * 16384 + 4096}")
    def flag_addr():
        A("s_lshl_b32 s9, s97, 2")
        A("s_add_u32 s9, s9, s65")
        A(f"v_mov_b32 v{T}, s9")
        if not XL:
            A(f"s_lshl_b32 s9, s{S_W}, 5")
            A("s_add_u32 s9, s9, s98")
            A(f"v_and_b32 v{T+2}, 7, v0")
            A(f"v_lshl_add_u32 v{T+2}, v{T+2}, 2, s9")
        else:
            A(f"s_lshl_b32 s9, s{S_W}, 5")
            A("s_add_u32 s99, s99, s9")
            A("s_lshl_b32 s9, s8, 7")
            A(f"s_add_u32 s9, s9, {WS_F2}")
            A("s_cmp_lg_u32 s98, 0")
            A("s_cselect_b32 s99, s9, s99")
            A("s_cselect_b32 s9, 7, 2")
            A(f"v_and_b32 v{T+2}, 7, v0")
            A(f"v_lshlrev_b32 v{T+2}, s9, v{T+2}")
            A(f"v_add_u32 v{T+2}, s99, v{T+2}")
            A(f"s_lshl_b32 s9, s{S_G}, 7")
            A(f"s_add_u32 s9, s9, {WS_F2}")
            A("v_mov_b32 v188, s9")
    if not SPLIT:
        post_store_setup()
        flag_addr()
    FL = SENT + 2
    def qcompute():
        for pc in range(4):
            X, it = pc >> 1, pc & 1
            r = QD + pc * 4
            x = 96 + 8 * (pc & 1)
            for hh in range(2):
                for k in range(2):
                    A(f"v_lshlrev_b32 v{x+4*hh+2*k}, 16, v{r+2*hh+k}")
                    A(f"v_and_b32 v{x+4*hh+2*k+1}, 0xffff0000, v{r+2*hh+k}")
            out = T + 20 + 4 * (pc & 1)
            rope(x, CQ + 4*pc, SQ + 4*pc, out)
            A(f"ds_write_b128 v{vQw}, {vr(out, 4)} offset:{X*8192 + it*256}")
    def qaddr():
        A(f"v_lshrrev_b32 v{T+3}, 5, v0")
        for k in range(4):
            A(f"v_add_u32 v{8+k}, {2*k}, v{T+3}")
            A(f"v_xor_b32 v{8+k}, v{8+k}, v0")
            A(f"v_lshlrev_b32 v{8+k}, 4, v{8+k}")
        A(f"v_mov_b32 v{V_LA}, 0")
        A(f"v_mov_b32 v{V_LB}, 0")
        if opt.get("dotsum"): A("s_mov_b32 s95, 0x3f803f80")
        if opt.get("pkadd"):
            for k in range(4): A(f"v_mov_b32 v{188 + k}, 0")
    def qreads():
        for ks in range(4):
            for X in range(2):
                A(f"ds_read_b128 {Qreg(X, ks)}, v{8 + (ks & 3)} offset:{(X * 8 + ks) * 1024}")
    def nonce_and_flag(all_lanes=False):
        A.label("L_NPOLL")
        A(f"v_readfirstlane_b32 s{S_XCC}, v{NON}")
        A("s_nop 1")
        A(f"s_sub_u32 s94, s{S_XCC}, s{S_T0}")
        A("s_add_u32 s94, s94, 500")
        A("s_cmp_lt_u32 s94, 2500")
        A(f"s_cselect_b32 s94, s{S_XCC}, 0")
        A("s_cmp_lg_u32 s94, 0")
        A("s_cbranch_scc1 L_NOK")
        A("s_add_u32 s10, s10, 1")
        A(f"s_cmp_ge_u32 s10, {opt.get('maxpoll0', 200)}")
        A("s_cbranch_scc1 L_NTIMEOUT")
        A(f"v_mov_b32 v{T+1}, 0")
        A(f"global_load_dword v{NON}, v{T+1}, s[{S_DBG}:{S_DBG+1}] sc1")
        A("s_waitcnt vmcnt(0)")
        A("s_branch L_NPOLL")
        A.label("L_NTIMEOUT")
        A(f"s_mov_b32 s{S_XCC}, 1")
        A("s_mov_b32 s9, 1")
        A.label("L_NOK")
        A(f"v_mov_b32 v{T+1}, s{S_XCC}")
        A("s_barrier")
        A("s_mov_b64 exec, 1")
        A(f"global_store_dword v{T}, v{T+1}, s[38:39]")
        if not all_lanes:
            A("s_mov_b64 exec, 0xff")
            A(f"global_load_dword v{FL}, v{T+2}, s[38:39] sc1")
        if XL:
            A("s_mov_b64 exec, 1")
            A(f"global_store_dword v188, v{T+1}, s[38:39] sc1")
        A("s_mov_b64 exec, -1")
        A("s_mov_b32 s65, s9")
    seq = stream()
    rmod = opt.get("ring_mod", "")
    DEPTH = opt.get("depth", 16)
    SE = T + 4
    def sentinels():
        for j in range(4): A(f"v_mov_b32 v{SE + j}, -1")
        A(f"buffer_store_dwordx4 {vr(SE, 4)}, v{V_LANE16}, s[{S_WS}:{S_WS+3}], s44 offen sc1")
        A(f"buffer_store_dwordx4 {vr(SE, 4)}, v{V_LANE16}, s[{S_WS}:{S_WS+3}], s44 offen offset:1024 sc1")
        A(f"buffer_store_dword v{SE}, v{vX4}, s[{S_WS}:{S_WS+3}], s45 offen sc1")
    if SPLIT:
        assert DEPTH == 16
        flag_addr()
        A("s_mov_b32 s10, 0")
        A("s_mov_b32 s9, 0")
        A(f"s_waitcnt vmcnt({10 if NEARLY else 2})")
        g.stamp(4)
        nonce_and_flag(all_lanes=True)
        post_store_setup()
        trig("s11", 0, CQ + 8, SQ + 8, 42); trig("s11", 16, CQ + 12, SQ + 12, 42)
        qaddr()
        if NEARLY: A("s_waitcnt vmcnt(3)")
        g.stamp(5)
        qcompute()
        A(f"v_mov_b32 v{T+1}, s{S_XCC}")
        A(f"v_mov_b32 v186, v{T+2}")
        A(f"global_load_dword v{FL}, v{T+2}, s[38:39] sc1")
        A("s_waitcnt vmcnt(2) lgkmcnt(0)")
        A("s_barrier")
        A("s_mov_b64 exec, 1")
        A(f"global_store_dword v{T}, v{T+1}, s[38:39] offset:128")
        A("s_mov_b64 exec, -1")
        qreads()
        A("s_cmp_lg_u32 s65, 0")
        A("s_cbranch_scc1 L_WAVEFAIL")
        A("s_mov_b32 s10, 0")
        A("s_waitcnt vmcnt(1)")
        A.label("L_FPOLL")
        A(f"v_cmp_ne_u32 vcc, s{S_XCC}, v{FL}")
        A("s_nop 0")
        A("s_cbranch_vccz L_FOK")
        A("s_add_u32 s10, s10, 1")
        A(f"s_cmp_ge_u32 s10, {opt.get('maxpoll1', 400)}")
        A("s_cbranch_scc1 L_WAVEFAIL")
        A(f"global_load_dword v{FL}, v{T+2}, s[38:39] sc1")
        A("s_waitcnt vmcnt(0)")
        A("s_branch L_FPOLL")
        A.label("L_FOK")
        g.stamp(6)
        if opt.get("stamp"): A(f"s_mov_b32 s{ST0 + 2*11}, s10")
        for p in range(DEPTH): A(ring_load(seq, p, rmod))
        sentinels()
        g.stamp(7)
        g.stamp_wait()
        return
    if QEARLY == 2:
        trig("s11", 0, CQ + 8, SQ + 8, 42); trig("s11", 16, CQ + 12, SQ + 12, 42)
        A("s_waitcnt vmcnt(3)")
        g.stamp(5)
        qcompute()
        qaddr()
        A("s_mov_b32 s10, 0")
        A("s_mov_b32 s9, 0")
        A("s_waitcnt vmcnt(0) lgkmcnt(0)")
        g.stamp(4)
        g.stamp_wait()
        nonce_and_flag()
        qreads()
    else:
        A("s_mov_b32 s10, 0")
        A("s_mov_b32 s9, 0")
        A(f"s_waitcnt vmcnt({0 if QEARLY else 8})")
        g.stamp(4)
        nonce_and_flag()
        if EARLY < 2:
            trig("s11", 0, CQ + 8, SQ + 8, 42); trig("s11", 16, CQ + 12, SQ + 12, 42)
        A(f"s_waitcnt vmcnt({2 + XL})")
        g.stamp(5)
        qcompute()
        qaddr()
        A("s_waitcnt lgkmcnt(0)")
        A("s_barrier")
        qreads()
    A("s_cmp_lg_u32 s65, 0")
    A("s_cbranch_scc1 L_WAVEFAIL")
    A("s_mov_b32 s10, 0")
    PROG = opt.get("prog", 0)
    A(f"s_mov_b64 exec, {'0x3' if PROG else '0xff'}")
    A(f"s_waitcnt vmcnt({XL})")
    A.label("L_FPOLL")
    A(f"v_cmp_ne_u32 vcc, s{S_XCC}, v{FL}")
    A("s_nop 0")
    A("s_cbranch_vccz L_FOK")
    A("s_add_u32 s10, s10, 1")
    A(f"s_cmp_ge_u32 s10, {opt.get('maxpoll1', 400)}")
    A("s_cbranch_scc1 L_WAVEFAIL")
    A(f"global_load_dword v{FL}, v{T+2}, s[38:39] sc1")
    A("s_waitcnt vmcnt(0)")
    A("s_branch L_FPOLL")
    A.label("L_FOK")
    A("s_mov_b64 exec, -1")
    if PROG: A(f"v_mov_b32 v186, v{T+2}")
    g.stamp(6)
    if opt.get("stamp"): A(f"s_mov_b32 s{ST0 + 2*11}, s10")
    for p in range(DEPTH): A(ring_load(seq, p, rmod))
    if XL:
        for j in range(4): A(f"v_mov_b32 v{184 + j}, -1")
        A("v_lshlrev_b32 v189, 2, v0")
    elif opt.get("prog", 0) or opt.get("sent_in_loop", 0):
        for j in range(4): A(f"v_mov_b32 v{SE + j}, -1")
        A("v_lshlrev_b32 v185, 2, v0")
    else:
        sentinels()
    g.stamp(7)
    g.stamp_wait()

def gen_prologue2(g):
    A, opt = g.A, g.opt
    vC, vR0, vKo, vKs, vVd, vVs, vQd = 8, 9, 10, 12, 13, 14, 15
    vKst, vQw, vSel = 16, 17, 18
    W = 20; CKA, SKA, CQ, SQ = 24, 28, 40, 56
    CKB, SKB = 92, 96
    KD, KSC, KZ, U, SC, KOUT = 80, 88, 90, 100, 108, 112
    VD, VSC, VZ, VOUT = 116, 124, 132, 140
    QD, QX, QU, QOUT = 144, 160, 176, 184
    vPoll, vRes, vMyF, vFVal = 188, 189, 190, 191
    NON, FL = 171, 172
    T = 32
    P0 = T + 2
    def trig(pos_s, extra, c0, s0, scale):
        A(f"v_add_u32 v{P0}, {pos_s}, v{vR0}")
        if extra: A(f"v_add_u32 v{P0}, {extra}, v{P0}")
        A(f"v_cvt_f32_u32 v{P0}, v{P0}")
        for j in range(4): A(f"v_mul_f32 v{P0+1+j}, v{P0}, v{W+j}")
        for j in range(4): A(f"v_fract_f32 v{P0+1+j}, v{P0+1+j}")
        for j in range(4):
            A(f"v_cos_f32 v{c0+j}, v{P0+1+j}")
            A(f"v_sin_f32 v{s0+j}, v{P0+1+j}")
        if scale:
            A("s_nop 0")
            for j in range(0, 4, 2):
                A(f"v_pk_mul_f32 {vr(c0+j, 2)}, {vr(c0+j, 2)}, s[{scale}:{scale+1}]")
                A(f"v_pk_mul_f32 {vr(s0+j, 2)}, {vr(s0+j, 2)}, s[{scale}:{scale+1}]")
    def rope(x, c0, s0, u, out):
        L = []
        for j in range(0, 4, 2):
            L.append(f"v_pk_mul_f32 {vr(u+j, 2)}, {vr(x+4+j, 2)}, {vr(s0+j, 2)}")
            L.append(f"v_pk_mul_f32 {vr(u+4+j, 2)}, {vr(x+j, 2)}, {vr(s0+j, 2)}")
        for j in range(0, 4, 2):
            L.append(f"v_pk_fma_f32 {vr(u+j, 2)}, {vr(x+j, 2)}, {vr(c0+j, 2)}, {vr(u+j, 2)} neg_lo:[0,0,1] neg_hi:[0,0,1]")
            L.append(f"v_pk_fma_f32 {vr(u+4+j, 2)}, {vr(x+4+j, 2)}, {vr(c0+j, 2)}, {vr(u+4+j, 2)}")
        for k in range(4):
            L.append(f"v_cvt_pk_bf16_f32 v{out+k}, v{u+2*k}, v{u+2*k+1}")
        return L
    def kloads(base_k, base_s, base_z):
        A(f"global_load_dwordx4 {vr(KD, 4)}, v{vKo}, {base_k}")
        A(f"global_load_dwordx4 {vr(KD + 4, 4)}, v{vKo}, {base_k} offset:256")
        A(f"global_load_dwordx2 {vr(KSC, 2)}, v{vKs}, {base_s}")
        A(f"global_load_dwordx2 {vr(KZ, 2)}, v{vKs}, {base_z}")
    def vloads(base_v, base_s, base_z):
        for i in range(8):
            ro = (8 * (i >> 2) + (i & 3)) * 8
            A(f"global_load_ushort v{VSC + i}, v{vVs}, {base_s} offset:{ro}")
            A(f"global_load_ushort v{VZ + i}, v{vVs}, {base_z} offset:{ro}")
        for i in range(8):
            off = (i >> 2) * 4096 + (i & 3) * 512 - 2048
            A(f"global_load_dword v{VD + i}, v{vVd}, {base_v} offset:{off}")
    def kcompute(ck, sk, sbase, vKst=vKst, vSel=vSel):
        L = []
        for k, src in enumerate((KSC, KSC + 1, KZ, KZ + 1)): L.append(f"v_lshlrev_b32 v{SC+k}, v{vSel}, v{src}")
        for j in range(8): L.append(f"v_cvt_f32_i32 v{KD+j}, v{KD+j}")
        for k in range(4): L.append(f"v_and_b32 v{SC+k}, 0xffff0000, v{SC+k}")
        for j in range(0, 4, 2):
            L.append(f"v_pk_add_f32 {vr(KD+j, 2)}, {vr(KD+j, 2)}, {vr(SC+2, 2)} op_sel_hi:[1,0] neg_lo:[0,1] neg_hi:[0,1]")
            L.append(f"v_pk_add_f32 {vr(KD+4+j, 2)}, {vr(KD+4+j, 2)}, {vr(SC+2, 2)} op_sel:[0,1] op_sel_hi:[1,1] neg_lo:[0,1] neg_hi:[0,1]")
        for j in range(0, 4, 2):
            L.append(f"v_pk_mul_f32 {vr(KD+j, 2)}, {vr(KD+j, 2)}, {vr(SC, 2)} op_sel_hi:[1,0]")
            L.append(f"v_pk_mul_f32 {vr(KD+4+j, 2)}, {vr(KD+4+j, 2)}, {vr(SC, 2)} op_sel:[0,1] op_sel_hi:[1,1]")
        L += rope(KD, ck, sk, U, KOUT)
        L.append(f"buffer_store_dwordx4 {vr(KOUT, 4)}, v{vKst}, s[{S_WS}:{S_WS+3}], {sbase} offen sc1")
        return L
    def vcompute(sbase):
        L = []
        for i in range(8):
            L.append(f"v_lshlrev_b32 v{VSC+i}, 16, v{VSC+i}")
            L.append(f"v_lshlrev_b32 v{VZ+i}, 16, v{VZ+i}")
        for i in range(8): L.append(f"v_cvt_f32_i32 v{VD+i}, v{VD+i}")
        for i in range(0, 8, 2): L.append(f"v_pk_add_f32 {vr(VD+i, 2)}, {vr(VD+i, 2)}, {vr(VZ+i, 2)} neg_lo:[0,1] neg_hi:[0,1]")
        for i in range(0, 8, 2): L.append(f"v_pk_mul_f32 {vr(VD+i, 2)}, {vr(VD+i, 2)}, {vr(VSC+i, 2)}")
        for k in range(4): L.append(f"v_cvt_pk_bf16_f32 v{VOUT+k}, v{VD+2*k}, v{VD+2*k+1}")
        L.append(f"buffer_store_dwordx4 {vr(VOUT, 4)}, v{V_LANE16}, s[{S_WS}:{S_WS+3}], {sbase} offen sc1")
        return L

    g.stamp(0)
    A("s_cmp_ge_u32 s2, 256")
    A("s_cbranch_scc1 L_END")
    A(f"s_load_dwordx16 s[{S_ARG}:{S_ARG+15}], s[0:1], 0")
    A(f"s_load_dwordx4 s[{S_DBG}:{S_DBG+3}], s[0:1], 96")
    A(f"s_load_dwordx2 s[{S_OUTP}:{S_OUTP+1}], s[0:1], 88")
    A(f"s_memrealtime s[{S_T0}:{S_T0+1}]")
    A("v_lshrrev_b32 v8, 6, v0")
    A("v_and_b32 v0, 63, v0")
    A(f"v_readfirstlane_b32 s{S_W}, v8")
    A(f"v_lshlrev_b32 v{V_LANE16}, 4, v0")
    A("s_and_b32 s8, s2, 7")
    A(f"s_lshr_b32 s{S_H}, s8, 1")
    A(f"s_and_b32 s{S_SP}, s8, 1")
    A(f"s_lshr_b32 s{S_QT}, s2, 3")
    A(f"s_lshl_b32 s8, s{S_H}, 6")
    A(f"s_lshl_b32 s9, s{S_SP}, 5")
    A("s_add_u32 s8, s8, s9")
    A(f"s_lshr_b32 s9, s{S_QT}, 1")
    A("s_lshr_b32 s10, s9, 2")
    A("s_lshl_b32 s10, s10, 3")
    A("s_and_b32 s9, s9, 3")
    A("s_add_u32 s10, s10, s9")
    A(f"s_add_u32 s{S_G}, s8, s10")
    A(f"s_and_b32 s66x, s{S_QT}, 1".replace("s66x", "s11"))
    A(f"v_and_b32 v{vC}, 15, v0")
    A(f"v_lshrrev_b32 v{vR0}, 4, v0")
    A(f"s_lshl_b32 s9, s{S_W}, 2")
    A(f"v_add_u32 v{vR0}, s9, v{vR0}")
    A("s_lshl_b32 s9, s11, 4")
    A(f"v_add_u32 v{T}, s9, v{vR0}")
    A(f"v_lshlrev_b32 v{vKo}, 9, v{T}")
    A(f"v_lshl_add_u32 v{vKo}, v{vC}, 4, v{vKo}")
    A(f"v_lshlrev_b32 v{vKs}, 3, v{T}")
    A(f"v_lshrrev_b32 v{T+1}, 1, v{vC}")
    A(f"v_lshlrev_b32 v{vKst}, 10, v{T+1}")
    A(f"v_and_b32 v{T+2}, 1, v{vC}")
    A(f"v_lshl_add_u32 v{vKst}, v{T+2}, 9, v{vKst}")
    A(f"v_lshl_add_u32 v{vKst}, v{T}, 4, v{vKst}")
    A(f"v_lshl_add_u32 v{T+2}, v{T+2}, 5, v{vR0}")
    A(f"v_and_b32 v{T+3}, 7, v{vC}")
    A(f"v_xor_b32 v{T+2}, v{T+2}, v{T+3}")
    A(f"v_lshlrev_b32 v{vQw}, 10, v{T+1}")
    A(f"v_lshl_add_u32 v{vQw}, v{T+2}, 4, v{vQw}")
    A(f"v_lshrrev_b32 v{vSel}, 3, v{vC}")
    A(f"v_lshlrev_b32 v{vSel}, 4, v{vSel}")
    A(f"v_sub_u32 v{vSel}, 16, v{vSel}")
    A(f"v_and_b32 v{T}, 31, v0")
    A(f"v_lshrrev_b32 v{T+1}, 5, v0")
    A(f"v_bfe_u32 v{T+2}, v{T}, 2, 1")
    A(f"v_lshlrev_b32 v{T+2}, 4, v{T+2}")
    A(f"v_lshrrev_b32 v{T+3}, 3, v{T}")
    A(f"v_lshl_add_u32 v{T+2}, v{T+3}, 2, v{T+2}")
    A(f"v_and_b32 v{T+3}, 3, v{T}")
    A(f"v_add_u32 v{T+2}, v{T+2}, v{T+3}")
    A("s_lshl_b32 s9, s11, 4")
    A(f"v_lshlrev_b32 v{T+1}, 2, v{T+1}")
    A(f"v_add_u32 v{T+1}, s9, v{T+1}")
    A(f"s_lshl_b32 s9, s{S_W}, 7")
    A("s_add_u32 s9, s9, 2048")
    A(f"v_lshlrev_b32 v{vVd}, 9, v{T+1}")
    A(f"v_lshl_add_u32 v{vVd}, v{T+2}, 2, v{vVd}")
    A(f"v_add_u32 v{vVd}, s9, v{vVd}")
    A(f"s_lshl_b32 s9, s{S_W}, 1")
    A(f"v_lshlrev_b32 v{vVs}, 3, v{T+1}")
    A(f"v_add_u32 v{vVs}, s9, v{vVs}")
    A(f"v_lshlrev_b32 v{vQd}, 8, v{vR0}")
    A(f"v_lshl_add_u32 v{vQd}, v{vC}, 3, v{vQd}")
    A(f"v_add_u32 v{vQd}, 2048, v{vQd}")
    A(f"s_lshl_b32 s42, s{S_G}, 14")
    A(f"s_lshl_b32 s43, s{S_G}, 8")
    A("s_lshl_b32 s9, s8, 3")
    A(f"s_add_u32 s65, s9, {WS_F}")
    A(f"v_mov_b32 v{T+7}, s65")
    A(f"s_lshl_b32 s9, s{S_QT}, 1")
    A(f"s_add_u32 s46, s9, s{S_SP}")
    A("s_xor_b32 s47, s46, 1")
    A(f"s_lshl_b32 s9, s{S_H}, 6")
    A("s_add_u32 s94, s9, s47")
    A("s_lshl_b32 s94, s94, 13")
    A("s_add_u32 s95, s9, s46")
    A("s_lshl_b32 s95, s95, 13")
    A(f"v_lshlrev_b32 v{T}, 2, v{vC}")
    A(f"v_cvt_f32_u32 v{T}, v{T}")
    A(f"s_mov_b32 s9, {F(TRIG_A)}")
    for j in range(4): A(f"v_mov_b32 v{W+j}, {F(TRIG_B + j * TRIG_A)}")
    for j in range(4): A(f"v_fma_f32 v{W+j}, v{T}, s9, v{W+j}")
    for j in range(4): A(f"v_exp_f32 v{W+j}, v{W+j}")
    A(f"s_lshl_b32 s9, s{S_SP}, 5")
    A("s_add_u32 s9, s9, s10")
    A("s_lshl_b32 s9, s9, 5")
    A("s_lshl_b32 s10, s11, 4")
    A("s_add_u32 s44, s9, s10")
    trig("s44", 0, CKA, SKA, None)
    A("s_waitcnt lgkmcnt(0)")
    g.stamp(1)
    A(f"s_or_b32 s10, s2, s{S_W}")
    A("s_cmp_lg_u32 s10, 0")
    A("s_cbranch_scc1 L_NONONCE")
    A(f"s_or_b32 s10, s{S_T0}, 1")
    A(f"v_mov_b32 v{T+1}, 0")
    A(f"v_mov_b32 v{T+2}, s10")
    A("s_mov_b64 exec, 1")
    A(f"global_store_dword v{T+1}, v{T+2}, s[{S_DBG}:{S_DBG+1}] sc1")
    A("s_mov_b64 exec, -1")
    A.label("L_NONONCE")
    add64(A, 22, 22, "s42"); add64(A, 24, 24, "s43"); add64(A, 26, 26, "s43")
    kloads("s[22:23]", "s[24:25]", "s[26:27]")
    add64(A, 28, 28, "s42"); add64(A, 30, 30, "s43"); add64(A, 32, 32, "s43")
    vloads("s[28:29]", "s[30:31]", "s[32:33]")
    add64(A, 34, 20, "s94"); add64(A, 20, 20, "s95")
    for X in range(2):
        base = "s[34:35]" if X == 0 else "s[20:21]"
        for it in range(2):
            r = QD + (X * 2 + it) * 4
            A(f"global_load_dwordx2 {vr(r, 2)}, v{vQd}, {base} offset:{it*4096 - 2048}")
            A(f"global_load_dwordx2 {vr(r + 2, 2)}, v{vQd}, {base} offset:{it*4096 - 2048 + 128}")
    A(f"global_load_dword v173, v{T+7}, s[38:39] sc1")
    A(f"global_load_dword v174, v{T+7}, s[38:39] offset:128 sc1")
    srd(A, S_WS, 38, WS_SIZE)
    trig("s44", 128, CKB, SKB, None)
    add64(A, 22, 22, 4 * 16384); add64(A, 24, 24, 4 * 256); add64(A, 26, 26, 4 * 256)
    add64(A, 28, 28, 4 * 16384); add64(A, 30, 30, 4 * 256); add64(A, 32, 32, 4 * 256)
    A(f"s_lshl_b32 s43, s{S_G}, 14")
    A(f"s_lshl_b32 s9, s{S_W}, 11")
    A("s_lshl_b32 s10, s11, 10")
    A("s_add_u32 s9, s9, s10")
    A("s_add_u32 s9, s9, 8192")
    A("s_add_u32 s42, s43, s9")
    A("s_add_u32 s66, s43, 65536".replace("s66", "s96"))
    A("s_add_u32 s97, s42, 65536")
    A("s_lshl_b32 s44, s2, 13")
    A(f"s_lshl_b32 s10, s{S_W}, 11")
    A("s_add_u32 s44, s44, s10")
    A(f"s_add_u32 s44, s44, {WS_X}")
    A("s_lshl_b32 s45, s2, 10")
    A(f"s_lshl_b32 s10, s{S_W}, 8")
    A("s_add_u32 s45, s45, s10")
    A(f"s_add_u32 s45, s45, {WS_L}")
    A("s_waitcnt vmcnt(34)")
    g.stamp(2)
    NE = opt.get("nonce_early", 1)
    if NE:
        A(f"v_mov_b32 v{T+1}, 0")
        A(f"global_load_dword v{NON}, v{T+1}, s[{S_DBG}:{S_DBG+1}] sc1")
    for l in kcompute(CKA, SKA, "s43"): A(l)
    A(f"s_waitcnt vmcnt({11 + NE})")
    g.stamp(3)
    for l in vcompute("s42"): A(l)
    if not NE:
        A(f"v_mov_b32 v{T+1}, 0")
        A(f"global_load_dword v{NON}, v{T+1}, s[{S_DBG}:{S_DBG+1}] sc1")
    kloads("s[22:23]", "s[24:25]", "s[26:27]")
    vloads("s[28:29]", "s[30:31]", "s[32:33]")
    A(f"v_mov_b32 v12, v{vKst}")
    A(f"v_mov_b32 v13, v{vSel}")
    A("s_lshl_b32 s10, s47, 5")
    A("s_lshl_b32 s11, s46, 5")
    A(f"s_mov_b32 s46, {F(QSCALE)}")
    A(f"s_mov_b32 s47, {F(QSCALE)}")
    trig("s10", 0, CQ, SQ, 46); trig("s10", 16, CQ + 4, SQ + 4, 46)
    trig("s11", 0, CQ + 8, SQ + 8, 46); trig("s11", 16, CQ + 12, SQ + 12, 46)
    A(f"s_lshl_b32 s9, s{S_QT}, 2")
    A("s_add_u32 s9, s9, s65")
    A(f"v_mov_b32 v{vMyF}, s9")
    A(f"s_lshl_b32 s9, s{S_W}, 5")
    A("s_add_u32 s9, s9, s65")
    A(f"v_and_b32 v{vPoll}, 7, v0")
    A(f"v_lshl_add_u32 v{vPoll}, v{vPoll}, 2, s9")
    A("s_mov_b32 s10, 0")
    A("s_mov_b32 s65, 0")
    A("s_waitcnt vmcnt(28)")
    g.stamp(4)
    A.label("L_NPOLL")
    A(f"v_readfirstlane_b32 s{S_XCC}, v{NON}")
    A("s_nop 1")
    A(f"s_sub_u32 s94, s{S_XCC}, s{S_T0}")
    A("s_add_u32 s94, s94, 500")
    A("s_cmp_lt_u32 s94, 2500")
    A(f"s_cselect_b32 s94, s{S_XCC}, 0")
    A("s_cmp_lg_u32 s94, 0")
    A("s_cbranch_scc1 L_NOK")
    A("s_add_u32 s10, s10, 1")
    A(f"s_cmp_ge_u32 s10, {opt.get('maxpoll0', 200)}")
    A("s_cbranch_scc1 L_NTIMEOUT")
    A(f"v_mov_b32 v{T+1}, 0")
    A(f"global_load_dword v{NON}, v{T+1}, s[{S_DBG}:{S_DBG+1}] sc1")
    A("s_waitcnt vmcnt(0)")
    A("s_branch L_NPOLL")
    A.label("L_NTIMEOUT")
    A(f"s_mov_b32 s{S_XCC}, 1")
    A("s_mov_b32 s65, 1")
    A.label("L_NOK")
    A(f"v_mov_b32 v{vFVal}, s{S_XCC}")
    A("s_barrier")
    A("s_mov_b64 exec, 1")
    A(f"global_store_dword v{vMyF}, v{vFVal}, s[38:39]")
    A("s_mov_b64 exec, -1")
    for pc in range(4):
        X, it = pc >> 1, pc & 1
        r = QD + pc * 4
        for hh in range(2):
            for k in range(2):
                A(f"v_lshlrev_b32 v{QX+4*hh+2*k}, 16, v{r+2*hh+k}")
                A(f"v_and_b32 v{QX+4*hh+2*k+1}, 0xffff0000, v{r+2*hh+k}")
        for l in rope(QX, CQ + 4*pc, SQ + 4*pc, QU, QOUT): A(l)
        A(f"ds_write_b128 v{vQw}, {vr(QOUT, 4)} offset:{X*8192 + it*256}")
    A(f"global_load_dword v{FL}, v{vPoll}, s[38:39] sc1")
    for j in range(4):
        A(f"s_add_u32 s9, s{S_W}, {j}")
        A("s_and_b32 s9, s9, 3")
        A("s_lshl_b32 s9, s9, 11")
        A("s_add_u32 s9, s9, 8192")
        A(f"v_add_u32 v{V_OFFV + j}, s9, v{V_LANE16}")
    A(f"s_lshl_b32 s9, s{S_W}, 3")
    A("s_add_u32 s8, s8, s9")
    A(f"s_lshl_b32 s{S_TILE}, s8, 14")
    A(f"s_add_u32 s{S_TILE+1}, s{S_TILE}, 4096")
    for t in range(1, 8):
        A(f"s_add_u32 s{S_TILE + 2*t}, s{S_TILE}, {t * 16384}")
        A(f"s_add_u32 s{S_TILE + 2*t + 1}, s{S_TILE}, {t * 16384 + 4096}")
    A(f"v_lshrrev_b32 v{T+3}, 5, v0")
    for k in range(4):
        A(f"v_add_u32 v{8+k}, {2*k}, v{T+3}")
        A(f"v_xor_b32 v{8+k}, v{8+k}, v0")
        A(f"v_lshlrev_b32 v{8+k}, 4, v{8+k}")
    A(f"v_mov_b32 v{V_LA}, 0")
    A(f"v_mov_b32 v{V_LB}, 0")
    A("s_waitcnt lgkmcnt(0)")
    A("s_barrier")
    for ks in range(4):
        for X in range(2):
            A(f"ds_read_b128 {Qreg(X, ks)}, v{8 + (ks & 3)} offset:{(X * 8 + ks) * 1024}")
    g.stamp(5)
    A("s_mov_b32 s10, 0")
    A("s_cmp_lg_u32 s65, 0")
    A("s_cbranch_scc1 L_FOK")
    A.label("L_FPOLL")
    A("s_waitcnt vmcnt(0)")
    A(f"v_cmp_ne_u32 vcc, s{S_XCC}, v{FL}")
    A("s_nop 0")
    A("s_cbranch_vccz L_FOK")
    A("s_add_u32 s10, s10, 1")
    A(f"s_cmp_ge_u32 s10, {opt.get('maxpoll1', 400)}")
    A("s_cbranch_scc1 L_FTIMEOUT")
    A(f"global_load_dword v{FL}, v{vPoll}, s[38:39] sc1")
    A("s_branch L_FPOLL")
    A.label("L_FTIMEOUT")
    A("s_mov_b32 s65, 1")
    A.label("L_FOK")
    g.stamp(6)
    if opt.get("stamp"): A(f"s_mov_b32 s{ST0 + 2*11}, s10")
    seq = stream()
    for p in range(16): A(ring_load(seq, p, opt.get("ring_mod", "")))
    g.stamp(7)
    g.stamp_wait()
    for j in range(4): A(f"v_mov_b32 v{184 + j}, -1")
    A("v_lshlrev_b32 v183, 2, v0")
    g.stageB = kcompute(CKB, SKB, "s96", 12, 13) + vcompute("s97")
    g.s2regs = dict(vPoll=vPoll, vRes=vRes, vMyF=vMyF, vFVal=vFVal)

def gen_wavefail(g):
    A = g.A
    A.label("L_WAVEFAIL")
    A("s_mov_b64 exec, -1")
    A("s_waitcnt vmcnt(0) lgkmcnt(0)")
    A(f"v_lshlrev_b32 v19, 2, v0")
    for j in range(4): A(f"v_mov_b32 v{136 + j}, -1")
    A(f"buffer_store_dwordx4 v[136:139], v{V_LANE16}, s[{S_WS}:{S_WS+3}], s44 offen sc1")
    A(f"buffer_store_dwordx4 v[136:139], v{V_LANE16}, s[{S_WS}:{S_WS+3}], s44 offen offset:1024 sc1")
    A(f"buffer_store_dword v136, v19, s[{S_WS}:{S_WS+3}], s45 offen sc1")
    e = Epi(g)
    for l in e.address_setup(): A(l)
    A(f"v_mov_b32 v{V_LA}, 0x7fc00000")
    A(f"v_mov_b32 v{V_LB}, 0x7fc00000")
    for l in e.lwrite(0): A(l)
    A("s_waitcnt vmcnt(0)")
    A("s_branch L_EPI")

def gen_main(g):
    A, opt = g.A, g.opt
    if opt.get("align64"): A(".p2align 6")
    for _ in range(opt.get("prenop", 0)): A("s_nop 0")
    seq = stream()
    rmod = opt.get("ring_mod", "")
    pos_of = {(k, t, i): p for p, (k, t, i) in enumerate(seq)}
    ops = []
    def phase(kind, t, Xs=(0, 1)):
        if len(Xs) == 2:
            for i in range(8):
                for X in (0, 1): ops.append((kind, t, i, X))
        else:
            for i in range(8): ops.append((kind, t, i, Xs[0]))
    if opt.get("xsplit0", 0): phase("K", 0, (0,)); phase("K", 0, (1,))
    else: phase("K", 0)
    for t in range(6):
        phase("K", t + 1); phase("V", t)
    if opt.get("xsplit7", 0): phase("K", 7, (0,)); phase("K", 7, (1,))
    else: phase("K", 7)
    if opt.get("tailorder", 0) == 1:
        phase("V", 6, (0,)); phase("V", 6, (1,)); phase("V", 7, (0,))
        iB = len(ops)
        phase("V", 7, (1,))
    else:
        phase("V", 6, (0,)); phase("V", 7, (0,))
        iB = len(ops)
        phase("V", 6, (1,)); phase("V", 7, (1,))
    NG = len(ops); assert NG == 256
    first, last = {}, {}
    for n, (k, t, i, X) in enumerate(ops):
        p = pos_of[(k, t, i)]
        first.setdefault(p, n); last[p] = n
    lastS = {}
    for n, (k, t, i, X) in enumerate(ops):
        if k == "K": lastS[(t, X)] = n
    firstP = {}
    for n, (k, t, i, X) in enumerate(ops):
        if k == "V": firstP.setdefault((t, X, i >> 2), n)
    tasks = []
    for t in range(8):
        if t < 7:
            order = [(0, 0), (1, 0), (0, 1), (1, 1)]
        else:
            order = [(0, 0), (0, 1), (1, 0), (1, 1)]
        if t == 6: order = [(0, 0), (0, 1), (1, 0), (1, 1)]
        for X, half in order:
            for j in range(8 * half, 8 * half + 8): tasks.append((t, X, j))
    def avail(t, X):
        lag = opt.get("lag0", 5) if t == 0 else opt.get("lag", 3)
        return lastS[(t, X)] + lag + (0 if X == 1 else 1)
    def deadline(t, X, j): return firstP[(t, X, j >> 3)]
    plan = [[] for _ in range(NG)]
    MARG = 3
    CAP = opt.get("cap", 2)
    if opt.get("edf", 1):
        tasks.sort(key=lambda x: (deadline(*x), x[0], x[1], x[2]))
        LS = {}; cnt = {}
        nxt = {}
        for x in reversed(tasks):
            gg = deadline(*x) - MARG
            key = (x[0], x[1])
            if key in nxt: gg = min(gg, nxt[key])
            while cnt.get(gg, 0) >= CAP: gg -= 1
            cnt[gg] = cnt.get(gg, 0) + 1
            LS[x] = gg; nxt[key] = gg
        remaining = list(tasks)
        for gg in range(NG):
            n = 0
            while True:
                av = [x for x in remaining if avail(x[0], x[1]) <= gg and all(not (y[0] == x[0] and y[1] == x[1] and y[2] < x[2]) for y in remaining)]
                if not av: break
                must = [x for x in av if LS[x] <= gg]
                if must: x = min(must, key=lambda y: LS[y])
                elif n < 1: x = av[0]
                else: break
                if n >= CAP: break
                plan[gg].append(x); remaining.remove(x); n += 1
            for x in remaining: assert deadline(*x) - MARG > gg, ("deadline miss", gg, x)
        assert not remaining
    else:
        LS = [0] * len(tasks); cnt = {}; nxt = 10 ** 9
        for k in range(len(tasks) - 1, -1, -1):
            t, X, j = tasks[k]
            gg = min(deadline(t, X, j) - MARG, nxt)
            while cnt.get(gg, 0) >= CAP: gg -= 1
            cnt[gg] = cnt.get(gg, 0) + 1
            LS[k] = gg; nxt = gg
        done = 0
        for gg in range(NG):
            n = 0
            while done < len(tasks) and avail(tasks[done][0], tasks[done][1]) <= gg and (n < 1 or LS[done] <= gg):
                plan[gg].append(tasks[done]); done += 1; n += 1
            if done < len(tasks): assert LS[done] > gg, ("deadline miss", gg, tasks[done], LS[done])
        assert done == len(tasks)
    if opt.get("show_plan"):
        print("elements per gap:", "".join(str(len(x)) for x in plan), file=sys.stderr)
    st = dict(add=[], cvt=[])
    E64 = "_e64" if opt.get("e64") else ""
    def fillers(gg):
        out = []
        adds, cvts = st["add"], st["cvt"]
        st["add"], st["cvt"] = [], []
        exps = []
        PKA = opt.get("pkadd", 0)
        DOT = opt.get("dotsum", 0)
        for (t, X, j) in plan[gg]:
            s = Sreg(t & 1, X) + j
            exps.append(f"v_exp_f32{E64} v{s}, v{s}")
            if not DOT and (not PKA or (j & 1)): st["add"].append((t, X, j))
            if j & 1: st["cvt"].append((t, X, j))
        rest = []
        for (t, X, j) in adds:
            if DOT:
                rest.append(f"v_dot2c_f32_bf16 v{V_LA + X}, s95, v{Preg(t & 1, X) + (j >> 1)}")
            elif PKA:
                sp = Sreg(t & 1, X) + j - 1
                rest.append(f"v_pk_add_f32 {vr(188 + 2 * X, 2)}, {vr(188 + 2 * X, 2)}, {vr(sp, 2)}")
            else:
                rest.append(f"v_add_f32{E64} v{V_LA + X}, v{V_LA + X}, v{Sreg(t & 1, X) + j}")
        for (t, X, j) in cvts:
            s = Sreg(t & 1, X) + j
            rest.append(f"v_cvt_pk_bf16_f32 v{Preg(t & 1, X) + (j >> 1)}, v{s - 1}, v{s}")
            if DOT: st["add"].append((t, X, j))
        while exps or rest:
            if exps: out.append(exps.pop(0))
            if rest: out.append(rest.pop(0))
            if rest and not exps: out += rest; rest = []
        return out
    extra = {n: [] for n in range(NG)}
    if opt.get("xsplit0", 0):
        for n in range(8, 13): extra[n].append("s_nop 2")
    epi = Epi(g)
    pre = epi.address_setup()
    for k, ins in enumerate(pre):
        extra[200 + k // 2].append(ins)
    wa = epi.lwrite(0) + epi.owrite(0)
    if opt.get("pkadd"): wa = [f"v_add_f32 v{V_LA}, v188, v189"] + wa
    lastA_add = max(n for n in range(NG) for (t, X, j) in plan[n] if X == 0) + 1 + (4 if opt.get("dotsum") else 0)
    startA = max(iB + 1, lastA_add + 1)
    TAIL2 = opt.get("tail2", 0)
    if not TAIL2:
        startA = max(iB + 2, lastA_add + 1)
        for k, ins in enumerate(wa):
            extra[min(NG - 4, startA + k)].append(ins)
    else:
        for k, ins in enumerate(wa):
            extra[startA + (k + 1) // 2].append(ins)
        gb = opt.get("tail_bar", 250)
        extra[gb].append("s_waitcnt lgkmcnt(0)")
        extra[gb].append("s_barrier")
        rd = epi.oread(0)
        per = -(-len(rd) // (NG - gb))
        for k, ins in enumerate(rd):
            extra[gb + k // per].append(ins)
    DEPTH = opt.get("depth", 16)
    SPLIT = opt.get("split", 0)
    PROG = opt.get("prog", 0)
    STAGE2 = opt.get("stage2", 0)
    if STAGE2: order = list(range(DEPTH))
    elif SPLIT: order = ["vflag"] + list(range(DEPTH)) + ["s0", "s1", "s2"]
    elif PROG or opt.get("sent_in_loop", 0) or opt.get("xl", 0): order = list(range(DEPTH))
    else: order = list(range(DEPTH)) + ["s0", "s1", "s2"]
    SENTL = (PROG or opt.get("sent_in_loop", 0)) and not SPLIT and not STAGE2
    sent_ins = [f"buffer_store_dwordx4 v[136:139], v{V_LANE16}, s[{S_WS}:{S_WS+3}], s44 offen sc1",
                f"buffer_store_dwordx4 v[136:139], v{V_LANE16}, s[{S_WS}:{S_WS+3}], s44 offen offset:1024 sc1",
                f"buffer_store_dword v136, v185, s[{S_WS}:{S_WS+3}], s45 offen sc1"]
    def younger(x): return len(order) - 1 - order.index(x)
    sched = {}
    loaded = set(range(DEPTH))
    bal = opt.get("bal", 1)
    for n, (k, t, i, X) in enumerate(ops):
        p = pos_of[(k, t, i)]
        trigger = (first[p] == n) if bal else (last[p] == n)
        if trigger and p + DEPTH < 128:
            q = p + DEPTH
            if opt.get("stage2") and 40 <= p < 48: q = p + 24
            elif opt.get("stage2") and 48 <= p < 56: q = p + 8
            if SPLIT and p < 8: q = 24 + p
            elif SPLIT and p < 16: continue
            sched.setdefault(n, []).append(q)
    if SPLIT:
        for j in range(8): sched.setdefault(16 + j, []).append(16 + j)
    for n, (k, t, i, X) in enumerate(ops):
        p = pos_of[(k, t, i)]
        if n in (0, 16, 32, 128, 240): A.c(f"---- mfma {n}: {k}{t} i{i} X{X}")
        if opt.get("stamp") and opt.get("loopstamp") == 1 and n in (32, 64, 96, 128, 160, 192, 224):
            g.stamp(n // 32)
        if opt.get("stamp") and opt.get("loopstamp") == 2 and n in (17, 24, 32, 40, 48, 64):
            g.stamp({17: 1, 24: 2, 32: 3, 40: 4, 48: 5, 64: 6}[n])
        if opt.get("stamp") and opt.get("loopstamp") == 3 and n in (208, 216, 224, 232, 240, 248):
            g.stamp({208: 1, 216: 2, 224: 3, 232: 4, 240: 5, 248: 6}[n])
        if STAGE2 and n == 96:
            R = g.s2regs
            A(f"s_waitcnt vmcnt({younger('vpoll')})")
            A("s_mov_b32 s10, 0")
            A.label("L_VPOLL")
            A(f"v_cmp_ne_u32 vcc, s{S_XCC}, v{R['vRes']}")
            A("s_nop 0")
            A("s_cbranch_vccz L_VOK")
            A("s_add_u32 s10, s10, 1")
            A(f"s_cmp_ge_u32 s10, {opt.get('maxpoll1', 400)}")
            A("s_cbranch_scc1 L_WAVEFAIL")
            A(f"global_load_dword v{R['vRes']}, v{R['vPoll']}, s[38:39] offset:128 sc1")
            A("s_waitcnt vmcnt(0)")
            A("s_branch L_VPOLL")
            A.label("L_VOK")
        if (SPLIT or PROG) and n == 16:
            A(f"s_waitcnt vmcnt({younger('vpoll')})")
            A("s_mov_b32 s10, 0")
            A.label("L_VPOLL")
            A(f"v_cmp_ne_u32 vcc, s{S_XCC}, v187")
            A("s_nop 0")
            A("s_cbranch_vccz L_VOK")
            A("s_add_u32 s10, s10, 1")
            A(f"s_cmp_ge_u32 s10, {opt.get('maxpoll1', 400)}")
            A("s_cbranch_scc1 L_WAVEFAIL")
            A(f"global_load_dword v187, v186, s[38:39] offset:{128 if SPLIT else 0} sc1")
            A("s_waitcnt vmcnt(0)")
            A("s_branch L_VPOLL")
            A.label("L_VOK")
        if first[p] == n:
            w = f"s_waitcnt vmcnt({younger(p)})"
            if k == "K" and t == 0:
                if opt.get("xsplit0", 0): w += " lgkmcnt(0)" if i == 0 or i == 4 else ""
                else:
                    nq = min(7, i + 3) - i
                    w += f" lgkmcnt({2 * nq})"
            A(w)
            if opt.get("e64"): A("s_nop 0")
        frag = ring(p)
        if k == "K":
            S = vr(Sreg(t & 1, X), 16)
            C = "0" if i == 0 else S
            A(f"v_mfma_f32_32x32x16_bf16 {S}, {frag}, {Qreg(X, i)}, {C}")
        else:
            j, ks = i & 3, i >> 2
            O = Oreg(X, j)
            C = "0" if (t == 0 and ks == 0) else O
            A(f"v_mfma_f32_32x32x16_bf16 {O}, {frag}, {vr(Preg(t & 1, X) + 4 * ks, 4)}, {C}")
        fl = fillers(n)
        for q in sched.get(n, []):
            assert last.get(q - RINGSZ, -1) < n + (0 if bal else 1), (q, n)
            fl.insert(min(opt.get("ldpos", 0), len(fl)), ring_load(seq, q, rmod)); order.append(q); loaded.add(q)
        if STAGE2:
            R = g.s2regs
            if n < 16:
                nb = len(g.stageB); lo = (n * nb) // 16; hi = ((n + 1) * nb) // 16
                for ins in g.stageB[lo:hi]:
                    fl.append(ins)
                    if ins.startswith("buffer_store"): order.append("bst%d" % len([o for o in order if str(o).startswith("bst")]))
            if n == opt.get("bpub", 58):
                fl += [f"s_waitcnt vmcnt({younger('bst1')})", "s_barrier", "s_mov_b64 exec, 1",
                       f"global_store_dword v{R['vMyF']}, v{R['vFVal']}, s[38:39] offset:128", "s_mov_b64 exec, -1",
                       "s_cmp_lg_u32 s65, 0", "s_cbranch_scc1 L_WAVEFAIL"]
                order.append("bflag")
            if n in (62, 64, 66):
                k3 = (n - 62) // 2
                fl.append([f"buffer_store_dwordx4 v[184:187], v{V_LANE16}, s[{S_WS}:{S_WS+3}], s44 offen sc1",
                           f"buffer_store_dwordx4 v[184:187], v{V_LANE16}, s[{S_WS}:{S_WS+3}], s44 offen offset:1024 sc1",
                           f"buffer_store_dword v184, v183, s[{S_WS}:{S_WS+3}], s45 offen sc1"][k3]); order.append(f"s{n}")
            if n == opt.get("bpoll", 84):
                fl.append(f"global_load_dword v{R['vRes']}, v{R['vPoll']}, s[38:39] offset:128 sc1"); order.append("vpoll")
        if opt.get("xl", 0):
            wsr = f"s[{S_WS}:{S_WS+3}]"
            if n in (18, 20, 22):
                fl.append([f"buffer_load_dwordx4 v[176:179], v{V_LANE16}, {wsr}, s44 offen sc1",
                           f"buffer_load_dwordx4 v[180:183], v{V_LANE16}, {wsr}, s44 offen offset:1024 sc1",
                           f"buffer_load_dword v188, v189, {wsr}, s45 offen sc1"][(n - 18) // 2]); order.append(f"pr{n}")
            if n in (70, 72, 74):
                fl.append([f"buffer_store_dwordx4 v[184:187], v{V_LANE16}, {wsr}, s44 offen",
                           f"buffer_store_dwordx4 v[184:187], v{V_LANE16}, {wsr}, s44 offen offset:1024",
                           f"buffer_store_dword v184, v189, {wsr}, s45 offen"][(n - 70) // 2]); order.append(f"s{n}")
        if SENTL and n in (17, 19, 21):
            fl.append(sent_ins[(n - 17) // 2]); order.append(f"s{n}")
        if (SPLIT or PROG) and n == opt.get("vpoll_at", 9):
            fl.append(f"global_load_dword v187, v186, s[38:39] offset:{128 if SPLIT else 0} sc1"); order.append("vpoll")
        if opt.get("xsplit0", 0):
            if n == 0:
                for ks4 in range(4, 8):
                    for XX in range(2):
                        fl.append(f"ds_read_b128 {Qreg(XX, ks4)}, v{8 + (ks4 & 3)} offset:{(XX * 8 + ks4) * 1024}")
        elif k == "K" and t == 0 and X == 1 and i + 4 <= 7:
            for XX in range(2):
                fl.append(f"ds_read_b128 {Qreg(XX, i + 4)}, v{8 + ((i + 4) & 3)} offset:{(XX * 8 + i + 4) * 1024}")
        fl += extra[n]
        dbgdrop = opt.get("drop", "")
        if "a" in dbgdrop: fl = [l for l in fl if not l.startswith("v_add_f32 v6,") and not l.startswith("v_add_f32 v7,")]
        if "e" in dbgdrop: fl = [l for l in fl if not l.startswith("v_exp_f32")]
        if "c" in dbgdrop: fl = [l for l in fl if not l.startswith("v_cvt_pk")]
        for l in fl: A(l)
    issued = len(loaded)
    assert issued == 128
    assert not st["cvt"]
    for (t, X, j) in st["add"]:
        if opt.get("dotsum"):
            A(f"v_dot2c_f32_bf16 v{V_LA + X}, s95, v{Preg(t & 1, X) + (j >> 1)}")
        elif opt.get("pkadd"):
            A(f"v_pk_add_f32 {vr(188 + 2 * X, 2)}, {vr(188 + 2 * X, 2)}, {vr(Sreg(t & 1, X) + j - 1, 2)}")
        else:
            A(f"v_add_f32 v{V_LA + X}, v{V_LA + X}, v{Sreg(t & 1, X) + j}")
    if opt.get("pkadd"): A(f"v_add_f32 v{V_LB}, v190, v191")
    epi.finish()

class Epi:
    vWr = [None, 8, 9, 10]; vRd = 11; vLw = 12; vLr = 13; vX = 14
    TA = V_S
    TL = 64
    PK = 72
    RX = 80
    def __init__(self, g): self.g = g; self.A = g.A; self.opt = g.opt
    def address_setup(self):
        L = []
        for j in range(1, 4):
            L += [f"s_add_u32 s9, s{S_W}, {j}", "s_and_b32 s9, s9, 3", "s_mul_i32 s9, s9, 12288",
                  f"s_add_u32 s9, s9, {RED_A + (j - 1) * 4096}", f"v_add_u32 v{self.vWr[j]}, s9, v{V_LANE16}"]
        L += [f"s_mul_i32 s9, s{S_W}, 12288", f"s_add_u32 s9, s9, {RED_A}", f"v_add_u32 v{self.vRd}, s9, v{V_LANE16}"]
        L += ["v_and_b32 v15, 31, v0", f"v_lshlrev_b32 v{self.vLr}, 5, v15", f"v_add_u32 v{self.vLr}, {LRED}, v{self.vLr}",
              "v_lshrrev_b32 v15, 5, v0", f"v_lshl_add_u32 v{self.vLw}, v15, 2, v{self.vLr}",
              f"s_lshl_b32 s9, s{S_W}, 3", f"v_add_u32 v{self.vLw}, s9, v{self.vLw}",
              f"v_lshlrev_b32 v{self.vX}, 2, v0"]
        if self.opt.get("xl", 0): L += ["s_xor_b32 s46, s44, 65536", "s_xor_b32 s47, s45, 8192"]
        else: L += ["s_xor_b32 s46, s44, 8192", "s_xor_b32 s47, s45, 1024"]
        L += [f"s_lshl_b32 s9, s{S_H}, 6", f"s_lshl_b32 s10, s{S_QT}, 1", "s_add_u32 s9, s9, s10", f"s_add_u32 s9, s9, s{S_SP}",
              "s_lshl_b32 s9, s9, 13", f"s_lshl_b32 s10, s{S_W}, 6", "s_add_u32 s42, s9, s10",
              "v_and_b32 v15, 31, v0", "v_lshlrev_b32 v15, 8, v15"]
        L += [f"s_mov_b32 s{S_OUT}, s{S_OUTP}", f"s_and_b32 s{S_OUT+1}, s{S_OUTP+1}, 0xffff", f"s_mov_b32 s{S_OUT+2}, {2 << 20}", f"s_mov_b32 s{S_OUT+3}, 0x20000"]
        return L
    def lwrite(self, X):
        return [f"ds_write_b32 v{self.vLw}, v{V_LA + X} offset:{X * 1024}"]
    def owrite(self, X):
        L = []
        for j in range(1, 4):
            for qd in range(4):
                a = A_O + X * 48 + (j - 1) * 16 + qd * 4
                L.append(f"ds_write_b128 v{self.vWr[j]}, {ar(a, 4)} offset:{X * RED_BOFF + qd * 1024}")
        return L
    def oread(self, X):
        L = [f"ds_read_b128 {vr(self.TL, 4)}, v{self.vLr} offset:{X * 1024}",
             f"ds_read_b128 {vr(self.TL + 4, 4)}, v{self.vLr} offset:{X * 1024 + 16}"]
        for j in range(1, 4):
            for qd in range(4):
                L.append(f"ds_read_b128 {vr(self.TA + (j - 1) * 16 + qd * 4, 4)}, v{self.vRd} offset:{X * RED_BOFF + (j - 1) * 4096 + qd * 1024}")
        return L
    def sums(self, X):
        A = self.A; TL = self.TL; O = V_O0 + 16 * X
        A(f"v_add_f32 v{TL}, v{TL}, v{TL + 1}")
        A(f"v_add_f32 v{TL + 2}, v{TL + 2}, v{TL + 3}")
        A(f"v_add_f32 v{TL + 4}, v{TL + 4}, v{TL + 5}")
        A(f"v_add_f32 v{TL + 6}, v{TL + 6}, v{TL + 7}")
        A(f"v_add_f32 v{TL}, v{TL}, v{TL + 2}")
        A(f"v_add_f32 v{TL + 4}, v{TL + 4}, v{TL + 6}")
        A(f"v_add_f32 v{V_LA + X}, v{TL}, v{TL + 4}")
        for j in range(3):
            for r in range(0, 16, 2):
                A(f"v_pk_add_f32 {vr(O + r, 2)}, {vr(O + r, 2)}, {vr(self.TA + j * 16 + r, 2)}")
    def finish(self):
        g, A, opt = self.g, self.A, self.opt
        PK, RX = self.PK, self.RX
        A.c("==== epilogue")
        A.label("L_EPI")
        g.stamp(8)
        ws = f"s[{S_WS}:{S_WS+3}]"
        es = opt.get("epistamp")
        if not opt.get("tail2"):
            A("s_waitcnt lgkmcnt(0)")
            if es: g.stamp(1)
            A("s_barrier")
            if es: g.stamp(2); g.stamp_wait()
            for l in self.oread(0): A(l)
            for l in self.lwrite(1): A(l)
            A("s_waitcnt lgkmcnt(1)")
        else:
            for l in self.lwrite(1): A(l)
            A("s_waitcnt lgkmcnt(1)")
        if es: g.stamp(3)
        BWI = opt.get("bw_inter", 0)
        if BWI:
            tmp = Asm(); save = self.A; self.A = tmp
            self.sums(0)
            for k in range(8):
                tmp(f"v_cvt_pk_bf16_f32 v{PK + k}, v{V_O0 + 2 * k}, v{V_O0 + 2 * k + 1}")
            self.A = save
            valu = list(tmp.lines); wr = self.owrite(1)
            per = -(-len(valu) // len(wr))
            for k, w_ in enumerate(wr):
                A(w_)
                for l in valu[k * per:(k + 1) * per]: A(l)
            for l in valu[len(wr) * per:]: A(l)
        else:
            self.sums(0)
            for k in range(8):
                A(f"v_cvt_pk_bf16_f32 v{PK + k}, v{V_O0 + 2 * k}, v{V_O0 + 2 * k + 1}")
        omod = opt.get("xchg_mod", "" if opt.get("xl", 0) else "sc1")
        A(f"buffer_store_dwordx4 {vr(PK, 4)}, v{V_LANE16}, {ws}, s46 offen {omod}")
        A(f"buffer_store_dwordx4 {vr(PK + 4, 4)}, v{V_LANE16}, {ws}, s46 offen offset:1024 {omod}")
        A(f"buffer_store_dword v{V_LA}, v{self.vX}, {ws}, s47 offen {omod}")
        g.stamp(9)
        def poll(R=RX):
            pm = opt.get("poll_mod", "sc1")
            A(f"buffer_load_dwordx4 {vr(R, 4)}, v{V_LANE16}, {ws}, s44 offen {pm}")
            A(f"buffer_load_dwordx4 {vr(R + 4, 4)}, v{V_LANE16}, {ws}, s44 offen offset:1024 {pm}")
            A(f"buffer_load_dword v{R + 8}, v{self.vX}, {ws}, s45 offen {pm}")
        def test(R=RX):
            A(f"v_max3_u32 v90, v{R}, v{R + 1}, v{R + 2}")
            A(f"v_max3_u32 v91, v{R + 3}, v{R + 4}, v{R + 5}")
            A(f"v_max3_u32 v92, v{R + 6}, v{R + 7}, v{R + 8}")
            A("v_max3_u32 v90, v90, v91, v92")
            A("v_cmp_eq_u32 vcc, -1, v90")
        RX2 = 100
        dbl = opt.get("dblpoll", 0)
        if dbl == 1: poll()
        pp = opt.get("pollpos", 12)
        if not BWI:
            for k, l in enumerate(self.owrite(1)):
                if k == pp: poll(RX)
                A(l)
        late = opt.get("poll_late", 0)
        if pp >= 12 and not late: poll(RX2 if dbl == 1 else RX)
        if es: g.stamp(4)
        A("s_waitcnt lgkmcnt(0)")
        if es: g.stamp(5)
        A("s_barrier")
        if es: g.stamp(6); g.stamp_wait()
        for l in self.oread(1): A(l)
        if late: poll(RX)
        A("s_mov_b32 s10, 0")
        if dbl == 2:
            A("s_waitcnt lgkmcnt(7)")
            poll(RX2)
        A("s_waitcnt lgkmcnt(0)")
        self.sums(1)
        if es: g.stamp(7)
        if dbl:
            A("s_waitcnt vmcnt(3)")
            test(RX)
            A("s_nop 1")
            A("s_cbranch_vccz L_GOT")
            A("s_waitcnt vmcnt(0)")
            for k in range(9): A(f"v_mov_b32 v{RX + k}, v{RX2 + k}")
            A("s_branch L_POLLT")
        else:
            A("s_branch L_POLLW")
        A.label("L_POLL")
        poll()
        A.label("L_POLLW")
        A("s_waitcnt vmcnt(0)")
        A.label("L_POLLT")
        test(RX)
        A("s_add_u32 s10, s10, 1")
        A(f"s_cmp_ge_u32 s10, {opt.get('maxpoll2', 200)}")
        A("s_cbranch_scc1 L_FALLBACK")
        A("s_cbranch_vccnz L_POLL")
        A.label("L_GOT")
        g.stamp(10)
        if opt.get("stamp"): A(f"s_mov_b32 s{ST0 + 2*11 + 1}, s10")
        O = V_O0 + 16
        A(f"v_add_f32 v{V_LB}, v{V_LB}, v{RX + 8}")
        for k in range(8):
            A(f"v_lshlrev_b32 v{16 + 2 * k}, 16, v{RX + k}")
            A(f"v_and_b32 v{17 + 2 * k}, 0xffff0000, v{RX + k}")
        A(f"v_rcp_f32 v32, v{V_LB}")
        for r in range(0, 16, 2):
            A(f"v_pk_add_f32 {vr(O + r, 2)}, {vr(O + r, 2)}, {vr(16 + r, 2)}")
        A("v_pk_mul_f32 v[34:35], v[%d:%d], 0" % (O, O + 1))
        for r in range(2, 16, 2):
            A(f"v_pk_fma_f32 v[34:35], {vr(O + r, 2)}, 0, v[34:35]")
        A(f"s_mov_b32 s9, {F(2.0 ** -30)}")
        A(f"s_mov_b32 s10, {F(2.0 ** 30)}")
        A(f"v_cmp_le_f32 s[46:47], s9, v{V_LB}")
        A(f"v_cmp_ge_f32 s[8:9], s10, v{V_LB}")
        A("v_cmp_o_f32 vcc, v34, v35")
        A("v_mov_b32 v33, v32")
        A("s_and_b64 s[46:47], s[46:47], s[8:9]")
        A("s_and_b64 s[46:47], s[46:47], vcc")
        A("s_cmp_eq_u64 s[46:47], exec")
        if not opt.get("nocheck"): A("s_cbranch_scc0 L_FALLBACK")
        for r in range(0, 16, 2):
            A(f"v_pk_mul_f32 {vr(O + r, 2)}, {vr(O + r, 2)}, v[32:33]")
        A.label("L_STORE")
        for k in range(8):
            A(f"v_cvt_pk_bf16_f32 v{PK + k}, v{O + 2 * k}, v{O + 2 * k + 1}")
        A("v_lshrrev_b32 v37, 5, v0")
        A("v_lshl_add_u32 v36, v37, 5, v15")
        om = opt.get("out_mod", "nt")
        A(f"buffer_store_dwordx4 {vr(PK, 4)}, v36, s[{S_OUT}:{S_OUT+3}], s42 offen {om}")
        A(f"buffer_store_dwordx4 {vr(PK + 4, 4)}, v36, s[{S_OUT}:{S_OUT+3}], s42 offen offset:16 {om}")
        if opt.get("stamp"):
            A("s_waitcnt vmcnt(0)")
            g.stamp(12)
            A("s_waitcnt lgkmcnt(0)")
            if opt.get("dbgstamp"):
                A("s_mov_b64 exec, 1")
                A("v_mov_b32 v174, 0")
                A(f"s_not_b32 s98, s{ST0}")
                A("v_mov_b32 v175, s98")
                A(f"global_atomic_umax v174, v175, s[{S_DBG}:{S_DBG+1}] offset:4 sc1")
                for k, idx in enumerate((1, 2, 3, 4, 6, 7, 8, 9, 10, 12)):
                    A(f"v_mov_b32 v175, s{ST0 + 2 * idx}")
                    A(f"global_atomic_umax v174, v175, s[{S_DBG}:{S_DBG+1}] offset:{8 + 4 * k} sc1")
                A("s_endpgm")
            A("s_lshl_b32 s98, s2, 2")
            A(f"s_add_u32 s98, s98, s{S_W}")
            A("s_lshl_b32 s98, s98, 7")
            A(f"s_add_u32 s98, s98, {WS_STAMP}")
            A("v_mov_b32 v174, s98")
            A("s_mov_b64 exec, 1")
            for i in range(13):
                A(f"v_mov_b32 v175, s{ST0 + 2 * i}")
                A(f"global_store_dword v174, v175, s[38:39] offset:{4 * i}")
            A(f"v_mov_b32 v175, s{ST0 + 2*11 + 1}")
            A(f"global_store_dword v174, v175, s[38:39] offset:{4 * 13}")
        A.label("L_END")
        A("s_endpgm")

def gen_fallback(g):
    A, opt = g.A, g.opt
    S = 16; P = 32; XL = 40; KS = 48; KZ = 50; CS = 52; SN = 56; U = 60; KF = 68; QF = 72; WV = 76
    VX = 80; VS = 88; VZ = 96; VF = 104
    M, L, T0, T1, POS, vM, vH, vA = 108, 109, 110, 111, 144, 145, 146, 147
    vKo, vSo, vVo, vVso = 148, 149, 150, 151
    O = V_O0 + 16
    A.label("L_FALLBACK")
    A("s_waitcnt vmcnt(0) lgkmcnt(0)")
    A(f"s_load_dwordx16 s[{S_ARG}:{S_ARG+15}], s[0:1], 0")
    A(f"v_and_b32 v{vM}, 31, v0")
    A(f"v_lshrrev_b32 v{vH}, 5, v0")
    A(f"v_lshlrev_b32 v{vKo}, 9, v{vM}")
    A(f"v_lshl_add_u32 v{vKo}, v{vH}, 4, v{vKo}")
    A(f"v_lshlrev_b32 v{vSo}, 3, v{vM}")
    A(f"v_bfe_u32 v{T0}, v{vM}, 2, 1")
    A(f"v_lshlrev_b32 v{T0}, 4, v{T0}")
    A(f"v_lshrrev_b32 v{T1}, 3, v{vM}")
    A(f"v_lshl_add_u32 v{T0}, v{T1}, 2, v{T0}")
    A(f"v_and_b32 v{T1}, 3, v{vM}")
    A(f"v_add_u32 v{T0}, v{T0}, v{T1}")
    A(f"s_lshl_b32 s9, s{S_W}, 5")
    A(f"v_add_u32 v{T0}, s9, v{T0}")
    A(f"v_lshlrev_b32 v{T0}, 2, v{T0}")
    A(f"v_lshl_add_u32 v{vVo}, v{vH}, 11, v{T0}")
    A(f"s_lshl_b32 s9, s{S_W}, 1")
    A(f"v_lshlrev_b32 v{vVso}, 5, v{vH}")
    A(f"v_add_u32 v{vVso}, s9, v{vVso}")
    A(f"v_mov_b32 v{M}, 0xff800000")
    A(f"v_mov_b32 v{L}, 0")
    for r in range(16): A(f"v_mov_b32 v{O + r}, 0")
    A("s_waitcnt lgkmcnt(0)")
    A(f"s_lshl_b32 s8, s{S_H}, 20")
    A(f"s_lshl_b32 s9, s{S_H}, 14")
    add64(A, 22, 22, "s8"); add64(A, 28, 28, "s8")
    add64(A, 24, 24, "s9"); add64(A, 26, 26, "s9"); add64(A, 30, 30, "s9"); add64(A, 32, 32, "s9")
    A("s_mov_b32 s48, 0")
    A.label("L_FB_TILE")
    A(f"global_load_dwordx2 {vr(KS, 2)}, v{vSo}, s[24:25]")
    A(f"global_load_dwordx2 {vr(KZ, 2)}, v{vSo}, s[26:27]")
    A("s_lshl_b32 s49, s48, 5")
    A(f"v_add_u32 v{POS}, s49, v{vM}")
    A(f"v_cvt_f32_u32 v{POS}, v{POS}")
    for r in range(16): A(f"v_mov_b32 v{S + r}, 0")
    A("s_mov_b32 s50, 0")
    A.label("L_FB_KS")
    A("s_lshl_b32 s51, s50, 5")
    A(f"v_add_u32 v{vA}, s51, v{vKo}")
    A(f"global_load_dwordx4 {vr(XL, 4)}, v{vA}, s[22:23]")
    A(f"global_load_dwordx4 {vr(XL + 4, 4)}, v{vA}, s[22:23] offset:256")
    A("s_and_b32 s51, s50, 3")
    A("s_lshl_b32 s51, s51, 1")
    A(f"v_add_u32 v{vA}, s51, v{vH}")
    A(f"v_xor_b32 v{vA}, v{vA}, v0")
    A(f"v_lshlrev_b32 v{vA}, 4, v{vA}")
    A("s_lshl_b32 s51, s50, 10")
    A("s_add_u32 s51, s51, 8192")
    A(f"v_add_u32 v{vA}, s51, v{vA}")
    A(f"ds_read_b128 {vr(QF, 4)}, v{vA}")
    A("s_lshl_b32 s51, s50, 1")
    A(f"v_add_u32 v{T0}, s51, v{vH}")
    A(f"v_lshlrev_b32 v{T0}, 2, v{T0}")
    A(f"v_cvt_f32_u32 v{T0}, v{T0}")
    A(f"s_mov_b32 s51, {F(TRIG_A)}")
    for j in range(4): A(f"v_mov_b32 v{WV + j}, {F(TRIG_B + j * TRIG_A)}")
    for j in range(4): A(f"v_fma_f32 v{WV + j}, v{T0}, s51, v{WV + j}")
    for j in range(4): A(f"v_exp_f32 v{WV + j}, v{WV + j}")
    A("s_nop 0")
    for j in range(4): A(f"v_mul_f32 v{WV + j}, v{POS}, v{WV + j}")
    for j in range(4): A(f"v_fract_f32 v{WV + j}, v{WV + j}")
    for j in range(4):
        A(f"v_cos_f32 v{CS + j}, v{WV + j}")
        A(f"v_sin_f32 v{SN + j}, v{WV + j}")
    A("s_cmp_lt_u32 s50, 4")
    A("s_cselect_b32 s51, 16, 0")
    A("s_waitcnt vmcnt(0) lgkmcnt(0)")
    for k, src in enumerate((KS, KS + 1, KZ, KZ + 1)):
        A(f"v_lshlrev_b32 v{U + k}, s51, v{src}")
    for k in range(4): A(f"v_and_b32 v{WV + k}, 0xffff0000, v{U + k}")
    for j in range(8): A(f"v_cvt_f32_i32 v{XL + j}, v{XL + j}")
    for j in range(8): A(f"v_sub_f32 v{XL + j}, v{XL + j}, v{WV + 2 + (j >> 2)}")
    for j in range(8): A(f"v_mul_f32 v{XL + j}, v{XL + j}, v{WV + (j >> 2)}")
    for j in range(4):
        A(f"v_mul_f32 v{U + j}, v{XL + 4 + j}, v{SN + j}")
        A(f"v_mul_f32 v{U + 4 + j}, v{XL + j}, v{SN + j}")
    for j in range(4):
        A(f"v_fma_f32 v{U + j}, v{XL + j}, v{CS + j}, -v{U + j}")
        A(f"v_fma_f32 v{U + 4 + j}, v{XL + 4 + j}, v{CS + j}, v{U + 4 + j}")
    for k in range(4): A(f"v_cvt_pk_bf16_f32 v{KF + k}, v{U + 2 * k}, v{U + 2 * k + 1}")
    A("s_nop 1")
    A(f"v_mfma_f32_32x32x16_bf16 {vr(S, 16)}, {vr(KF, 4)}, {vr(QF, 4)}, {vr(S, 16)}")
    A("s_nop 15")
    A("s_add_u32 s50, s50, 1")
    A("s_cmp_lt_u32 s50, 8")
    A("s_cbranch_scc1 L_FB_KS")
    A(f"v_max3_f32 v{T0}, v{S}, v{S + 1}, v{S + 2}")
    for r in range(3, 15, 2): A(f"v_max3_f32 v{T0}, v{T0}, v{S + r}, v{S + r + 1}")
    A(f"v_max_f32 v{T0}, v{T0}, v{S + 15}")
    A(f"v_mov_b32 v{T1}, v{T0}")
    A("s_nop 1")
    A(f"v_permlane32_swap_b32 v{T0}, v{T1}")
    A("s_nop 1")
    A(f"v_max3_f32 v{T0}, v{T0}, v{T1}, v{M}")
    A(f"v_sub_f32 v{T1}, v{M}, v{T0}")
    A(f"v_exp_f32 v{T1}, v{T1}")
    A(f"v_mov_b32 v{M}, v{T0}")
    for r in range(16): A(f"v_sub_f32 v{S + r}, v{S + r}, v{T0}")
    for r in range(16): A(f"v_exp_f32 v{S + r}, v{S + r}")
    A(f"v_mul_f32 v{L}, v{L}, v{T1}")
    for r in range(16): A(f"v_mul_f32 v{O + r}, v{O + r}, v{T1}")
    for r in range(16): A(f"v_add_f32 v{L}, v{L}, v{S + r}")
    for k in range(8): A(f"v_cvt_pk_bf16_f32 v{P + k}, v{S + 2 * k}, v{S + 2 * k + 1}")
    for kst in range(2):
        A(f"v_add_u32 v{vA}, {kst * 8192}, v{vVo}")
        A(f"v_add_u32 v{T0}, {kst * 8192 + 4096}, v{vVo}")
        for i in range(8):
            A(f"global_load_dword v{VX + i}, v{vA if i < 4 else T0}, s[28:29] offset:{(i & 3) * 512}")
        for i in range(8):
            ro = (16 * kst + 8 * (i >> 2) + (i & 3)) * 8
            A(f"global_load_ushort v{VS + i}, v{vVso}, s[30:31] offset:{ro}")
            A(f"global_load_ushort v{VZ + i}, v{vVso}, s[32:33] offset:{ro}")
        A("s_waitcnt vmcnt(0)")
        for i in range(8):
            A(f"v_cvt_f32_i32 v{VX + i}, v{VX + i}")
            A(f"v_lshlrev_b32 v{VS + i}, 16, v{VS + i}")
            A(f"v_lshlrev_b32 v{VZ + i}, 16, v{VZ + i}")
        for i in range(8): A(f"v_sub_f32 v{VX + i}, v{VX + i}, v{VZ + i}")
        for i in range(8): A(f"v_mul_f32 v{VX + i}, v{VX + i}, v{VS + i}")
        for k in range(4): A(f"v_cvt_pk_bf16_f32 v{VF + k}, v{VX + 2 * k}, v{VX + 2 * k + 1}")
        A("s_nop 1")
        A(f"v_mfma_f32_32x32x16_bf16 {vr(O, 16)}, {vr(VF, 4)}, {vr(P + 4 * kst, 4)}, {vr(O, 16)}")
        A("s_nop 15")
    add64(A, 22, 22, 16384); add64(A, 28, 28, 16384)
    add64(A, 24, 24, 256); add64(A, 26, 26, 256); add64(A, 30, 30, 256); add64(A, 32, 32, 256)
    A("s_add_u32 s48, s48, 1")
    A("s_cmp_lt_u32 s48, 64")
    A("s_cbranch_scc1 L_FB_TILE")
    A(f"v_mov_b32 v{T1}, v{L}")
    A("s_nop 1")
    A(f"v_permlane32_swap_b32 v{L}, v{T1}")
    A("s_nop 1")
    A(f"v_add_f32 v{L}, v{L}, v{T1}")
    A(f"v_rcp_f32 v{L}, v{L}")
    A("s_nop 0")
    for r in range(16): A(f"v_mul_f32 v{O + r}, v{O + r}, v{L}")
    A("s_branch L_STORE")

def kd(A, name, vgpr, sgpr, accum):
    A(f".amdhsa_kernel {name}")
    A(f"  .amdhsa_next_free_vgpr {vgpr}")
    A(f"  .amdhsa_next_free_sgpr {sgpr}")
    A(f"  .amdhsa_accum_offset {accum}")
    A("  .amdhsa_group_segment_fixed_size 0")
    A("  .amdhsa_kernarg_size 112")
    A("  .amdhsa_user_sgpr_count 2")
    A("  .amdhsa_user_sgpr_kernarg_segment_ptr 1")
    A("  .amdhsa_system_sgpr_workgroup_id_x 1")
    A(".end_amdhsa_kernel")

HEADER = open("cdna_kernels/" + NAME + ".s.ref").read().split("; Override launch geometry")[0]

def generate(opt):
    g = G(opt); A = g.A
    A(HEADER.rstrip("\n"))
    A(f"; @launch grid=(256,1,1) block=(256,1,1) lds={LDS_BYTES}")
    A('.amdgcn_target "amdgcn-amd-amdhsa--gfx950"')
    A(".text")
    A(f".globl {KNAME}\n.p2align 8\n.type {KNAME},@function")
    A.label(KNAME)
    n0 = len(A.lines)
    if opt.get("stage2"): gen_prologue2(g)
    else: gen_prologue(g)
    if opt.get("force_fallback"): A("s_branch L_WAVEFAIL")
    gen_main(g)
    n1 = len(A.lines)
    gen_wavefail(g)
    gen_fallback(g)
    A.label("L_CODE_END")
    A("s_endpgm")
    n2 = len(A.lines)
    A('.section .rodata,"a"\n.p2align 6')
    kd(A, KNAME, NVGPR_ARCH + 256, 102 if opt.get("stamp") else 100, NVGPR_ARCH)
    L = A.lines
    errs = check(L[n0:n1], "main") + check(L[n1:n2], "fallback")
    return A.text(), errs

if __name__ == "__main__":
    opt = {}
    for a in sys.argv[2:]:
        k, v = a.split("=")
        try: v = int(v)
        except ValueError: pass
        opt[k] = v
    txt, errs = generate(opt)
    out = sys.argv[1]
    open(out, "w").write(txt)
    print("wrote", out, len(txt), "bytes;", len(errs), "check problems")
```

```python
import sys, math, struct
from asmlib import Asm, vr, ar, sr, check

NAME = "standalone__kv_cache_quant_pre_rope_vs_post_rope__prompt"
KNAME = NAME + "_kernel"

WS_KV = 0
WS_X  = 4 << 20
WS_L  = 6 << 20
WS_F  = 7 << 20
WS_F2 = (7 << 20) + (64 << 10)
WS_SIZE = 8 << 20
WS_STAMP = 12 << 20

def f32bits(x): return struct.unpack("<I", struct.pack("<f", x))[0]
def F(x): return f"0x{f32bits(x):08x}"
QSCALE = math.log2(math.e) / math.sqrt(128.0)
TRIG_A = -math.log2(10000.0) / 64.0
TRIG_B = -math.log2(2 * math.pi)

LDS_Q = 0
RED_A = 16384
RED_BOFF = 49152
LRED = 114688
LFAIL = 116736
LDS_BYTES = 116736 + 64

S_W, S_H, S_SP, S_QT, S_G = 3, 4, 5, 6, 7
S_WS = 12
S_OUT = 16
S_ARG = 20
S_DBG = 36
S_OUTP = 40
S_TILE = 48
S_XCC = 64
S_T0 = 92
ST0 = 66

V_LANE16 = 1
V_OFFV = 2
V_LA, V_LB = 6, 7
V_S = 16
V_P = 80
V_O0 = 112
V_RING = 144
A_O = 0
A_Q = 96
A_RING = 160
NVGPR_ARCH = 192

def Sreg(par, X): return V_S + (par * 2 + X) * 16
def Preg(par, X): return V_P + (par * 2 + X) * 8
def Oreg(X, j):
    if j == 0: return vr(V_O0 + 16 * X, 16)
    return ar(A_O + X * 48 + (j - 1) * 16, 16)
def Qreg(X, ks): return ar(A_Q + (X * 8 + ks) * 4, 4)
RINGSZ = 32
def ring(p):
    s = p % RINGSZ
    return ar(A_RING + s * 4, 4) if s < 24 else vr(V_RING + (s - 24) * 4, 4)

class G:
    def __init__(self, opt):
        self.opt = opt; self.A = Asm(); self.nst = 0
    def stamp(self, idx):
        o = self.opt
        if o.get("stamp"):
            self.A(f"{'s_memtime' if o['stamp'] == 2 else 's_memrealtime'} s[{ST0 + 2*idx}:{ST0 + 2*idx + 1}]")
    def stamp_wait(self):
        if self.opt.get("stamp"): self.A("s_waitcnt lgkmcnt(0)")

def srd(A, d, b, nbytes):
    A(f"s_mov_b32 s{d}, s{b}")
    A(f"s_and_b32 s{d+1}, s{b+1}, 0xffff")
    A(f"s_mov_b32 s{d+2}, {nbytes}")
    A(f"s_mov_b32 s{d+3}, 0x20000")

def add64(A, d, b, off):
    A(f"s_add_u32 s{d}, s{b}, {off}")
    A(f"s_addc_u32 s{d+1}, s{b+1}, 0")

def stream():
    seq = [("K", 0, i) for i in range(8)]
    for t in range(7):
        seq += [("K", t + 1, i) for i in range(8)]
        seq += [("V", t, i) for i in range(8)]
    seq += [("V", 7, i) for i in range(8)]
    return seq

def ring_load(seq, p, mod=""):
    kind, t, i = seq[p]
    dst = ring(p)
    if kind == "K":
        so = f"s{S_TILE + 2 * t + (i >> 2)}"
        return f"buffer_load_dwordx4 {dst}, v{V_LANE16}, s[{S_WS}:{S_WS+3}], {so} offen offset:{(i & 3) * 1024} {mod}".rstrip()
    j, ks = i & 3, i >> 2
    so = f"s{S_TILE + 2 * t}"
    return f"buffer_load_dwordx4 {dst}, v{V_OFFV + j}, s[{S_WS}:{S_WS+3}], {so} offen offset:{ks * 1024} {mod}".rstrip()

def gen_prologue(g):
    A, opt = g.A, g.opt
    ldmod = opt.get("raw_load_mod", "")
    kvmod = opt.get("kv_store_mod", "sc1")
    vC, vR0, vK0, vK1, vKs, vVd, vVs, vQd = 8, 9, 10, 11, 12, 13, 14, 15
    vKst, vQw, vSel, vX4 = 16, 17, 18, 19
    W = 20; CK, SK, CQ, SQ = 24, 32, 40, 56
    KD, KSC, KZ = 72, 88, 92
    VD, VSC, VZ = 96, 112, 120
    SENT = 128
    T = 132
    P0 = T + 4
    def trig(pos_s, extra, c0, s0, scale):
        A(f"v_add_u32 v{P0}, {pos_s}, v{vR0}")
        if extra: A(f"v_add_u32 v{P0}, {extra}, v{P0}")
        A(f"v_cvt_f32_u32 v{P0}, v{P0}")
        for j in range(4): A(f"v_mul_f32 v{P0+1+j}, v{P0}, v{W+j}")
        for j in range(4): A(f"v_fract_f32 v{P0+1+j}, v{P0+1+j}")
        for j in range(4):
            A(f"v_cos_f32 v{c0+j}, v{P0+1+j}")
            A(f"v_sin_f32 v{s0+j}, v{P0+1+j}")
        if scale:
            A("s_nop 0")
            for j in range(0, 4, 2):
                A(f"v_pk_mul_f32 {vr(c0+j, 2)}, {vr(c0+j, 2)}, s[{scale}:{scale+1}]")
                A(f"v_pk_mul_f32 {vr(s0+j, 2)}, {vr(s0+j, 2)}, s[{scale}:{scale+1}]")
    def rope(x, c0, s0, out):
        U = T + 8
        for j in range(0, 4, 2):
            A(f"v_pk_mul_f32 {vr(U+j, 2)}, {vr(x+4+j, 2)}, {vr(s0+j, 2)}")
            A(f"v_pk_mul_f32 {vr(U+4+j, 2)}, {vr(x+j, 2)}, {vr(s0+j, 2)}")
        for j in range(0, 4, 2):
            A(f"v_pk_fma_f32 {vr(U+j, 2)}, {vr(x+j, 2)}, {vr(c0+j, 2)}, {vr(U+j, 2)} neg_lo:[0,0,1] neg_hi:[0,0,1]")
            A(f"v_pk_fma_f32 {vr(U+4+j, 2)}, {vr(x+4+j, 2)}, {vr(c0+j, 2)}, {vr(U+4+j, 2)}")
        for k in range(4):
            A(f"v_cvt_pk_bf16_f32 v{out+k}, v{U+2*k}, v{U+2*k+1}")

    g.stamp(0)
    A.c("==== prologue: ids, addresses, RoPE angles (no kernel argument needed yet)")
    A("s_cmp_ge_u32 s2, 256")
    A("s_cbranch_scc1 L_END")
    A(f"s_load_dwordx16 s[{S_ARG}:{S_ARG+15}], s[0:1], 0")
    A(f"s_load_dwordx4 s[{S_DBG}:{S_DBG+3}], s[0:1], 96")
    A(f"s_load_dwordx2 s[{S_OUTP}:{S_OUTP+1}], s[0:1], 88")
    A(f"s_memrealtime s[{S_T0}:{S_T0+1}]")
    A("v_lshrrev_b32 v8, 6, v0")
    A("v_and_b32 v0, 63, v0")
    A(f"v_readfirstlane_b32 s{S_W}, v8")
    A(f"v_lshlrev_b32 v{V_LANE16}, 4, v0")
    XL = opt.get("xl", 0)
    if not XL:
        A("s_and_b32 s8, s2, 7")
        A(f"s_lshr_b32 s{S_H}, s8, 1")
        A(f"s_and_b32 s{S_SP}, s8, 1")
        A(f"s_lshr_b32 s{S_QT}, s2, 3")
        A(f"s_lshl_b32 s8, s{S_H}, 6")
        A(f"s_lshl_b32 s9, s{S_SP}, 5")
        A("s_add_u32 s8, s8, s9")
        A(f"s_add_u32 s{S_G}, s8, s{S_QT}")
        A(f"s_mov_b32 s97, s{S_QT}")
        A(f"s_lshl_b32 s96, s{S_SP}, 5")
        A(f"s_add_u32 s96, s96, s{S_QT}")
    else:
        A("s_and_b32 s8, s2, 7")
        A(f"s_lshr_b32 s{S_H}, s8, 1")
        A("s_and_b32 s9, s8, 1")
        A("s_lshr_b32 s97, s2, 3")
        A(f"s_and_b32 s{S_SP}, s97, 1")
        A(f"s_lshr_b32 s{S_QT}, s97, 1")
        A("s_lshl_b32 s10, s9, 4")
        A(f"s_add_u32 s{S_QT}, s{S_QT}, s10")
        A("s_lshl_b32 s96, s9, 5")
        A("s_add_u32 s96, s96, s97")
        A(f"s_lshl_b32 s8, s{S_H}, 6")
        A(f"s_add_u32 s{S_G}, s8, s96")
        A(f"s_xor_b32 s98, s9, s{S_SP}")
        A(f"s_lshl_b32 s9, s{S_SP}, 5")
        A("s_add_u32 s8, s8, s9")
    A(f"v_and_b32 v{vC}, 15, v0")
    A(f"v_lshrrev_b32 v{vR0}, 4, v0")
    A(f"s_lshl_b32 s9, s{S_W}, 2")
    A(f"v_add_u32 v{vR0}, s9, v{vR0}")
    A(f"v_lshlrev_b32 v{vK0}, 9, v{vR0}")
    A(f"v_lshl_add_u32 v{vK0}, v{vC}, 4, v{vK0}")
    A(f"v_add_u32 v{vK1}, 8192, v{vK0}")
    A(f"v_lshlrev_b32 v{vKs}, 3, v{vR0}")
    A(f"v_and_b32 v{T}, 31, v0")
    A(f"v_lshrrev_b32 v{T+1}, 5, v0")
    A(f"v_bfe_u32 v{T+2}, v{T}, 2, 1")
    A(f"v_lshlrev_b32 v{T+2}, 4, v{T+2}")
    A(f"v_lshrrev_b32 v{T+3}, 3, v{T}")
    A(f"v_lshl_add_u32 v{T+2}, v{T+3}, 2, v{T+2}")
    A(f"v_and_b32 v{T+3}, 3, v{T}")
    A(f"v_add_u32 v{T+2}, v{T+2}, v{T+3}")
    A(f"s_and_b32 s10, s{S_W}, 1")
    A(f"s_lshr_b32 s11, s{S_W}, 1")
    A("s_lshl_b32 s9, s10, 4")
    A(f"v_lshlrev_b32 v{T+1}, 2, v{T+1}")
    A(f"v_add_u32 v{T+1}, s9, v{T+1}")
    A("s_lshl_b32 s9, s11, 8")
    A("s_add_u32 s9, s9, 2048")
    A(f"v_lshlrev_b32 v{vVd}, 9, v{T+1}")
    A(f"v_lshl_add_u32 v{vVd}, v{T+2}, 2, v{vVd}")
    A(f"v_add_u32 v{vVd}, s9, v{vVd}")
    A("s_lshl_b32 s9, s11, 2")
    A(f"v_lshlrev_b32 v{vVs}, 3, v{T+1}")
    A(f"v_add_u32 v{vVs}, s9, v{vVs}")
    A(f"s_lshl_b32 s42, s{S_G}, 14")
    A(f"s_lshl_b32 s43, s{S_G}, 8")
    if not XL:
        A(f"s_lshl_b32 s9, s8, 3")
        A(f"s_add_u32 s65, s9, {WS_F}")
        A("s_mov_b32 s98, s65")
    else:
        A(f"s_sub_u32 s9, s{S_G}, s97")
        A("s_lshl_b32 s9, s9, 3")
        A(f"s_add_u32 s65, s9, {WS_F}")
        A("s_lshl_b32 s99, s8, 3")
        A(f"s_add_u32 s99, s99, {WS_F}")
    A(f"v_mov_b32 v{T+3}, s65")
    LEAN = opt.get("lean", 0)
    def trig_first():
        A(f"v_lshlrev_b32 v{T}, 2, v{vC}")
        A(f"v_cvt_f32_u32 v{T}, v{T}")
        A(f"s_mov_b32 s9, {F(TRIG_A)}")
        for j in range(4): A(f"v_mov_b32 v{W+j}, {F(TRIG_B + j * TRIG_A)}")
        for j in range(4): A(f"v_fma_f32 v{W+j}, v{T}, s9, v{W+j}")
        for j in range(4): A(f"v_exp_f32 v{W+j}, v{W+j}")
        A("s_lshl_b32 s9, s96, 5")
        trig("s9", 0, CK, SK, None)
    if not LEAN: trig_first()
    EARLY = opt.get("early_trig", 0)
    if EARLY:
        trig("s9", 16, CK + 4, SK + 4, None)
        A(f"s_lshl_b32 s9, s{S_QT}, 1")
        A(f"s_add_u32 s46, s9, s{S_SP}")
        A(f"s_xor_b32 s47, s46, 1")
        A("s_lshl_b32 s10, s47, 5")
        A("s_lshl_b32 s11, s46, 5")
        A(f"s_mov_b32 s94, {F(QSCALE)}")
        A(f"s_mov_b32 s95, {F(QSCALE)}")
        trig("s10", 0, CQ, SQ, 94); trig("s10", 16, CQ + 4, SQ + 4, 94)
        if EARLY > 1:
            trig("s11", 0, CQ + 8, SQ + 8, 94); trig("s11", 16, CQ + 12, SQ + 12, 94)
    A("s_waitcnt lgkmcnt(0)")
    g.stamp(1)
    A(f"s_or_b32 s10, s2, s{S_W}")
    A("s_cmp_lg_u32 s10, 0")
    A("s_cbranch_scc1 L_NONONCE")
    A(f"s_or_b32 s10, s{S_T0}, 1")
    A(f"v_mov_b32 v{T+1}, 0")
    A(f"v_mov_b32 v{T+2}, s10")
    A("s_mov_b64 exec, 1")
    A(f"global_store_dword v{T+1}, v{T+2}, s[{S_DBG}:{S_DBG+1}] sc1")
    A("s_mov_b64 exec, -1")
    A.label("L_NONONCE")
    add64(A, 22, 22, "s42")
    add64(A, 24, 24, "s43")
    add64(A, 26, 26, "s43")
    def kloads(it):
        vo = vK0 if it == 0 else vK1
        A(f"global_load_dwordx4 {vr(KD + 8*it, 4)}, v{vo}, s[22:23] {ldmod}")
        A(f"global_load_dwordx4 {vr(KD + 8*it + 4, 4)}, v{vo}, s[22:23] offset:256 {ldmod}")
        A(f"global_load_dwordx2 {vr(KSC + 2*it, 2)}, v{vKs}, s[24:25] offset:{it*128}")
        A(f"global_load_dwordx2 {vr(KZ + 2*it, 2)}, v{vKs}, s[26:27] offset:{it*128}")
    kloads(0); kloads(1)
    add64(A, 28, 28, "s42")
    add64(A, 30, 30, "s43")
    add64(A, 32, 32, "s43")
    for i in range(8):
        ro = (8 * (i >> 2) + (i & 3)) * 8
        A(f"global_load_dword v{VSC + i}, v{vVs}, s[30:31] offset:{ro}")
        A(f"global_load_dword v{VZ + i}, v{vVs}, s[32:33] offset:{ro}")
    for i in range(8):
        for dbl in range(2):
            off = (i >> 2) * 4096 + (i & 3) * 512 + dbl * 128 - 2048
            A(f"global_load_dword v{VD + 2*i + dbl}, v{vVd}, s[28:29] offset:{off} {ldmod}")
    QEARLY = 2 if opt.get("split", 0) else opt.get("q_early", 0)
    QD = 72 if not QEARLY else 172
    def qloads():
        A(f"v_lshlrev_b32 v{vQd}, 8, v{vR0}")
        A(f"v_lshl_add_u32 v{vQd}, v{vC}, 3, v{vQd}")
        A(f"v_add_u32 v{vQd}, 2048, v{vQd}")
        A(f"s_lshl_b32 s9, s{S_QT}, 1")
        A(f"s_add_u32 s46, s9, s{S_SP}")
        A(f"s_xor_b32 s47, s46, 1")
        A(f"s_lshl_b32 s10, s{S_H}, 6")
        A("s_add_u32 s11, s10, s47")
        A("s_lshl_b32 s11, s11, 13")
        add64(A, 34, 20, "s11")
        A("s_add_u32 s11, s10, s46")
        A("s_lshl_b32 s11, s11, 13")
        add64(A, 20, 20, "s11")
        for X in range(2):
            base = "s[34:35]" if X == 0 else "s[20:21]"
            for it in range(2):
                r = QD + (X * 2 + it) * 4
                A(f"global_load_dwordx2 {vr(r, 2)}, v{vQd}, {base} offset:{it*4096 - 2048} {ldmod}")
                A(f"global_load_dwordx2 {vr(r + 2, 2)}, v{vQd}, {base} offset:{it*4096 - 2048 + 128} {ldmod}")
    if QEARLY == 1:
        A(f"s_lshl_b32 s95, s{S_SP}, 5")
        A(f"s_add_u32 s95, s95, s{S_QT}")
        A("s_lshl_b32 s95, s95, 5")
        qloads()
        A("s_mov_b32 s9, s95")
    SPLIT = opt.get("split", 0)
    A(f"global_load_dword v171, v{T+3}, s[38:39] sc1")
    if SPLIT: A(f"global_load_dword v170, v{T+3}, s[38:39] offset:128 sc1")
    NPRE = 0
    if opt.get("pretouch"):
        A(f"s_lshl_b32 s10, s{S_G}, 14")
        A(f"v_mov_b32 v{T+2}, s10")
        A(f"global_load_dword v170, v{T+2}, s[38:39]")
        A(f"global_load_dword v169, v{T+2}, s[20:21]" if False else f"v_lshrrev_b32 v{T+2}, 1, v{T+2}")
        A(f"global_load_dword v169, v{T+2}, s[20:21]")
        A(f"global_load_dword v168, v{T+2}, s[{S_OUTP}:{S_OUTP+1}]")
        NPRE = 3
    if opt.get("codepf"):
        A("s_getpc_b64 s[94:95]")
        A.label("L_PFBASE")
        A("s_lshr_b32 s10, s2, 3")
        A("s_lshl_b32 s10, s10, 2")
        A(f"s_add_u32 s10, s10, s{S_W}")
        A("s_lshl_b32 s10, s10, 7")
        A("s_min_u32 s10, s10, L_CODE_END - L_PFBASE - 4")
        A("s_add_u32 s94, s94, s10")
        A("s_addc_u32 s95, s95, 0")
        A("s_load_dword s96, s[94:95], 0")
    srd(A, S_WS, 38, WS_SIZE)
    A(f"v_lshlrev_b32 v{vX4}, 2, v0")
    A("s_lshl_b32 s44, s2, 13")
    A(f"s_lshl_b32 s10, s{S_W}, 11")
    A("s_add_u32 s44, s44, s10")
    A(f"s_add_u32 s44, s44, {WS_X}")
    A("s_lshl_b32 s45, s2, 10")
    A(f"s_lshl_b32 s10, s{S_W}, 8")
    A("s_add_u32 s45, s45, s10")
    A(f"s_add_u32 s45, s45, {WS_L}")
    NTAIL = 1 + SPLIT + NPRE + (8 if QEARLY == 1 else 0)
    NV = 40 + NTAIL
    if LEAN: trig_first()
    if not EARLY: trig("s9", 16, CK + 4, SK + 4, None)
    A(f"v_lshrrev_b32 v{T}, 1, v{vC}")
    A(f"v_lshlrev_b32 v{vKst}, 10, v{T}")
    A(f"v_and_b32 v{T+1}, 1, v{vC}")
    A(f"v_lshl_add_u32 v{vKst}, v{T+1}, 9, v{vKst}")
    A(f"v_lshl_add_u32 v{vKst}, v{vR0}, 4, v{vKst}")
    A(f"v_lshl_add_u32 v{T+1}, v{T+1}, 5, v{vR0}")
    A(f"v_and_b32 v{T+2}, 7, v{vC}")
    A(f"v_xor_b32 v{T+1}, v{T+1}, v{T+2}")
    A(f"v_lshlrev_b32 v{vQw}, 10, v{T}")
    A(f"v_lshl_add_u32 v{vQw}, v{T+1}, 4, v{vQw}")
    A(f"v_lshrrev_b32 v{vSel}, 3, v{vC}")
    A(f"v_lshlrev_b32 v{vSel}, 4, v{vSel}")
    A(f"v_sub_u32 v{vSel}, 16, v{vSel}")
    A(f"s_lshl_b32 s43, s{S_G}, 14")
    A(f"s_and_b32 s9, s{S_W}, 1")
    A("s_lshl_b32 s9, s9, 10")
    A(f"s_lshr_b32 s10, s{S_W}, 1")
    A("s_lshl_b32 s10, s10, 12")
    A("s_add_u32 s9, s9, s10")
    A("s_add_u32 s9, s9, s43")
    A("s_add_u32 s9, s9, 8192")
    A.c("==== K tile: dequantise, RoPE, store fragments")
    nst = 0
    for it in range(2):
        A(f"s_waitcnt vmcnt({NV - 4 * (it + 1) + nst})")
        if it == 0: g.stamp(2)
        x = KD + 8 * it
        sc = T + 16
        for k, src in enumerate((KSC + 2*it, KSC + 2*it + 1, KZ + 2*it, KZ + 2*it + 1)):
            A(f"v_lshlrev_b32 v{sc+k}, v{vSel}, v{src}")
        for j in range(8): A(f"v_cvt_f32_i32 v{x+j}, v{x+j}")
        for k in range(4): A(f"v_and_b32 v{sc+k}, 0xffff0000, v{sc+k}")
        for j in range(0, 4, 2):
            A(f"v_pk_add_f32 {vr(x+j, 2)}, {vr(x+j, 2)}, {vr(sc+2, 2)} op_sel_hi:[1,0] neg_lo:[0,1] neg_hi:[0,1]")
            A(f"v_pk_add_f32 {vr(x+4+j, 2)}, {vr(x+4+j, 2)}, {vr(sc+2, 2)} op_sel:[0,1] op_sel_hi:[1,1] neg_lo:[0,1] neg_hi:[0,1]")
        for j in range(0, 4, 2):
            A(f"v_pk_mul_f32 {vr(x+j, 2)}, {vr(x+j, 2)}, {vr(sc, 2)} op_sel_hi:[1,0]")
            A(f"v_pk_mul_f32 {vr(x+4+j, 2)}, {vr(x+4+j, 2)}, {vr(sc, 2)} op_sel:[0,1] op_sel_hi:[1,1]")
        out = T + 20 + 4 * it
        rope(x, CK + 4*it, SK + 4*it, out)
        A(f"buffer_store_dwordx4 {vr(out, 4)}, v{vKst}, s[{S_WS}:{S_WS+3}], s43 offen offset:{it*256} {kvmod}")
        nst += 1
    NON = SENT + 1
    NEARLY = opt.get("nonce_early", 0)
    if NEARLY:
        A(f"v_mov_b32 v{T+1}, 0")
        A(f"global_load_dword v{NON}, v{T+1}, s[{S_DBG}:{S_DBG+1}] sc1")
        nst += 1
    if QEARLY == 2:
        A("s_mov_b32 s95, s9")
        qloads()
        A("s_mov_b32 s9, s95")
        nst += 8
    A.c("==== V tile: dequantise, store transposed fragments")
    A(f"s_waitcnt vmcnt({16 + NTAIL + nst})")
    SP_, ZP_ = 72, 24
    for i in range(8):
        A(f"v_lshlrev_b32 v{SP_+2*i}, 16, v{VSC+i}")
        A(f"v_and_b32 v{SP_+2*i+1}, 0xffff0000, v{VSC+i}")
        A(f"v_lshlrev_b32 v{ZP_+2*i}, 16, v{VZ+i}")
        A(f"v_and_b32 v{ZP_+2*i+1}, 0xffff0000, v{VZ+i}")
    A(f"s_waitcnt vmcnt({NTAIL + nst})")
    g.stamp(3)
    if not NEARLY:
        A(f"v_mov_b32 v{T+1}, 0")
        A(f"global_load_dword v{NON}, v{T+1}, s[{S_DBG}:{S_DBG+1}] sc1")
    for i in range(16): A(f"v_cvt_f32_i32 v{VD+i}, v{VD+i}")
    for i in range(8): A(f"v_pk_add_f32 {vr(VD+2*i, 2)}, {vr(VD+2*i, 2)}, {vr(ZP_+2*i, 2)} neg_lo:[0,1] neg_hi:[0,1]")
    for i in range(8): A(f"v_pk_mul_f32 {vr(VD+2*i, 2)}, {vr(VD+2*i, 2)}, {vr(SP_+2*i, 2)}")
    for dbl in range(2):
        O = T + 28 + 4 * dbl
        for k in range(4):
            A(f"v_cvt_pk_bf16_f32 v{O+k}, v{VD+(2*k)*2+dbl}, v{VD+(2*k+1)*2+dbl}")
        A(f"buffer_store_dwordx4 {vr(O, 4)}, v{V_LANE16}, s[{S_WS}:{S_WS+3}], s9 offen offset:{dbl*2048} {kvmod}")
    if not QEARLY: qloads()
    else:
        A(f"s_lshl_b32 s9, s{S_QT}, 1")
        A(f"s_add_u32 s46, s9, s{S_SP}")
        A(f"s_xor_b32 s47, s46, 1")
    def post_store_setup():
        A("s_lshl_b32 s10, s47, 5")
        A("s_lshl_b32 s11, s46, 5")
        A(f"s_mov_b32 s42, {F(QSCALE)}")
        A(f"s_mov_b32 s43, {F(QSCALE)}")
        if not EARLY:
            trig("s10", 0, CQ, SQ, 42); trig("s10", 16, CQ + 4, SQ + 4, 42)
        for j in range(4):
            A(f"s_add_u32 s9, s{S_W}, {j}")
            A("s_and_b32 s9, s9, 3")
            A("s_lshl_b32 s9, s9, 11")
            A("s_add_u32 s9, s9, 8192")
            A(f"v_add_u32 v{V_OFFV + j}, s9, v{V_LANE16}")
        A(f"s_lshl_b32 s9, s{S_W}, 3")
        A("s_add_u32 s8, s8, s9")
        A(f"s_lshl_b32 s{S_TILE}, s8, 14")
        A(f"s_add_u32 s{S_TILE+1}, s{S_TILE}, 4096")
        for t in range(1, 8):
            A(f"s_add_u32 s{S_TILE + 2*t}, s{S_TILE}, {t * 16384}")
            A(f"s_add_u32 s{S_TILE + 2*t + 1}, s{S_TILE}, {t * 16384 + 4096}")
    def flag_addr():
        A("s_lshl_b32 s9, s97, 2")
        A("s_add_u32 s9, s9, s65")
        A(f"v_mov_b32 v{T}, s9")
        if not XL:
            A(f"s_lshl_b32 s9, s{S_W}, 5")
            A("s_add_u32 s9, s9, s98")
            A(f"v_and_b32 v{T+2}, 7, v0")
            A(f"v_lshl_add_u32 v{T+2}, v{T+2}, 2, s9")
        else:
            A(f"s_lshl_b32 s9, s{S_W}, 5")
            A("s_add_u32 s99, s99, s9")
            A("s_lshl_b32 s9, s8, 7")
            A(f"s_add_u32 s9, s9, {WS_F2}")
            A("s_cmp_lg_u32 s98, 0")
            A("s_cselect_b32 s99, s9, s99")
            A("s_cselect_b32 s9, 7, 2")
            A(f"v_and_b32 v{T+2}, 7, v0")
            A(f"v_lshlrev_b32 v{T+2}, s9, v{T+2}")
            A(f"v_add_u32 v{T+2}, s99, v{T+2}")
            A(f"s_lshl_b32 s9, s{S_G}, 7")
            A(f"s_add_u32 s9, s9, {WS_F2}")
            A("v_mov_b32 v188, s9")
    if not SPLIT:
        post_store_setup()
        flag_addr()
    FL = SENT + 2
    def qcompute():
        for pc in range(4):
            X, it = pc >> 1, pc & 1
            r = QD + pc * 4
            x = 96 + 8 * (pc & 1)
            for hh in range(2):
                for k in range(2):
                    A(f"v_lshlrev_b32 v{x+4*hh+2*k}, 16, v{r+2*hh+k}")
                    A(f"v_and_b32 v{x+4*hh+2*k+1}, 0xffff0000, v{r+2*hh+k}")
            out = T + 20 + 4 * (pc & 1)
            rope(x, CQ + 4*pc, SQ + 4*pc, out)
            A(f"ds_write_b128 v{vQw}, {vr(out, 4)} offset:{X*8192 + it*256}")
    def qaddr():
        A(f"v_lshrrev_b32 v{T+3}, 5, v0")
        for k in range(4):
            A(f"v_add_u32 v{8+k}, {2*k}, v{T+3}")
            A(f"v_xor_b32 v{8+k}, v{8+k}, v0")
            A(f"v_lshlrev_b32 v{8+k}, 4, v{8+k}")
        A(f"v_mov_b32 v{V_LA}, 0")
        A(f"v_mov_b32 v{V_LB}, 0")
        if opt.get("dotsum"): A("s_mov_b32 s95, 0x3f803f80")
        if opt.get("pkadd"):
            for k in range(4): A(f"v_mov_b32 v{188 + k}, 0")
    def qreads():
        for ks in range(4):
            for X in range(2):
                A(f"ds_read_b128 {Qreg(X, ks)}, v{8 + (ks & 3)} offset:{(X * 8 + ks) * 1024}")
    def nonce_and_flag(all_lanes=False):
        A.label("L_NPOLL")
        A(f"v_readfirstlane_b32 s{S_XCC}, v{NON}")
        A("s_nop 1")
        A(f"s_sub_u32 s94, s{S_XCC}, s{S_T0}")
        A("s_add_u32 s94, s94, 500")
        A("s_cmp_lt_u32 s94, 2500")
        A(f"s_cselect_b32 s94, s{S_XCC}, 0")
        A("s_cmp_lg_u32 s94, 0")
        A("s_cbranch_scc1 L_NOK")
        A("s_add_u32 s10, s10, 1")
        A(f"s_cmp_ge_u32 s10, {opt.get('maxpoll0', 200)}")
        A("s_cbranch_scc1 L_NTIMEOUT")
        A(f"v_mov_b32 v{T+1}, 0")
        A(f"global_load_dword v{NON}, v{T+1}, s[{S_DBG}:{S_DBG+1}] sc1")
        A("s_waitcnt vmcnt(0)")
        A("s_branch L_NPOLL")
        A.label("L_NTIMEOUT")
        A(f"s_mov_b32 s{S_XCC}, 1")
        A("s_mov_b32 s9, 1")
        A.label("L_NOK")
        A(f"v_mov_b32 v{T+1}, s{S_XCC}")
        A("s_barrier")
        A("s_mov_b64 exec, 1")
        A(f"global_store_dword v{T}, v{T+1}, s[38:39]")
        if not all_lanes:
            A("s_mov_b64 exec, 0xff")
            A(f"global_load_dword v{FL}, v{T+2}, s[38:39] sc1")
        if XL:
            A("s_mov_b64 exec, 1")
            A(f"global_store_dword v188, v{T+1}, s[38:39] sc1")
        A("s_mov_b64 exec, -1")
        A("s_mov_b32 s65, s9")
    seq = stream()
    rmod = opt.get("ring_mod", "")
    DEPTH = opt.get("depth", 16)
    SE = T + 4
    def sentinels():
        for j in range(4): A(f"v_mov_b32 v{SE + j}, -1")
        A(f"buffer_store_dwordx4 {vr(SE, 4)}, v{V_LANE16}, s[{S_WS}:{S_WS+3}], s44 offen sc1")
        A(f"buffer_store_dwordx4 {vr(SE, 4)}, v{V_LANE16}, s[{S_WS}:{S_WS+3}], s44 offen offset:1024 sc1")
        A(f"buffer_store_dword v{SE}, v{vX4}, s[{S_WS}:{S_WS+3}], s45 offen sc1")
    if SPLIT:
        assert DEPTH == 16
        flag_addr()
        A("s_mov_b32 s10, 0")
        A("s_mov_b32 s9, 0")
        A(f"s_waitcnt vmcnt({10 if NEARLY else 2})")
        g.stamp(4)
        nonce_and_flag(all_lanes=True)
        post_store_setup()
        trig("s11", 0, CQ + 8, SQ + 8, 42); trig("s11", 16, CQ + 12, SQ + 12, 42)
        qaddr()
        if NEARLY: A("s_waitcnt vmcnt(3)")
        g.stamp(5)
        qcompute()
        A(f"v_mov_b32 v{T+1}, s{S_XCC}")
        A(f"v_mov_b32 v186, v{T+2}")
        A(f"global_load_dword v{FL}, v{T+2}, s[38:39] sc1")
        A("s_waitcnt vmcnt(2) lgkmcnt(0)")
        A("s_barrier")
        A("s_mov_b64 exec, 1")
        A(f"global_store_dword v{T}, v{T+1}, s[38:39] offset:128")
        A("s_mov_b64 exec, -1")
        qreads()
        A("s_cmp_lg_u32 s65, 0")
        A("s_cbranch_scc1 L_WAVEFAIL")
        A("s_mov_b32 s10, 0")
        A("s_waitcnt vmcnt(1)")
        A.label("L_FPOLL")
        A(f"v_cmp_ne_u32 vcc, s{S_XCC}, v{FL}")
        A("s_nop 0")
        A("s_cbranch_vccz L_FOK")
        A("s_add_u32 s10, s10, 1")
        A(f"s_cmp_ge_u32 s10, {opt.get('maxpoll1', 400)}")
        A("s_cbranch_scc1 L_WAVEFAIL")
        A(f"global_load_dword v{FL}, v{T+2}, s[38:39] sc1")
        A("s_waitcnt vmcnt(0)")
        A("s_branch L_FPOLL")
        A.label("L_FOK")
        g.stamp(6)
        if opt.get("stamp"): A(f"s_mov_b32 s{ST0 + 2*11}, s10")
        for p in range(DEPTH): A(ring_load(seq, p, rmod))
        sentinels()
        g.stamp(7)
        g.stamp_wait()
        return
    if QEARLY == 2:
        trig("s11", 0, CQ + 8, SQ + 8, 42); trig("s11", 16, CQ + 12, SQ + 12, 42)
        A("s_waitcnt vmcnt(3)")
        g.stamp(5)
        qcompute()
        qaddr()
        A("s_mov_b32 s10, 0")
        A("s_mov_b32 s9, 0")
        A("s_waitcnt vmcnt(0) lgkmcnt(0)")
        g.stamp(4)
        g.stamp_wait()
        nonce_and_flag()
        qreads()
    else:
        A("s_mov_b32 s10, 0")
        A("s_mov_b32 s9, 0")
        A(f"s_waitcnt vmcnt({0 if QEARLY else 8})")
        g.stamp(4)
        nonce_and_flag()
        if EARLY < 2:
            trig("s11", 0, CQ + 8, SQ + 8, 42); trig("s11", 16, CQ + 12, SQ + 12, 42)
        A(f"s_waitcnt vmcnt({2 + XL})")
        g.stamp(5)
        qcompute()
        qaddr()
        A("s_waitcnt lgkmcnt(0)")
        A("s_barrier")
        qreads()
    A.c("==== wait for the 8 tiles this wave reads")
    A("s_cmp_lg_u32 s65, 0")
    A("s_cbranch_scc1 L_WAVEFAIL")
    A("s_mov_b32 s10, 0")
    PROG = opt.get("prog", 0)
    A(f"s_mov_b64 exec, {'0x3' if PROG else '0xff'}")
    A(f"s_waitcnt vmcnt({XL})")
    A.label("L_FPOLL")
    A(f"v_cmp_ne_u32 vcc, s{S_XCC}, v{FL}")
    A("s_nop 0")
    A("s_cbranch_vccz L_FOK")
    A("s_add_u32 s10, s10, 1")
    A(f"s_cmp_ge_u32 s10, {opt.get('maxpoll1', 400)}")
    A("s_cbranch_scc1 L_WAVEFAIL")
    A(f"global_load_dword v{FL}, v{T+2}, s[38:39] sc1")
    A("s_waitcnt vmcnt(0)")
    A("s_branch L_FPOLL")
    A.label("L_FOK")
    A("s_mov_b64 exec, -1")
    if PROG: A(f"v_mov_b32 v186, v{T+2}")
    g.stamp(6)
    if opt.get("stamp"): A(f"s_mov_b32 s{ST0 + 2*11}, s10")
    for p in range(DEPTH): A(ring_load(seq, p, rmod))
    if XL:
        for j in range(4): A(f"v_mov_b32 v{184 + j}, -1")
        A("v_lshlrev_b32 v189, 2, v0")
    elif opt.get("prog", 0) or opt.get("sent_in_loop", 0):
        for j in range(4): A(f"v_mov_b32 v{SE + j}, -1")
        A("v_lshlrev_b32 v185, 2, v0")
    else:
        sentinels()
    g.stamp(7)
    g.stamp_wait()

def gen_prologue2(g):
    A, opt = g.A, g.opt
    vC, vR0, vKo, vKs, vVd, vVs, vQd = 8, 9, 10, 12, 13, 14, 15
    vKst, vQw, vSel = 16, 17, 18
    W = 20; CKA, SKA, CQ, SQ = 24, 28, 40, 56
    CKB, SKB = 92, 96
    KD, KSC, KZ, U, SC, KOUT = 80, 88, 90, 100, 108, 112
    VD, VSC, VZ, VOUT = 116, 124, 132, 140
    QD, QX, QU, QOUT = 144, 160, 176, 184
    vPoll, vRes, vMyF, vFVal = 188, 189, 190, 191
    NON, FL = 171, 172
    T = 32
    P0 = T + 2
    def trig(pos_s, extra, c0, s0, scale):
        A(f"v_add_u32 v{P0}, {pos_s}, v{vR0}")
        if extra: A(f"v_add_u32 v{P0}, {extra}, v{P0}")
        A(f"v_cvt_f32_u32 v{P0}, v{P0}")
        for j in range(4): A(f"v_mul_f32 v{P0+1+j}, v{P0}, v{W+j}")
        for j in range(4): A(f"v_fract_f32 v{P0+1+j}, v{P0+1+j}")
        for j in range(4):
            A(f"v_cos_f32 v{c0+j}, v{P0+1+j}")
            A(f"v_sin_f32 v{s0+j}, v{P0+1+j}")
        if scale:
            A("s_nop 0")
            for j in range(0, 4, 2):
                A(f"v_pk_mul_f32 {vr(c0+j, 2)}, {vr(c0+j, 2)}, s[{scale}:{scale+1}]")
                A(f"v_pk_mul_f32 {vr(s0+j, 2)}, {vr(s0+j, 2)}, s[{scale}:{scale+1}]")
    def rope(x, c0, s0, u, out):
        L = []
        for j in range(0, 4, 2):
            L.append(f"v_pk_mul_f32 {vr(u+j, 2)}, {vr(x+4+j, 2)}, {vr(s0+j, 2)}")
            L.append(f"v_pk_mul_f32 {vr(u+4+j, 2)}, {vr(x+j, 2)}, {vr(s0+j, 2)}")
        for j in range(0, 4, 2):
            L.append(f"v_pk_fma_f32 {vr(u+j, 2)}, {vr(x+j, 2)}, {vr(c0+j, 2)}, {vr(u+j, 2)} neg_lo:[0,0,1] neg_hi:[0,0,1]")
            L.append(f"v_pk_fma_f32 {vr(u+4+j, 2)}, {vr(x+4+j, 2)}, {vr(c0+j, 2)}, {vr(u+4+j, 2)}")
        for k in range(4):
            L.append(f"v_cvt_pk_bf16_f32 v{out+k}, v{u+2*k}, v{u+2*k+1}")
        return L
    def kloads(base_k, base_s, base_z):
        A(f"global_load_dwordx4 {vr(KD, 4)}, v{vKo}, {base_k}")
        A(f"global_load_dwordx4 {vr(KD + 4, 4)}, v{vKo}, {base_k} offset:256")
        A(f"global_load_dwordx2 {vr(KSC, 2)}, v{vKs}, {base_s}")
        A(f"global_load_dwordx2 {vr(KZ, 2)}, v{vKs}, {base_z}")
    def vloads(base_v, base_s, base_z):
        for i in range(8):
            ro = (8 * (i >> 2) + (i & 3)) * 8
            A(f"global_load_ushort v{VSC + i}, v{vVs}, {base_s} offset:{ro}")
            A(f"global_load_ushort v{VZ + i}, v{vVs}, {base_z} offset:{ro}")
        for i in range(8):
            off = (i >> 2) * 4096 + (i & 3) * 512 - 2048
            A(f"global_load_dword v{VD + i}, v{vVd}, {base_v} offset:{off}")
    def kcompute(ck, sk, sbase, vKst=vKst, vSel=vSel):
        L = []
        for k, src in enumerate((KSC, KSC + 1, KZ, KZ + 1)): L.append(f"v_lshlrev_b32 v{SC+k}, v{vSel}, v{src}")
        for j in range(8): L.append(f"v_cvt_f32_i32 v{KD+j}, v{KD+j}")
        for k in range(4): L.append(f"v_and_b32 v{SC+k}, 0xffff0000, v{SC+k}")
        for j in range(0, 4, 2):
            L.append(f"v_pk_add_f32 {vr(KD+j, 2)}, {vr(KD+j, 2)}, {vr(SC+2, 2)} op_sel_hi:[1,0] neg_lo:[0,1] neg_hi:[0,1]")
            L.append(f"v_pk_add_f32 {vr(KD+4+j, 2)}, {vr(KD+4+j, 2)}, {vr(SC+2, 2)} op_sel:[0,1] op_sel_hi:[1,1] neg_lo:[0,1] neg_hi:[0,1]")
        for j in range(0, 4, 2):
            L.append(f"v_pk_mul_f32 {vr(KD+j, 2)}, {vr(KD+j, 2)}, {vr(SC, 2)} op_sel_hi:[1,0]")
            L.append(f"v_pk_mul_f32 {vr(KD+4+j, 2)}, {vr(KD+4+j, 2)}, {vr(SC, 2)} op_sel:[0,1] op_sel_hi:[1,1]")
        L += rope(KD, ck, sk, U, KOUT)
        L.append(f"buffer_store_dwordx4 {vr(KOUT, 4)}, v{vKst}, s[{S_WS}:{S_WS+3}], {sbase} offen sc1")
        return L
    def vcompute(sbase):
        L = []
        for i in range(8):
            L.append(f"v_lshlrev_b32 v{VSC+i}, 16, v{VSC+i}")
            L.append(f"v_lshlrev_b32 v{VZ+i}, 16, v{VZ+i}")
        for i in range(8): L.append(f"v_cvt_f32_i32 v{VD+i}, v{VD+i}")
        for i in range(0, 8, 2): L.append(f"v_pk_add_f32 {vr(VD+i, 2)}, {vr(VD+i, 2)}, {vr(VZ+i, 2)} neg_lo:[0,1] neg_hi:[0,1]")
        for i in range(0, 8, 2): L.append(f"v_pk_mul_f32 {vr(VD+i, 2)}, {vr(VD+i, 2)}, {vr(VSC+i, 2)}")
        for k in range(4): L.append(f"v_cvt_pk_bf16_f32 v{VOUT+k}, v{VD+2*k}, v{VD+2*k+1}")
        L.append(f"buffer_store_dwordx4 {vr(VOUT, 4)}, v{V_LANE16}, s[{S_WS}:{S_WS+3}], {sbase} offen sc1")
        return L

    g.stamp(0)
    A("s_cmp_ge_u32 s2, 256")
    A("s_cbranch_scc1 L_END")
    A(f"s_load_dwordx16 s[{S_ARG}:{S_ARG+15}], s[0:1], 0")
    A(f"s_load_dwordx4 s[{S_DBG}:{S_DBG+3}], s[0:1], 96")
    A(f"s_load_dwordx2 s[{S_OUTP}:{S_OUTP+1}], s[0:1], 88")
    A(f"s_memrealtime s[{S_T0}:{S_T0+1}]")
    A("v_lshrrev_b32 v8, 6, v0")
    A("v_and_b32 v0, 63, v0")
    A(f"v_readfirstlane_b32 s{S_W}, v8")
    A(f"v_lshlrev_b32 v{V_LANE16}, 4, v0")
    A("s_and_b32 s8, s2, 7")
    A(f"s_lshr_b32 s{S_H}, s8, 1")
    A(f"s_and_b32 s{S_SP}, s8, 1")
    A(f"s_lshr_b32 s{S_QT}, s2, 3")
    A(f"s_lshl_b32 s8, s{S_H}, 6")
    A(f"s_lshl_b32 s9, s{S_SP}, 5")
    A("s_add_u32 s8, s8, s9")
    A(f"s_lshr_b32 s9, s{S_QT}, 1")
    A("s_lshr_b32 s10, s9, 2")
    A("s_lshl_b32 s10, s10, 3")
    A("s_and_b32 s9, s9, 3")
    A("s_add_u32 s10, s10, s9")
    A(f"s_add_u32 s{S_G}, s8, s10")
    A(f"s_and_b32 s66x, s{S_QT}, 1".replace("s66x", "s11"))
    A(f"v_and_b32 v{vC}, 15, v0")
    A(f"v_lshrrev_b32 v{vR0}, 4, v0")
    A(f"s_lshl_b32 s9, s{S_W}, 2")
    A(f"v_add_u32 v{vR0}, s9, v{vR0}")
    A("s_lshl_b32 s9, s11, 4")
    A(f"v_add_u32 v{T}, s9, v{vR0}")
    A(f"v_lshlrev_b32 v{vKo}, 9, v{T}")
    A(f"v_lshl_add_u32 v{vKo}, v{vC}, 4, v{vKo}")
    A(f"v_lshlrev_b32 v{vKs}, 3, v{T}")
    A(f"v_lshrrev_b32 v{T+1}, 1, v{vC}")
    A(f"v_lshlrev_b32 v{vKst}, 10, v{T+1}")
    A(f"v_and_b32 v{T+2}, 1, v{vC}")
    A(f"v_lshl_add_u32 v{vKst}, v{T+2}, 9, v{vKst}")
    A(f"v_lshl_add_u32 v{vKst}, v{T}, 4, v{vKst}")
    A(f"v_lshl_add_u32 v{T+2}, v{T+2}, 5, v{vR0}")
    A(f"v_and_b32 v{T+3}, 7, v{vC}")
    A(f"v_xor_b32 v{T+2}, v{T+2}, v{T+3}")
    A(f"v_lshlrev_b32 v{vQw}, 10, v{T+1}")
    A(f"v_lshl_add_u32 v{vQw}, v{T+2}, 4, v{vQw}")
    A(f"v_lshrrev_b32 v{vSel}, 3, v{vC}")
    A(f"v_lshlrev_b32 v{vSel}, 4, v{vSel}")
    A(f"v_sub_u32 v{vSel}, 16, v{vSel}")
    A(f"v_and_b32 v{T}, 31, v0")
    A(f"v_lshrrev_b32 v{T+1}, 5, v0")
    A(f"v_bfe_u32 v{T+2}, v{T}, 2, 1")
    A(f"v_lshlrev_b32 v{T+2}, 4, v{T+2}")
    A(f"v_lshrrev_b32 v{T+3}, 3, v{T}")
    A(f"v_lshl_add_u32 v{T+2}, v{T+3}, 2, v{T+2}")
    A(f"v_and_b32 v{T+3}, 3, v{T}")
    A(f"v_add_u32 v{T+2}, v{T+2}, v{T+3}")
    A("s_lshl_b32 s9, s11, 4")
    A(f"v_lshlrev_b32 v{T+1}, 2, v{T+1}")
    A(f"v_add_u32 v{T+1}, s9, v{T+1}")
    A(f"s_lshl_b32 s9, s{S_W}, 7")
    A("s_add_u32 s9, s9, 2048")
    A(f"v_lshlrev_b32 v{vVd}, 9, v{T+1}")
    A(f"v_lshl_add_u32 v{vVd}, v{T+2}, 2, v{vVd}")
    A(f"v_add_u32 v{vVd}, s9, v{vVd}")
    A(f"s_lshl_b32 s9, s{S_W}, 1")
    A(f"v_lshlrev_b32 v{vVs}, 3, v{T+1}")
    A(f"v_add_u32 v{vVs}, s9, v{vVs}")
    A(f"v_lshlrev_b32 v{vQd}, 8, v{vR0}")
    A(f"v_lshl_add_u32 v{vQd}, v{vC}, 3, v{vQd}")
    A(f"v_add_u32 v{vQd}, 2048, v{vQd}")
    A(f"s_lshl_b32 s42, s{S_G}, 14")
    A(f"s_lshl_b32 s43, s{S_G}, 8")
    A("s_lshl_b32 s9, s8, 3")
    A(f"s_add_u32 s65, s9, {WS_F}")
    A(f"v_mov_b32 v{T+7}, s65")
    A(f"s_lshl_b32 s9, s{S_QT}, 1")
    A(f"s_add_u32 s46, s9, s{S_SP}")
    A("s_xor_b32 s47, s46, 1")
    A(f"s_lshl_b32 s9, s{S_H}, 6")
    A("s_add_u32 s94, s9, s47")
    A("s_lshl_b32 s94, s94, 13")
    A("s_add_u32 s95, s9, s46")
    A("s_lshl_b32 s95, s95, 13")
    A(f"v_lshlrev_b32 v{T}, 2, v{vC}")
    A(f"v_cvt_f32_u32 v{T}, v{T}")
    A(f"s_mov_b32 s9, {F(TRIG_A)}")
    for j in range(4): A(f"v_mov_b32 v{W+j}, {F(TRIG_B + j * TRIG_A)}")
    for j in range(4): A(f"v_fma_f32 v{W+j}, v{T}, s9, v{W+j}")
    for j in range(4): A(f"v_exp_f32 v{W+j}, v{W+j}")
    A(f"s_lshl_b32 s9, s{S_SP}, 5")
    A("s_add_u32 s9, s9, s10")
    A("s_lshl_b32 s9, s9, 5")
    A("s_lshl_b32 s10, s11, 4")
    A("s_add_u32 s44, s9, s10")
    trig("s44", 0, CKA, SKA, None)
    A("s_waitcnt lgkmcnt(0)")
    g.stamp(1)
    A(f"s_or_b32 s10, s2, s{S_W}")
    A("s_cmp_lg_u32 s10, 0")
    A("s_cbranch_scc1 L_NONONCE")
    A(f"s_or_b32 s10, s{S_T0}, 1")
    A(f"v_mov_b32 v{T+1}, 0")
    A(f"v_mov_b32 v{T+2}, s10")
    A("s_mov_b64 exec, 1")
    A(f"global_store_dword v{T+1}, v{T+2}, s[{S_DBG}:{S_DBG+1}] sc1")
    A("s_mov_b64 exec, -1")
    A.label("L_NONONCE")
    add64(A, 22, 22, "s42"); add64(A, 24, 24, "s43"); add64(A, 26, 26, "s43")
    kloads("s[22:23]", "s[24:25]", "s[26:27]")
    add64(A, 28, 28, "s42"); add64(A, 30, 30, "s43"); add64(A, 32, 32, "s43")
    vloads("s[28:29]", "s[30:31]", "s[32:33]")
    add64(A, 34, 20, "s94"); add64(A, 20, 20, "s95")
    for X in range(2):
        base = "s[34:35]" if X == 0 else "s[20:21]"
        for it in range(2):
            r = QD + (X * 2 + it) * 4
            A(f"global_load_dwordx2 {vr(r, 2)}, v{vQd}, {base} offset:{it*4096 - 2048}")
            A(f"global_load_dwordx2 {vr(r + 2, 2)}, v{vQd}, {base} offset:{it*4096 - 2048 + 128}")
    A(f"global_load_dword v173, v{T+7}, s[38:39] sc1")
    A(f"global_load_dword v174, v{T+7}, s[38:39] offset:128 sc1")
    srd(A, S_WS, 38, WS_SIZE)
    trig("s44", 128, CKB, SKB, None)
    add64(A, 22, 22, 4 * 16384); add64(A, 24, 24, 4 * 256); add64(A, 26, 26, 4 * 256)
    add64(A, 28, 28, 4 * 16384); add64(A, 30, 30, 4 * 256); add64(A, 32, 32, 4 * 256)
    A(f"s_lshl_b32 s43, s{S_G}, 14")
    A(f"s_lshl_b32 s9, s{S_W}, 11")
    A("s_lshl_b32 s10, s11, 10")
    A("s_add_u32 s9, s9, s10")
    A("s_add_u32 s9, s9, 8192")
    A("s_add_u32 s42, s43, s9")
    A("s_add_u32 s66, s43, 65536".replace("s66", "s96"))
    A("s_add_u32 s97, s42, 65536")
    A("s_lshl_b32 s44, s2, 13")
    A(f"s_lshl_b32 s10, s{S_W}, 11")
    A("s_add_u32 s44, s44, s10")
    A(f"s_add_u32 s44, s44, {WS_X}")
    A("s_lshl_b32 s45, s2, 10")
    A(f"s_lshl_b32 s10, s{S_W}, 8")
    A("s_add_u32 s45, s45, s10")
    A(f"s_add_u32 s45, s45, {WS_L}")
    A("s_waitcnt vmcnt(34)")
    g.stamp(2)
    NE = opt.get("nonce_early", 1)
    if NE:
        A(f"v_mov_b32 v{T+1}, 0")
        A(f"global_load_dword v{NON}, v{T+1}, s[{S_DBG}:{S_DBG+1}] sc1")
    for l in kcompute(CKA, SKA, "s43"): A(l)
    A(f"s_waitcnt vmcnt({11 + NE})")
    g.stamp(3)
    for l in vcompute("s42"): A(l)
    if not NE:
        A(f"v_mov_b32 v{T+1}, 0")
        A(f"global_load_dword v{NON}, v{T+1}, s[{S_DBG}:{S_DBG+1}] sc1")
    kloads("s[22:23]", "s[24:25]", "s[26:27]")
    vloads("s[28:29]", "s[30:31]", "s[32:33]")
    A(f"v_mov_b32 v12, v{vKst}")
    A(f"v_mov_b32 v13, v{vSel}")
    A("s_lshl_b32 s10, s47, 5")
    A("s_lshl_b32 s11, s46, 5")
    A(f"s_mov_b32 s46, {F(QSCALE)}")
    A(f"s_mov_b32 s47, {F(QSCALE)}")
    trig("s10", 0, CQ, SQ, 46); trig("s10", 16, CQ + 4, SQ + 4, 46)
    trig("s11", 0, CQ + 8, SQ + 8, 46); trig("s11", 16, CQ + 12, SQ + 12, 46)
    A(f"s_lshl_b32 s9, s{S_QT}, 2")
    A("s_add_u32 s9, s9, s65")
    A(f"v_mov_b32 v{vMyF}, s9")
    A(f"s_lshl_b32 s9, s{S_W}, 5")
    A("s_add_u32 s9, s9, s65")
    A(f"v_and_b32 v{vPoll}, 7, v0")
    A(f"v_lshl_add_u32 v{vPoll}, v{vPoll}, 2, s9")
    A("s_mov_b32 s10, 0")
    A("s_mov_b32 s65, 0")
    A("s_waitcnt vmcnt(28)")
    g.stamp(4)
    A.label("L_NPOLL")
    A(f"v_readfirstlane_b32 s{S_XCC}, v{NON}")
    A("s_nop 1")
    A(f"s_sub_u32 s94, s{S_XCC}, s{S_T0}")
    A("s_add_u32 s94, s94, 500")
    A("s_cmp_lt_u32 s94, 2500")
    A(f"s_cselect_b32 s94, s{S_XCC}, 0")
    A("s_cmp_lg_u32 s94, 0")
    A("s_cbranch_scc1 L_NOK")
    A("s_add_u32 s10, s10, 1")
    A(f"s_cmp_ge_u32 s10, {opt.get('maxpoll0', 200)}")
    A("s_cbranch_scc1 L_NTIMEOUT")
    A(f"v_mov_b32 v{T+1}, 0")
    A(f"global_load_dword v{NON}, v{T+1}, s[{S_DBG}:{S_DBG+1}] sc1")
    A("s_waitcnt vmcnt(0)")
    A("s_branch L_NPOLL")
    A.label("L_NTIMEOUT")
    A(f"s_mov_b32 s{S_XCC}, 1")
    A("s_mov_b32 s65, 1")
    A.label("L_NOK")
    A(f"v_mov_b32 v{vFVal}, s{S_XCC}")
    A("s_barrier")
    A("s_mov_b64 exec, 1")
    A(f"global_store_dword v{vMyF}, v{vFVal}, s[38:39]")
    A("s_mov_b64 exec, -1")
    for pc in range(4):
        X, it = pc >> 1, pc & 1
        r = QD + pc * 4
        for hh in range(2):
            for k in range(2):
                A(f"v_lshlrev_b32 v{QX+4*hh+2*k}, 16, v{r+2*hh+k}")
                A(f"v_and_b32 v{QX+4*hh+2*k+1}, 0xffff0000, v{r+2*hh+k}")
        for l in rope(QX, CQ + 4*pc, SQ + 4*pc, QU, QOUT): A(l)
        A(f"ds_write_b128 v{vQw}, {vr(QOUT, 4)} offset:{X*8192 + it*256}")
    A(f"global_load_dword v{FL}, v{vPoll}, s[38:39] sc1")
    for j in range(4):
        A(f"s_add_u32 s9, s{S_W}, {j}")
        A("s_and_b32 s9, s9, 3")
        A("s_lshl_b32 s9, s9, 11")
        A("s_add_u32 s9, s9, 8192")
        A(f"v_add_u32 v{V_OFFV + j}, s9, v{V_LANE16}")
    A(f"s_lshl_b32 s9, s{S_W}, 3")
    A("s_add_u32 s8, s8, s9")
    A(f"s_lshl_b32 s{S_TILE}, s8, 14")
    A(f"s_add_u32 s{S_TILE+1}, s{S_TILE}, 4096")
    for t in range(1, 8):
        A(f"s_add_u32 s{S_TILE + 2*t}, s{S_TILE}, {t * 16384}")
        A(f"s_add_u32 s{S_TILE + 2*t + 1}, s{S_TILE}, {t * 16384 + 4096}")
    A(f"v_lshrrev_b32 v{T+3}, 5, v0")
    for k in range(4):
        A(f"v_add_u32 v{8+k}, {2*k}, v{T+3}")
        A(f"v_xor_b32 v{8+k}, v{8+k}, v0")
        A(f"v_lshlrev_b32 v{8+k}, 4, v{8+k}")
    A(f"v_mov_b32 v{V_LA}, 0")
    A(f"v_mov_b32 v{V_LB}, 0")
    A("s_waitcnt lgkmcnt(0)")
    A("s_barrier")
    for ks in range(4):
        for X in range(2):
            A(f"ds_read_b128 {Qreg(X, ks)}, v{8 + (ks & 3)} offset:{(X * 8 + ks) * 1024}")
    g.stamp(5)
    A("s_mov_b32 s10, 0")
    A("s_cmp_lg_u32 s65, 0")
    A("s_cbranch_scc1 L_FOK")
    A.label("L_FPOLL")
    A("s_waitcnt vmcnt(0)")
    A(f"v_cmp_ne_u32 vcc, s{S_XCC}, v{FL}")
    A("s_nop 0")
    A("s_cbranch_vccz L_FOK")
    A("s_add_u32 s10, s10, 1")
    A(f"s_cmp_ge_u32 s10, {opt.get('maxpoll1', 400)}")
    A("s_cbranch_scc1 L_FTIMEOUT")
    A(f"global_load_dword v{FL}, v{vPoll}, s[38:39] sc1")
    A("s_branch L_FPOLL")
    A.label("L_FTIMEOUT")
    A("s_mov_b32 s65, 1")
    A.label("L_FOK")
    g.stamp(6)
    if opt.get("stamp"): A(f"s_mov_b32 s{ST0 + 2*11}, s10")
    seq = stream()
    for p in range(16): A(ring_load(seq, p, opt.get("ring_mod", "")))
    g.stamp(7)
    g.stamp_wait()
    for j in range(4): A(f"v_mov_b32 v{184 + j}, -1")
    A("v_lshlrev_b32 v183, 2, v0")
    g.stageB = kcompute(CKB, SKB, "s96", 12, 13) + vcompute("s97")
    g.s2regs = dict(vPoll=vPoll, vRes=vRes, vMyF=vMyF, vFVal=vFVal)

def gen_wavefail(g):
    A = g.A
    A.label("L_WAVEFAIL")
    A("s_mov_b64 exec, -1")
    A("s_waitcnt vmcnt(0) lgkmcnt(0)")
    A(f"v_lshlrev_b32 v19, 2, v0")
    for j in range(4): A(f"v_mov_b32 v{136 + j}, -1")
    A(f"buffer_store_dwordx4 v[136:139], v{V_LANE16}, s[{S_WS}:{S_WS+3}], s44 offen sc1")
    A(f"buffer_store_dwordx4 v[136:139], v{V_LANE16}, s[{S_WS}:{S_WS+3}], s44 offen offset:1024 sc1")
    A(f"buffer_store_dword v136, v19, s[{S_WS}:{S_WS+3}], s45 offen sc1")
    e = Epi(g)
    for l in e.address_setup(): A(l)
    A(f"v_mov_b32 v{V_LA}, 0x7fc00000")
    A(f"v_mov_b32 v{V_LB}, 0x7fc00000")
    for l in e.lwrite(0): A(l)
    A("s_waitcnt vmcnt(0)")
    A("s_branch L_EPI")

def gen_main(g):
    A, opt = g.A, g.opt
    if opt.get("align64"): A(".p2align 6")
    for _ in range(opt.get("prenop", 0)): A("s_nop 0")
    seq = stream()
    rmod = opt.get("ring_mod", "")
    pos_of = {(k, t, i): p for p, (k, t, i) in enumerate(seq)}
    ops = []
    def phase(kind, t, Xs=(0, 1)):
        if len(Xs) == 2:
            for i in range(8):
                for X in (0, 1): ops.append((kind, t, i, X))
        else:
            for i in range(8): ops.append((kind, t, i, Xs[0]))
    if opt.get("xsplit0", 0): phase("K", 0, (0,)); phase("K", 0, (1,))
    else: phase("K", 0)
    for t in range(6):
        phase("K", t + 1); phase("V", t)
    if opt.get("xsplit7", 0): phase("K", 7, (0,)); phase("K", 7, (1,))
    else: phase("K", 7)
    if opt.get("tailorder", 0) == 1:
        phase("V", 6, (0,)); phase("V", 6, (1,)); phase("V", 7, (0,))
        iB = len(ops)
        phase("V", 7, (1,))
    else:
        phase("V", 6, (0,)); phase("V", 7, (0,))
        iB = len(ops)
        phase("V", 6, (1,)); phase("V", 7, (1,))
    NG = len(ops); assert NG == 256
    first, last = {}, {}
    for n, (k, t, i, X) in enumerate(ops):
        p = pos_of[(k, t, i)]
        first.setdefault(p, n); last[p] = n
    lastS = {}
    for n, (k, t, i, X) in enumerate(ops):
        if k == "K": lastS[(t, X)] = n
    firstP = {}
    for n, (k, t, i, X) in enumerate(ops):
        if k == "V": firstP.setdefault((t, X, i >> 2), n)
    tasks = []
    for t in range(8):
        if t < 7:
            order = [(0, 0), (1, 0), (0, 1), (1, 1)]
        else:
            order = [(0, 0), (0, 1), (1, 0), (1, 1)]
        if t == 6: order = [(0, 0), (0, 1), (1, 0), (1, 1)]
        for X, half in order:
            for j in range(8 * half, 8 * half + 8): tasks.append((t, X, j))
    def avail(t, X):
        lag = opt.get("lag0", 5) if t == 0 else opt.get("lag", 3)
        return lastS[(t, X)] + lag + (0 if X == 1 else 1)
    def deadline(t, X, j): return firstP[(t, X, j >> 3)]
    plan = [[] for _ in range(NG)]
    MARG = 3
    CAP = opt.get("cap", 2)
    if opt.get("edf", 1):
        tasks.sort(key=lambda x: (deadline(*x), x[0], x[1], x[2]))
        LS = {}; cnt = {}
        nxt = {}
        for x in reversed(tasks):
            gg = deadline(*x) - MARG
            key = (x[0], x[1])
            if key in nxt: gg = min(gg, nxt[key])
            while cnt.get(gg, 0) >= CAP: gg -= 1
            cnt[gg] = cnt.get(gg, 0) + 1
            LS[x] = gg; nxt[key] = gg
        remaining = list(tasks)
        for gg in range(NG):
            n = 0
            while True:
                av = [x for x in remaining if avail(x[0], x[1]) <= gg and all(not (y[0] == x[0] and y[1] == x[1] and y[2] < x[2]) for y in remaining)]
                if not av: break
                must = [x for x in av if LS[x] <= gg]
                if must: x = min(must, key=lambda y: LS[y])
                elif n < 1: x = av[0]
                else: break
                if n >= CAP: break
                plan[gg].append(x); remaining.remove(x); n += 1
            for x in remaining: assert deadline(*x) - MARG > gg, ("deadline miss", gg, x)
        assert not remaining
    else:
        LS = [0] * len(tasks); cnt = {}; nxt = 10 ** 9
        for k in range(len(tasks) - 1, -1, -1):
            t, X, j = tasks[k]
            gg = min(deadline(t, X, j) - MARG, nxt)
            while cnt.get(gg, 0) >= CAP: gg -= 1
            cnt[gg] = cnt.get(gg, 0) + 1
            LS[k] = gg; nxt = gg
        done = 0
        for gg in range(NG):
            n = 0
            while done < len(tasks) and avail(tasks[done][0], tasks[done][1]) <= gg and (n < 1 or LS[done] <= gg):
                plan[gg].append(tasks[done]); done += 1; n += 1
            if done < len(tasks): assert LS[done] > gg, ("deadline miss", gg, tasks[done], LS[done])
        assert done == len(tasks)
    if opt.get("show_plan"):
        print("elements per gap:", "".join(str(len(x)) for x in plan), file=sys.stderr)
    st = dict(add=[], cvt=[])
    E64 = "_e64" if opt.get("e64") else ""
    def fillers(gg):
        out = []
        adds, cvts = st["add"], st["cvt"]
        st["add"], st["cvt"] = [], []
        exps = []
        PKA = opt.get("pkadd", 0)
        DOT = opt.get("dotsum", 0)
        for (t, X, j) in plan[gg]:
            s = Sreg(t & 1, X) + j
            exps.append(f"v_exp_f32{E64} v{s}, v{s}")
            if not DOT and (not PKA or (j & 1)): st["add"].append((t, X, j))
            if j & 1: st["cvt"].append((t, X, j))
        rest = []
        for (t, X, j) in adds:
            if DOT:
                rest.append(f"v_dot2c_f32_bf16 v{V_LA + X}, s95, v{Preg(t & 1, X) + (j >> 1)}")
            elif PKA:
                sp = Sreg(t & 1, X) + j - 1
                rest.append(f"v_pk_add_f32 {vr(188 + 2 * X, 2)}, {vr(188 + 2 * X, 2)}, {vr(sp, 2)}")
            else:
                rest.append(f"v_add_f32{E64} v{V_LA + X}, v{V_LA + X}, v{Sreg(t & 1, X) + j}")
        for (t, X, j) in cvts:
            s = Sreg(t & 1, X) + j
            rest.append(f"v_cvt_pk_bf16_f32 v{Preg(t & 1, X) + (j >> 1)}, v{s - 1}, v{s}")
            if DOT: st["add"].append((t, X, j))
        while exps or rest:
            if exps: out.append(exps.pop(0))
            if rest: out.append(rest.pop(0))
            if rest and not exps: out += rest; rest = []
        return out
    extra = {n: [] for n in range(NG)}
    if opt.get("xsplit0", 0):
        for n in range(8, 13): extra[n].append("s_nop 2")
    epi = Epi(g)
    pre = epi.address_setup()
    for k, ins in enumerate(pre):
        extra[200 + k // 2].append(ins)
    wa = epi.lwrite(0) + epi.owrite(0)
    if opt.get("pkadd"): wa = [f"v_add_f32 v{V_LA}, v188, v189"] + wa
    lastA_add = max(n for n in range(NG) for (t, X, j) in plan[n] if X == 0) + 1 + (4 if opt.get("dotsum") else 0)
    startA = max(iB + 1, lastA_add + 1)
    TAIL2 = opt.get("tail2", 0)
    if not TAIL2:
        startA = max(iB + 2, lastA_add + 1)
        for k, ins in enumerate(wa):
            extra[min(NG - 4, startA + k)].append(ins)
    else:
        for k, ins in enumerate(wa):
            extra[startA + (k + 1) // 2].append(ins)
        gb = opt.get("tail_bar", 250)
        extra[gb].append("s_waitcnt lgkmcnt(0)")
        extra[gb].append("s_barrier")
        rd = epi.oread(0)
        per = -(-len(rd) // (NG - gb))
        for k, ins in enumerate(rd):
            extra[gb + k // per].append(ins)
    DEPTH = opt.get("depth", 16)
    SPLIT = opt.get("split", 0)
    PROG = opt.get("prog", 0)
    STAGE2 = opt.get("stage2", 0)
    if STAGE2: order = list(range(DEPTH))
    elif SPLIT: order = ["vflag"] + list(range(DEPTH)) + ["s0", "s1", "s2"]
    elif PROG or opt.get("sent_in_loop", 0) or opt.get("xl", 0): order = list(range(DEPTH))
    else: order = list(range(DEPTH)) + ["s0", "s1", "s2"]
    SENTL = (PROG or opt.get("sent_in_loop", 0)) and not SPLIT and not STAGE2
    sent_ins = [f"buffer_store_dwordx4 v[136:139], v{V_LANE16}, s[{S_WS}:{S_WS+3}], s44 offen sc1",
                f"buffer_store_dwordx4 v[136:139], v{V_LANE16}, s[{S_WS}:{S_WS+3}], s44 offen offset:1024 sc1",
                f"buffer_store_dword v136, v185, s[{S_WS}:{S_WS+3}], s45 offen sc1"]
    def younger(x): return len(order) - 1 - order.index(x)
    sched = {}
    loaded = set(range(DEPTH))
    bal = opt.get("bal", 1)
    for n, (k, t, i, X) in enumerate(ops):
        p = pos_of[(k, t, i)]
        trigger = (first[p] == n) if bal else (last[p] == n)
        if trigger and p + DEPTH < 128:
            q = p + DEPTH
            if opt.get("stage2") and 40 <= p < 48: q = p + 24
            elif opt.get("stage2") and 48 <= p < 56: q = p + 8
            if SPLIT and p < 8: q = 24 + p
            elif SPLIT and p < 16: continue
            sched.setdefault(n, []).append(q)
    if SPLIT:
        for j in range(8): sched.setdefault(16 + j, []).append(16 + j)
    for n, (k, t, i, X) in enumerate(ops):
        p = pos_of[(k, t, i)]
        if n in (0, 16, 32, 128, 240): A.c(f"---- mfma {n}: {k}{t} i{i} X{X}")
        if opt.get("stamp") and opt.get("loopstamp") == 1 and n in (32, 64, 96, 128, 160, 192, 224):
            g.stamp(n // 32)
        if opt.get("stamp") and opt.get("loopstamp") == 2 and n in (17, 24, 32, 40, 48, 64):
            g.stamp({17: 1, 24: 2, 32: 3, 40: 4, 48: 5, 64: 6}[n])
        if opt.get("stamp") and opt.get("loopstamp") == 3 and n in (208, 216, 224, 232, 240, 248):
            g.stamp({208: 1, 216: 2, 224: 3, 232: 4, 240: 5, 248: 6}[n])
        if STAGE2 and n == 96:
            R = g.s2regs
            A(f"s_waitcnt vmcnt({younger('vpoll')})")
            A("s_mov_b32 s10, 0")
            A.label("L_VPOLL")
            A(f"v_cmp_ne_u32 vcc, s{S_XCC}, v{R['vRes']}")
            A("s_nop 0")
            A("s_cbranch_vccz L_VOK")
            A("s_add_u32 s10, s10, 1")
            A(f"s_cmp_ge_u32 s10, {opt.get('maxpoll1', 400)}")
            A("s_cbranch_scc1 L_WAVEFAIL")
            A(f"global_load_dword v{R['vRes']}, v{R['vPoll']}, s[38:39] offset:128 sc1")
            A("s_waitcnt vmcnt(0)")
            A("s_branch L_VPOLL")
            A.label("L_VOK")
        if (SPLIT or PROG) and n == 16:
            A(f"s_waitcnt vmcnt({younger('vpoll')})")
            A("s_mov_b32 s10, 0")
            A.label("L_VPOLL")
            A(f"v_cmp_ne_u32 vcc, s{S_XCC}, v187")
            A("s_nop 0")
            A("s_cbranch_vccz L_VOK")
            A("s_add_u32 s10, s10, 1")
            A(f"s_cmp_ge_u32 s10, {opt.get('maxpoll1', 400)}")
            A("s_cbranch_scc1 L_WAVEFAIL")
            A(f"global_load_dword v187, v186, s[38:39] offset:{128 if SPLIT else 0} sc1")
            A("s_waitcnt vmcnt(0)")
            A("s_branch L_VPOLL")
            A.label("L_VOK")
        if first[p] == n:
            w = f"s_waitcnt vmcnt({younger(p)})"
            if k == "K" and t == 0:
                if opt.get("xsplit0", 0): w += " lgkmcnt(0)" if i == 0 or i == 4 else ""
                else:
                    nq = min(7, i + 3) - i
                    w += f" lgkmcnt({2 * nq})"
            A(w)
            if opt.get("e64"): A("s_nop 0")
        frag = ring(p)
        if k == "K":
            S = vr(Sreg(t & 1, X), 16)
            C = "0" if i == 0 else S
            A(f"v_mfma_f32_32x32x16_bf16 {S}, {frag}, {Qreg(X, i)}, {C}")
        else:
            j, ks = i & 3, i >> 2
            O = Oreg(X, j)
            C = "0" if (t == 0 and ks == 0) else O
            A(f"v_mfma_f32_32x32x16_bf16 {O}, {frag}, {vr(Preg(t & 1, X) + 4 * ks, 4)}, {C}")
        fl = fillers(n)
        for q in sched.get(n, []):
            assert last.get(q - RINGSZ, -1) < n + (0 if bal else 1), (q, n)
            fl.insert(min(opt.get("ldpos", 0), len(fl)), ring_load(seq, q, rmod)); order.append(q); loaded.add(q)
        if STAGE2:
            R = g.s2regs
            if n < 16:
                nb = len(g.stageB); lo = (n * nb) // 16; hi = ((n + 1) * nb) // 16
                for ins in g.stageB[lo:hi]:
                    fl.append(ins)
                    if ins.startswith("buffer_store"): order.append("bst%d" % len([o for o in order if str(o).startswith("bst")]))
            if n == opt.get("bpub", 58):
                fl += [f"s_waitcnt vmcnt({younger('bst1')})", "s_barrier", "s_mov_b64 exec, 1",
                       f"global_store_dword v{R['vMyF']}, v{R['vFVal']}, s[38:39] offset:128", "s_mov_b64 exec, -1",
                       "s_cmp_lg_u32 s65, 0", "s_cbranch_scc1 L_WAVEFAIL"]
                order.append("bflag")
            if n in (62, 64, 66):
                k3 = (n - 62) // 2
                fl.append([f"buffer_store_dwordx4 v[184:187], v{V_LANE16}, s[{S_WS}:{S_WS+3}], s44 offen sc1",
                           f"buffer_store_dwordx4 v[184:187], v{V_LANE16}, s[{S_WS}:{S_WS+3}], s44 offen offset:1024 sc1",
                           f"buffer_store_dword v184, v183, s[{S_WS}:{S_WS+3}], s45 offen sc1"][k3]); order.append(f"s{n}")
            if n == opt.get("bpoll", 84):
                fl.append(f"global_load_dword v{R['vRes']}, v{R['vPoll']}, s[38:39] offset:128 sc1"); order.append("vpoll")
        if opt.get("xl", 0):
            wsr = f"s[{S_WS}:{S_WS+3}]"
            if n in (18, 20, 22):
                fl.append([f"buffer_load_dwordx4 v[176:179], v{V_LANE16}, {wsr}, s44 offen sc1",
                           f"buffer_load_dwordx4 v[180:183], v{V_LANE16}, {wsr}, s44 offen offset:1024 sc1",
                           f"buffer_load_dword v188, v189, {wsr}, s45 offen sc1"][(n - 18) // 2]); order.append(f"pr{n}")
            if n in (70, 72, 74):
                fl.append([f"buffer_store_dwordx4 v[184:187], v{V_LANE16}, {wsr}, s44 offen",
                           f"buffer_store_dwordx4 v[184:187], v{V_LANE16}, {wsr}, s44 offen offset:1024",
                           f"buffer_store_dword v184, v189, {wsr}, s45 offen"][(n - 70) // 2]); order.append(f"s{n}")
        if SENTL and n in (17, 19, 21):
            fl.append(sent_ins[(n - 17) // 2]); order.append(f"s{n}")
        if (SPLIT or PROG) and n == opt.get("vpoll_at", 9):
            fl.append(f"global_load_dword v187, v186, s[38:39] offset:{128 if SPLIT else 0} sc1"); order.append("vpoll")
        if opt.get("xsplit0", 0):
            if n == 0:
                for ks4 in range(4, 8):
                    for XX in range(2):
                        fl.append(f"ds_read_b128 {Qreg(XX, ks4)}, v{8 + (ks4 & 3)} offset:{(XX * 8 + ks4) * 1024}")
        elif k == "K" and t == 0 and X == 1 and i + 4 <= 7:
            for XX in range(2):
                fl.append(f"ds_read_b128 {Qreg(XX, i + 4)}, v{8 + ((i + 4) & 3)} offset:{(XX * 8 + i + 4) * 1024}")
        fl += extra[n]
        dbgdrop = opt.get("drop", "")
        if "a" in dbgdrop: fl = [l for l in fl if not l.startswith("v_add_f32 v6,") and not l.startswith("v_add_f32 v7,")]
        if "e" in dbgdrop: fl = [l for l in fl if not l.startswith("v_exp_f32")]
        if "c" in dbgdrop: fl = [l for l in fl if not l.startswith("v_cvt_pk")]
        for l in fl: A(l)
    issued = len(loaded)
    assert issued == 128
    assert not st["cvt"]
    for (t, X, j) in st["add"]:
        if opt.get("dotsum"):
            A(f"v_dot2c_f32_bf16 v{V_LA + X}, s95, v{Preg(t & 1, X) + (j >> 1)}")
        elif opt.get("pkadd"):
            A(f"v_pk_add_f32 {vr(188 + 2 * X, 2)}, {vr(188 + 2 * X, 2)}, {vr(Sreg(t & 1, X) + j - 1, 2)}")
        else:
            A(f"v_add_f32 v{V_LA + X}, v{V_LA + X}, v{Sreg(t & 1, X) + j}")
    if opt.get("pkadd"): A(f"v_add_f32 v{V_LB}, v190, v191")
    epi.finish()

class Epi:
    vWr = [None, 8, 9, 10]; vRd = 11; vLw = 12; vLr = 13; vX = 14
    TA = V_S
    TL = 64
    PK = 72
    RX = 80
    def __init__(self, g): self.g = g; self.A = g.A; self.opt = g.opt
    def address_setup(self):
        L = []
        for j in range(1, 4):
            L += [f"s_add_u32 s9, s{S_W}, {j}", "s_and_b32 s9, s9, 3", "s_mul_i32 s9, s9, 12288",
                  f"s_add_u32 s9, s9, {RED_A + (j - 1) * 4096}", f"v_add_u32 v{self.vWr[j]}, s9, v{V_LANE16}"]
        L += [f"s_mul_i32 s9, s{S_W}, 12288", f"s_add_u32 s9, s9, {RED_A}", f"v_add_u32 v{self.vRd}, s9, v{V_LANE16}"]
        L += ["v_and_b32 v15, 31, v0", f"v_lshlrev_b32 v{self.vLr}, 5, v15", f"v_add_u32 v{self.vLr}, {LRED}, v{self.vLr}",
              "v_lshrrev_b32 v15, 5, v0", f"v_lshl_add_u32 v{self.vLw}, v15, 2, v{self.vLr}",
              f"s_lshl_b32 s9, s{S_W}, 3", f"v_add_u32 v{self.vLw}, s9, v{self.vLw}",
              f"v_lshlrev_b32 v{self.vX}, 2, v0"]
        if self.opt.get("xl", 0): L += ["s_xor_b32 s46, s44, 65536", "s_xor_b32 s47, s45, 8192"]
        else: L += ["s_xor_b32 s46, s44, 8192", "s_xor_b32 s47, s45, 1024"]
        L += [f"s_lshl_b32 s9, s{S_H}, 6", f"s_lshl_b32 s10, s{S_QT}, 1", "s_add_u32 s9, s9, s10", f"s_add_u32 s9, s9, s{S_SP}",
              "s_lshl_b32 s9, s9, 13", f"s_lshl_b32 s10, s{S_W}, 6", "s_add_u32 s42, s9, s10",
              "v_and_b32 v15, 31, v0", "v_lshlrev_b32 v15, 8, v15"]
        L += [f"s_mov_b32 s{S_OUT}, s{S_OUTP}", f"s_and_b32 s{S_OUT+1}, s{S_OUTP+1}, 0xffff", f"s_mov_b32 s{S_OUT+2}, {2 << 20}", f"s_mov_b32 s{S_OUT+3}, 0x20000"]
        return L
    def lwrite(self, X):
        return [f"ds_write_b32 v{self.vLw}, v{V_LA + X} offset:{X * 1024}"]
    def owrite(self, X):
        L = []
        for j in range(1, 4):
            for qd in range(4):
                a = A_O + X * 48 + (j - 1) * 16 + qd * 4
                L.append(f"ds_write_b128 v{self.vWr[j]}, {ar(a, 4)} offset:{X * RED_BOFF + qd * 1024}")
        return L
    def oread(self, X):
        L = [f"ds_read_b128 {vr(self.TL, 4)}, v{self.vLr} offset:{X * 1024}",
             f"ds_read_b128 {vr(self.TL + 4, 4)}, v{self.vLr} offset:{X * 1024 + 16}"]
        for j in range(1, 4):
            for qd in range(4):
                L.append(f"ds_read_b128 {vr(self.TA + (j - 1) * 16 + qd * 4, 4)}, v{self.vRd} offset:{X * RED_BOFF + (j - 1) * 4096 + qd * 1024}")
        return L
    def sums(self, X):
        A = self.A; TL = self.TL; O = V_O0 + 16 * X
        A(f"v_add_f32 v{TL}, v{TL}, v{TL + 1}")
        A(f"v_add_f32 v{TL + 2}, v{TL + 2}, v{TL + 3}")
        A(f"v_add_f32 v{TL + 4}, v{TL + 4}, v{TL + 5}")
        A(f"v_add_f32 v{TL + 6}, v{TL + 6}, v{TL + 7}")
        A(f"v_add_f32 v{TL}, v{TL}, v{TL + 2}")
        A(f"v_add_f32 v{TL + 4}, v{TL + 4}, v{TL + 6}")
        A(f"v_add_f32 v{V_LA + X}, v{TL}, v{TL + 4}")
        for j in range(3):
            for r in range(0, 16, 2):
                A(f"v_pk_add_f32 {vr(O + r, 2)}, {vr(O + r, 2)}, {vr(self.TA + j * 16 + r, 2)}")
    def finish(self):
        g, A, opt = self.g, self.A, self.opt
        PK, RX = self.PK, self.RX
        A.c("==== epilogue")
        A.label("L_EPI")
        g.stamp(8)
        ws = f"s[{S_WS}:{S_WS+3}]"
        es = opt.get("epistamp")
        if not opt.get("tail2"):
            A("s_waitcnt lgkmcnt(0)")
            if es: g.stamp(1)
            A("s_barrier")
            if es: g.stamp(2); g.stamp_wait()
            for l in self.oread(0): A(l)
            for l in self.lwrite(1): A(l)
            A("s_waitcnt lgkmcnt(1)")
        else:
            for l in self.lwrite(1): A(l)
            A("s_waitcnt lgkmcnt(1)")
        if es: g.stamp(3)
        BWI = opt.get("bw_inter", 0)
        if BWI:
            tmp = Asm(); save = self.A; self.A = tmp
            self.sums(0)
            for k in range(8):
                tmp(f"v_cvt_pk_bf16_f32 v{PK + k}, v{V_O0 + 2 * k}, v{V_O0 + 2 * k + 1}")
            self.A = save
            valu = list(tmp.lines); wr = self.owrite(1)
            per = -(-len(valu) // len(wr))
            for k, w_ in enumerate(wr):
                A(w_)
                for l in valu[k * per:(k + 1) * per]: A(l)
            for l in valu[len(wr) * per:]: A(l)
        else:
            self.sums(0)
            for k in range(8):
                A(f"v_cvt_pk_bf16_f32 v{PK + k}, v{V_O0 + 2 * k}, v{V_O0 + 2 * k + 1}")
        omod = opt.get("xchg_mod", "" if opt.get("xl", 0) else "sc1")
        A(f"buffer_store_dwordx4 {vr(PK, 4)}, v{V_LANE16}, {ws}, s46 offen {omod}")
        A(f"buffer_store_dwordx4 {vr(PK + 4, 4)}, v{V_LANE16}, {ws}, s46 offen offset:1024 {omod}")
        A(f"buffer_store_dword v{V_LA}, v{self.vX}, {ws}, s47 offen {omod}")
        g.stamp(9)
        def poll(R=RX):
            pm = opt.get("poll_mod", "sc1")
            A(f"buffer_load_dwordx4 {vr(R, 4)}, v{V_LANE16}, {ws}, s44 offen {pm}")
            A(f"buffer_load_dwordx4 {vr(R + 4, 4)}, v{V_LANE16}, {ws}, s44 offen offset:1024 {pm}")
            A(f"buffer_load_dword v{R + 8}, v{self.vX}, {ws}, s45 offen {pm}")
        def test(R=RX):
            A(f"v_max3_u32 v90, v{R}, v{R + 1}, v{R + 2}")
            A(f"v_max3_u32 v91, v{R + 3}, v{R + 4}, v{R + 5}")
            A(f"v_max3_u32 v92, v{R + 6}, v{R + 7}, v{R + 8}")
            A("v_max3_u32 v90, v90, v91, v92")
            A("v_cmp_eq_u32 vcc, -1, v90")
        RX2 = 100
        dbl = opt.get("dblpoll", 0)
        if dbl == 1: poll()
        pp = opt.get("pollpos", 12)
        if not BWI:
            for k, l in enumerate(self.owrite(1)):
                if k == pp: poll(RX)
                A(l)
        late = opt.get("poll_late", 0)
        if pp >= 12 and not late: poll(RX2 if dbl == 1 else RX)
        if es: g.stamp(4)
        A("s_waitcnt lgkmcnt(0)")
        if es: g.stamp(5)
        A("s_barrier")
        if es: g.stamp(6); g.stamp_wait()
        for l in self.oread(1): A(l)
        if late: poll(RX)
        A("s_mov_b32 s10, 0")
        if dbl == 2:
            A("s_waitcnt lgkmcnt(7)")
            poll(RX2)
        A("s_waitcnt lgkmcnt(0)")
        self.sums(1)
        if es: g.stamp(7)
        if dbl:
            A("s_waitcnt vmcnt(3)")
            test(RX)
            A("s_nop 1")
            A("s_cbranch_vccz L_GOT")
            A("s_waitcnt vmcnt(0)")
            for k in range(9): A(f"v_mov_b32 v{RX + k}, v{RX2 + k}")
            A("s_branch L_POLLT")
        else:
            A("s_branch L_POLLW")
        A.label("L_POLL")
        poll()
        A.label("L_POLLW")
        A("s_waitcnt vmcnt(0)")
        A.label("L_POLLT")
        test(RX)
        A("s_add_u32 s10, s10, 1")
        A(f"s_cmp_ge_u32 s10, {opt.get('maxpoll2', 200)}")
        A("s_cbranch_scc1 L_FALLBACK")
        A("s_cbranch_vccnz L_POLL")
        A.label("L_GOT")
        g.stamp(10)
        if opt.get("stamp"): A(f"s_mov_b32 s{ST0 + 2*11 + 1}, s10")
        O = V_O0 + 16
        A(f"v_add_f32 v{V_LB}, v{V_LB}, v{RX + 8}")
        for k in range(8):
            A(f"v_lshlrev_b32 v{16 + 2 * k}, 16, v{RX + k}")
            A(f"v_and_b32 v{17 + 2 * k}, 0xffff0000, v{RX + k}")
        A(f"v_rcp_f32 v32, v{V_LB}")
        for r in range(0, 16, 2):
            A(f"v_pk_add_f32 {vr(O + r, 2)}, {vr(O + r, 2)}, {vr(16 + r, 2)}")
        A("v_pk_mul_f32 v[34:35], v[%d:%d], 0" % (O, O + 1))
        for r in range(2, 16, 2):
            A(f"v_pk_fma_f32 v[34:35], {vr(O + r, 2)}, 0, v[34:35]")
        A(f"s_mov_b32 s9, {F(2.0 ** -30)}")
        A(f"s_mov_b32 s10, {F(2.0 ** 30)}")
        A(f"v_cmp_le_f32 s[46:47], s9, v{V_LB}")
        A(f"v_cmp_ge_f32 s[8:9], s10, v{V_LB}")
        A("v_cmp_o_f32 vcc, v34, v35")
        A("v_mov_b32 v33, v32")
        A("s_and_b64 s[46:47], s[46:47], s[8:9]")
        A("s_and_b64 s[46:47], s[46:47], vcc")
        A("s_cmp_eq_u64 s[46:47], exec")
        if not opt.get("nocheck"): A("s_cbranch_scc0 L_FALLBACK")
        for r in range(0, 16, 2):
            A(f"v_pk_mul_f32 {vr(O + r, 2)}, {vr(O + r, 2)}, v[32:33]")
        A.label("L_STORE")
        for k in range(8):
            A(f"v_cvt_pk_bf16_f32 v{PK + k}, v{O + 2 * k}, v{O + 2 * k + 1}")
        A("v_lshrrev_b32 v37, 5, v0")
        A("v_lshl_add_u32 v36, v37, 5, v15")
        om = opt.get("out_mod", "nt")
        A(f"buffer_store_dwordx4 {vr(PK, 4)}, v36, s[{S_OUT}:{S_OUT+3}], s42 offen {om}")
        A(f"buffer_store_dwordx4 {vr(PK + 4, 4)}, v36, s[{S_OUT}:{S_OUT+3}], s42 offen offset:16 {om}")
        if opt.get("stamp"):
            A("s_waitcnt vmcnt(0)")
            g.stamp(12)
            A("s_waitcnt lgkmcnt(0)")
            if opt.get("dbgstamp"):
                A("s_mov_b64 exec, 1")
                A("v_mov_b32 v174, 0")
                A(f"s_not_b32 s98, s{ST0}")
                A("v_mov_b32 v175, s98")
                A(f"global_atomic_umax v174, v175, s[{S_DBG}:{S_DBG+1}] offset:4 sc1")
                for k, idx in enumerate((1, 2, 3, 4, 6, 7, 8, 9, 10, 12)):
                    A(f"v_mov_b32 v175, s{ST0 + 2 * idx}")
                    A(f"global_atomic_umax v174, v175, s[{S_DBG}:{S_DBG+1}] offset:{8 + 4 * k} sc1")
                A("s_endpgm")
            A("s_lshl_b32 s98, s2, 2")
            A(f"s_add_u32 s98, s98, s{S_W}")
            A("s_lshl_b32 s98, s98, 7")
            A(f"s_add_u32 s98, s98, {WS_STAMP}")
            A("v_mov_b32 v174, s98")
            A("s_mov_b64 exec, 1")
            for i in range(13):
                A(f"v_mov_b32 v175, s{ST0 + 2 * i}")
                A(f"global_store_dword v174, v175, s[38:39] offset:{4 * i}")
            A(f"v_mov_b32 v175, s{ST0 + 2*11 + 1}")
            A(f"global_store_dword v174, v175, s[38:39] offset:{4 * 13}")
        A.label("L_END")
        A("s_endpgm")

def gen_fallback(g):
    A, opt = g.A, g.opt
    S = 16; P = 32; XL = 40; KS = 48; KZ = 50; CS = 52; SN = 56; U = 60; KF = 68; QF = 72; WV = 76
    VX = 80; VS = 88; VZ = 96; VF = 104
    M, L, T0, T1, POS, vM, vH, vA = 108, 109, 110, 111, 144, 145, 146, 147
    vKo, vSo, vVo, vVso = 148, 149, 150, 151
    O = V_O0 + 16
    A.c("==== fallback: online softmax with the true running maximum, straight from the raw inputs")
    A.label("L_FALLBACK")
    A("s_waitcnt vmcnt(0) lgkmcnt(0)")
    A(f"s_load_dwordx16 s[{S_ARG}:{S_ARG+15}], s[0:1], 0")
    A(f"v_and_b32 v{vM}, 31, v0")
    A(f"v_lshrrev_b32 v{vH}, 5, v0")
    A(f"v_lshlrev_b32 v{vKo}, 9, v{vM}")
    A(f"v_lshl_add_u32 v{vKo}, v{vH}, 4, v{vKo}")
    A(f"v_lshlrev_b32 v{vSo}, 3, v{vM}")
    A(f"v_bfe_u32 v{T0}, v{vM}, 2, 1")
    A(f"v_lshlrev_b32 v{T0}, 4, v{T0}")
    A(f"v_lshrrev_b32 v{T1}, 3, v{vM}")
    A(f"v_lshl_add_u32 v{T0}, v{T1}, 2, v{T0}")
    A(f"v_and_b32 v{T1}, 3, v{vM}")
    A(f"v_add_u32 v{T0}, v{T0}, v{T1}")
    A(f"s_lshl_b32 s9, s{S_W}, 5")
    A(f"v_add_u32 v{T0}, s9, v{T0}")
    A(f"v_lshlrev_b32 v{T0}, 2, v{T0}")
    A(f"v_lshl_add_u32 v{vVo}, v{vH}, 11, v{T0}")
    A(f"s_lshl_b32 s9, s{S_W}, 1")
    A(f"v_lshlrev_b32 v{vVso}, 5, v{vH}")
    A(f"v_add_u32 v{vVso}, s9, v{vVso}")
    A(f"v_mov_b32 v{M}, 0xff800000")
    A(f"v_mov_b32 v{L}, 0")
    for r in range(16): A(f"v_mov_b32 v{O + r}, 0")
    A("s_waitcnt lgkmcnt(0)")
    A(f"s_lshl_b32 s8, s{S_H}, 20")
    A(f"s_lshl_b32 s9, s{S_H}, 14")
    add64(A, 22, 22, "s8"); add64(A, 28, 28, "s8")
    add64(A, 24, 24, "s9"); add64(A, 26, 26, "s9"); add64(A, 30, 30, "s9"); add64(A, 32, 32, "s9")
    A("s_mov_b32 s48, 0")
    A.label("L_FB_TILE")
    A(f"global_load_dwordx2 {vr(KS, 2)}, v{vSo}, s[24:25]")
    A(f"global_load_dwordx2 {vr(KZ, 2)}, v{vSo}, s[26:27]")
    A("s_lshl_b32 s49, s48, 5")
    A(f"v_add_u32 v{POS}, s49, v{vM}")
    A(f"v_cvt_f32_u32 v{POS}, v{POS}")
    for r in range(16): A(f"v_mov_b32 v{S + r}, 0")
    A("s_mov_b32 s50, 0")
    A.label("L_FB_KS")
    A("s_lshl_b32 s51, s50, 5")
    A(f"v_add_u32 v{vA}, s51, v{vKo}")
    A(f"global_load_dwordx4 {vr(XL, 4)}, v{vA}, s[22:23]")
    A(f"global_load_dwordx4 {vr(XL + 4, 4)}, v{vA}, s[22:23] offset:256")
    A("s_and_b32 s51, s50, 3")
    A("s_lshl_b32 s51, s51, 1")
    A(f"v_add_u32 v{vA}, s51, v{vH}")
    A(f"v_xor_b32 v{vA}, v{vA}, v0")
    A(f"v_lshlrev_b32 v{vA}, 4, v{vA}")
    A("s_lshl_b32 s51, s50, 10")
    A("s_add_u32 s51, s51, 8192")
    A(f"v_add_u32 v{vA}, s51, v{vA}")
    A(f"ds_read_b128 {vr(QF, 4)}, v{vA}")
    A("s_lshl_b32 s51, s50, 1")
    A(f"v_add_u32 v{T0}, s51, v{vH}")
    A(f"v_lshlrev_b32 v{T0}, 2, v{T0}")
    A(f"v_cvt_f32_u32 v{T0}, v{T0}")
    A(f"s_mov_b32 s51, {F(TRIG_A)}")
    for j in range(4): A(f"v_mov_b32 v{WV + j}, {F(TRIG_B + j * TRIG_A)}")
    for j in range(4): A(f"v_fma_f32 v{WV + j}, v{T0}, s51, v{WV + j}")
    for j in range(4): A(f"v_exp_f32 v{WV + j}, v{WV + j}")
    A("s_nop 0")
    for j in range(4): A(f"v_mul_f32 v{WV + j}, v{POS}, v{WV + j}")
    for j in range(4): A(f"v_fract_f32 v{WV + j}, v{WV + j}")
    for j in range(4):
        A(f"v_cos_f32 v{CS + j}, v{WV + j}")
        A(f"v_sin_f32 v{SN + j}, v{WV + j}")
    A("s_cmp_lt_u32 s50, 4")
    A("s_cselect_b32 s51, 16, 0")
    A("s_waitcnt vmcnt(0) lgkmcnt(0)")
    for k, src in enumerate((KS, KS + 1, KZ, KZ + 1)):
        A(f"v_lshlrev_b32 v{U + k}, s51, v{src}")
    for k in range(4): A(f"v_and_b32 v{WV + k}, 0xffff0000, v{U + k}")
    for j in range(8): A(f"v_cvt_f32_i32 v{XL + j}, v{XL + j}")
    for j in range(8): A(f"v_sub_f32 v{XL + j}, v{XL + j}, v{WV + 2 + (j >> 2)}")
    for j in range(8): A(f"v_mul_f32 v{XL + j}, v{XL + j}, v{WV + (j >> 2)}")
    for j in range(4):
        A(f"v_mul_f32 v{U + j}, v{XL + 4 + j}, v{SN + j}")
        A(f"v_mul_f32 v{U + 4 + j}, v{XL + j}, v{SN + j}")
    for j in range(4):
        A(f"v_fma_f32 v{U + j}, v{XL + j}, v{CS + j}, -v{U + j}")
        A(f"v_fma_f32 v{U + 4 + j}, v{XL + 4 + j}, v{CS + j}, v{U + 4 + j}")
    for k in range(4): A(f"v_cvt_pk_bf16_f32 v{KF + k}, v{U + 2 * k}, v{U + 2 * k + 1}")
    A("s_nop 1")
    A(f"v_mfma_f32_32x32x16_bf16 {vr(S, 16)}, {vr(KF, 4)}, {vr(QF, 4)}, {vr(S, 16)}")
    A("s_nop 15")
    A("s_add_u32 s50, s50, 1")
    A("s_cmp_lt_u32 s50, 8")
    A("s_cbranch_scc1 L_FB_KS")
    A(f"v_max3_f32 v{T0}, v{S}, v{S + 1}, v{S + 2}")
    for r in range(3, 15, 2): A(f"v_max3_f32 v{T0}, v{T0}, v{S + r}, v{S + r + 1}")
    A(f"v_max_f32 v{T0}, v{T0}, v{S + 15}")
    A(f"v_mov_b32 v{T1}, v{T0}")
    A("s_nop 1")
    A(f"v_permlane32_swap_b32 v{T0}, v{T1}")
    A("s_nop 1")
    A(f"v_max3_f32 v{T0}, v{T0}, v{T1}, v{M}")
    A(f"v_sub_f32 v{T1}, v{M}, v{T0}")
    A(f"v_exp_f32 v{T1}, v{T1}")
    A(f"v_mov_b32 v{M}, v{T0}")
    for r in range(16): A(f"v_sub_f32 v{S + r}, v{S + r}, v{T0}")
    for r in range(16): A(f"v_exp_f32 v{S + r}, v{S + r}")
    A(f"v_mul_f32 v{L}, v{L}, v{T1}")
    for r in range(16): A(f"v_mul_f32 v{O + r}, v{O + r}, v{T1}")
    for r in range(16): A(f"v_add_f32 v{L}, v{L}, v{S + r}")
    for k in range(8): A(f"v_cvt_pk_bf16_f32 v{P + k}, v{S + 2 * k}, v{S + 2 * k + 1}")
    for kst in range(2):
        A(f"v_add_u32 v{vA}, {kst * 8192}, v{vVo}")
        A(f"v_add_u32 v{T0}, {kst * 8192 + 4096}, v{vVo}")
        for i in range(8):
            A(f"global_load_dword v{VX + i}, v{vA if i < 4 else T0}, s[28:29] offset:{(i & 3) * 512}")
        for i in range(8):
            ro = (16 * kst + 8 * (i >> 2) + (i & 3)) * 8
            A(f"global_load_ushort v{VS + i}, v{vVso}, s[30:31] offset:{ro}")
            A(f"global_load_ushort v{VZ + i}, v{vVso}, s[32:33] offset:{ro}")
        A("s_waitcnt vmcnt(0)")
        for i in range(8):
            A(f"v_cvt_f32_i32 v{VX + i}, v{VX + i}")
            A(f"v_lshlrev_b32 v{VS + i}, 16, v{VS + i}")
            A(f"v_lshlrev_b32 v{VZ + i}, 16, v{VZ + i}")
        for i in range(8): A(f"v_sub_f32 v{VX + i}, v{VX + i}, v{VZ + i}")
        for i in range(8): A(f"v_mul_f32 v{VX + i}, v{VX + i}, v{VS + i}")
        for k in range(4): A(f"v_cvt_pk_bf16_f32 v{VF + k}, v{VX + 2 * k}, v{VX + 2 * k + 1}")
        A("s_nop 1")
        A(f"v_mfma_f32_32x32x16_bf16 {vr(O, 16)}, {vr(VF, 4)}, {vr(P + 4 * kst, 4)}, {vr(O, 16)}")
        A("s_nop 15")
    add64(A, 22, 22, 16384); add64(A, 28, 28, 16384)
    add64(A, 24, 24, 256); add64(A, 26, 26, 256); add64(A, 30, 30, 256); add64(A, 32, 32, 256)
    A("s_add_u32 s48, s48, 1")
    A("s_cmp_lt_u32 s48, 64")
    A("s_cbranch_scc1 L_FB_TILE")
    A(f"v_mov_b32 v{T1}, v{L}")
    A("s_nop 1")
    A(f"v_permlane32_swap_b32 v{L}, v{T1}")
    A("s_nop 1")
    A(f"v_add_f32 v{L}, v{L}, v{T1}")
    A(f"v_rcp_f32 v{L}, v{L}")
    A("s_nop 0")
    for r in range(16): A(f"v_mul_f32 v{O + r}, v{O + r}, v{L}")
    A("s_branch L_STORE")

def kd(A, name, vgpr, sgpr, accum):
    A(f".amdhsa_kernel {name}")
    A(f"  .amdhsa_next_free_vgpr {vgpr}")
    A(f"  .amdhsa_next_free_sgpr {sgpr}")
    A(f"  .amdhsa_accum_offset {accum}")
    A("  .amdhsa_group_segment_fixed_size 0")
    A("  .amdhsa_kernarg_size 112")
    A("  .amdhsa_user_sgpr_count 2")
    A("  .amdhsa_user_sgpr_kernarg_segment_ptr 1")
    A("  .amdhsa_system_sgpr_workgroup_id_x 1")
    A(".end_amdhsa_kernel")


DOC = """
; ---------------------------------------------------------------------------------------------------------------------
; ---------------------------------------------------------------------------------------------------------------------
"""

HEADER = open("cdna_kernels/" + NAME + ".s.ref").read().split("; Override launch geometry")[0]

def generate(opt):
    g = G(opt); A = g.A
    A(HEADER.rstrip("\n"))
    A(f"; @launch grid=(256,1,1) block=(256,1,1) lds={LDS_BYTES}")
    A('.amdgcn_target "amdgcn-amd-amdhsa--gfx950"')
    A(".text")
    A(DOC.strip("\n"))
    A(f".globl {KNAME}\n.p2align 8\n.type {KNAME},@function")
    A.label(KNAME)
    n0 = len(A.lines)
    if opt.get("stage2"): gen_prologue2(g)
    else: gen_prologue(g)
    if opt.get("force_fallback"): A("s_branch L_WAVEFAIL")
    gen_main(g)
    n1 = len(A.lines)
    gen_wavefail(g)
    gen_fallback(g)
    A.label("L_CODE_END")
    A("s_endpgm")
    n2 = len(A.lines)
    A('.section .rodata,"a"\n.p2align 6')
    kd(A, KNAME, NVGPR_ARCH + 256, 102 if opt.get("stamp") else 100, NVGPR_ARCH)
    L = A.lines
    errs = check(L[n0:n1], "main") + check(L[n1:n2], "fallback")
    return A.text(), errs

if __name__ == "__main__":
    opt = {}
    for a in sys.argv[2:]:
        k, v = a.split("=")
        try: v = int(v)
        except ValueError: pass
        opt[k] = v
    txt, errs = generate(opt)
    out = sys.argv[1]
    open(out, "w").write(txt)
    print("wrote", out, len(txt), "bytes;", len(errs), "check problems")
```
